```python
import torch

def _softmax(x, axis=-1):
    return torch.softmax(x, dim=axis)
def _gelu(x):
    return torch.nn.functional.gelu(x, approximate="tanh")
def _silu(x):
    return torch.nn.functional.silu(x)
def _sigmoid(x):
    return torch.sigmoid(x)
def _layernorm(x, axis=-1, eps=1e-5):
    m = x.mean(dim=axis, keepdim=True)
    v = x.var(dim=axis, keepdim=True, unbiased=False)
    return (x - m) / torch.sqrt(v + eps)
def _scatter_add(tgt, idx, src, axis=0):
    return tgt.clone().index_add_(axis, idx, src)
def _segment_sum(src, seg, n):
    out = torch.zeros((n,) + src.shape[1:], dtype=src.dtype)
    return out.index_add_(0, seg, src)
def _pad(x, pw):
    flat = tuple(v for pair in reversed(pw) for v in pair)
    return torch.nn.functional.pad(x, flat)

kernel_name = 'standalone__gqa_block_cached__sampling'

def setup_inputs():

    _w = (lambda a: (lambda t: t.to(torch.bfloat16) if t.is_floating_point() else t)(torch.as_tensor(a)))
    B, Sq, D = 16, 1, 576
    Hq, Hkv, Sk, Dh = 32, 16, 4096, 128
    assert Hq % Hkv == 0, (Hq, Hkv)
    return {
        "x": _w((lambda *s: torch.randn(*s, dtype=torch.bfloat16) * 0.8)(B, Sq, D)),
        "k_cache": _w((lambda *s: torch.randn(*s, dtype=torch.bfloat16) * 0.8)(B, Hkv, Sk, Dh)),
        "v_cache": _w((lambda *s: torch.randn(*s, dtype=torch.bfloat16) * 0.05)(B, Hkv, Sk, Dh)),
        "wq": _w((lambda *s: torch.randn(*s, dtype=torch.bfloat16) * 0.8)(D, Hq * Dh) * (D ** -0.5)),
        "wo": _w((lambda *s: torch.randn(*s, dtype=torch.bfloat16) * 0.05)(Hq * Dh, D) * ((Hq * Dh) ** -0.5)),
    }

def reference(x, k_cache, v_cache, wq, wo):
    B, Sq, D = x.shape
    Hq, Dh = 32, 128
    Hkv = k_cache.shape[1]
    rep = Hq // Hkv
    q = (lambda x, *d: x.permute(*d))((x @ wq).reshape(B, Sq, Hq, Dh), 0, 2, 1, 3)
    k = (lambda x, n, axis: torch.repeat_interleave(x, n, dim=axis))(k_cache, rep, axis=1)
    v = (lambda x, n, axis: torch.repeat_interleave(x, n, dim=axis))(v_cache, rep, axis=1)
    scores = torch.einsum("bhqd,bhkd->bhqk", q, k) * (Dh ** -0.5)
    p = _softmax(scores, axis=-1)
    o = torch.einsum("bhqk,bhkd->bhqd", p, v)
    return (lambda x, *d: x.permute(*d))(o, 0, 2, 1, 3).reshape(B, Sq, Hq * Dh) @ wo
```

```python
import sys

NAME = "standalone__gqa_block_cached__sampling"

class Cfg:
    N = 5
    P = 56
    LV = 7
    WO_DEPTH = 2
    WFLAG = ""
    TS = False
    kname = NAME + "_kernel"

L_WO = 0
L_SC = 98304
L_Y = L_SC + 32768
L_O = L_Y + 10240
L_Q = L_O + 4096
L_ML = L_Q + 512
L_TK = L_ML + 64
L_END = L_TK + 16
LDS_BYTES = L_END

C_SCALE = 0x3DB504F3
C_LOG2E = 0x3FB8AA3B

def ror(k):
    k = (4 * k) % 16
    return "quad_perm:[0,1,2,3]" if k == 0 else f"row_ror:{k}"

def q(b):
    return f"v[{b}:{b+3}]"

def gen(cfg):
    o = []
    def A(s):
        for line in s.split("\n"):
            o.append("    " + line.strip() if not line.strip().endswith(":") else line.strip())
    K = cfg.kname
    N, P, LV = cfg.N, cfg.P, cfg.LV
    wf = (" " + cfg.WFLAG) if cfg.WFLAG else ""
    nts = [0]
    def ts(idx):
        if cfg.TS:
            A(f"s_memrealtime s[{64+2*idx}:{65+2*idx}]\ns_waitcnt lgkmcnt(0)")
    def ts_store():
        if cfg.TS:
            A(f"""s_mov_b64 exec, 1
            s_lshl_b32 s60, s2, 3
            s_add_u32 s60, s60, s3
            s_lshl_b32 s60, s60, 6
            s_add_u32 s60, s60, 0x400000
            v_mov_b32 v1, s60""")
            for i in range(12):
                A(f"v_mov_b32 v2, s{64+2*i}\nglobal_store_dword v1, v2, s[18:19] offset:{4*i}\ns_nop 1")
            A("s_getreg_b32 s60, hwreg(HW_REG_XCC_ID)\nv_mov_b32 v2, s60\nglobal_store_dword v1, v2, s[18:19] offset:48")

    def build(dst, src, t):
        for r in range(4):
            A(f"v_mov_b32_dpp v{dst+r}, v{src} {ror(r - t)} row_mask:0xf bank_mask:{hex(1 << r)}")

    A(f"{K}:")
    A(f"s_cmp_ge_u32 s2, 256\ns_cbranch_scc1 L_end")
    A("s_load_dwordx16 s[4:19], s[0:1], 0")
    if cfg.TS:
        for i in range(12):
            A(f"s_mov_b64 s[{64+2*i}:{65+2*i}], 0")
        A("s_memrealtime s[64:65]")
    A("""v_lshrrev_b32 v2, 6, v0
    v_and_b32 v1, 63, v0
    v_readfirstlane_b32 s3, v2
    s_and_b32 s48, s2, 15
    s_lshr_b32 s49, s2, 4
    s_cmp_ge_u32 s3, 4
    s_cbranch_scc1 L_aux""")

    SLOT = lambda n: 32 + 4 * n
    vOK, vOV, vSCA, vM, vL, vSA, vSB, vT, vTA, vTB, vSELA, vSELB, vPA, vPB = range(2, 16)
    vQ, vD0, vD1 = 16, 20, 24
    vNM, vTR, vX0, vX1 = 28, 29, 30, 31
    A("s_setprio 3")
    A(f"""v_and_b32 v{vOK}, 3, v1
    v_lshlrev_b32 v{vOK}, 4, v{vOK}
    v_lshrrev_b32 v{vT}, 4, v1
    v_lshl_add_u32 v{vOK}, v{vT}, 6, v{vOK}
    v_bfe_u32 v{vT}, v1, 2, 2
    v_lshl_add_u32 v{vOK}, v{vT}, 8, v{vOK}
    s_lshl_b32 s50, s3, 12
    v_add_u32 v{vOK}, s50, v{vOK}
    s_lshl_b32 s51, s2, 20
    s_lshr_b32 s52, s2, 12
    s_mov_b32 s22, 0x100000
    s_mov_b32 s23, 0x20000
    s_mov_b32 s53, 0
    s_waitcnt lgkmcnt(0)
    s_add_u32 s20, s6, s51
    s_addc_u32 s21, s7, s52
    s_and_b32 s21, s21, 0xffff""")

    def issue(n, slot, wait=True):
        if wait:
            A(f"s_waitcnt vmcnt({N-1})")
        isv = n >= 256
        so = "s54" if isv else "s53"
        A(f"buffer_load_dwordx4 {q(SLOT(slot))}, v{vOV if isv else vOK}, {'s[24:27]' if isv else 's[20:23]'}, {so} offen offset:{(n & 3) * 1024} nt")
        if (n & 3) == 3:
            A(f"s_add_u32 {so}, {so}, 0x4000")

    for n in range(P):
        issue(n, n, wait=(n >= N))
        if n == N - 1:
            A(f"""s_add_u32 s24, s8, s51
            s_addc_u32 s25, s9, s52
            s_and_b32 s25, s25, 0xffff
            s_mov_b32 s26, 0x100000
            s_mov_b32 s27, 0x20000
            s_mov_b32 s54, 0
            v_lshlrev_b32 v{vOV}, 4, v1
            v_add_u32 v{vOV}, s50, v{vOV}
            s_lshl_b32 s55, s3, 13
            s_add_u32 s55, s55, {L_SC}
            v_lshlrev_b32 v{vSCA}, 2, v1
            v_add_u32 v{vSCA}, s55, v{vSCA}
            v_mov_b32 v{vM}, 0xff800000
            s_mov_b32 s56, {hex(C_SCALE)}
            s_mov_b32 s57, {hex(C_LOG2E)}
            v_and_b32 v{vT}, 2, v1
            v_cmp_eq_u32 vcc, 0, v{vT}
            v_mov_b32 v{vTA}, 0x01000c0c
            v_mov_b32 v{vTB}, 0x0c0c0100
            v_cndmask_b32 v{vSELA}, v{vTA}, v{vTB}, vcc
            v_mov_b32 v{vTA}, 0x03020c0c
            v_mov_b32 v{vTB}, 0x0c0c0302
            v_cndmask_b32 v{vSELB}, v{vTA}, v{vTB}, vcc
            v_and_b32 v{vX0}, 1, v1
            v_lshlrev_b32 v{vX0}, 8, v{vX0}
            v_lshrrev_b32 v{vT}, 2, v1
            v_lshl_add_u32 v{vX0}, v{vT}, 4, v{vX0}
            v_add_u32 v{vX0}, {L_Q}, v{vX0}""")
    ts(1)
    A("s_barrier")
    A(f"ds_read_b128 {q(vQ)}, v{vX0}")
    A("s_waitcnt lgkmcnt(0)")
    ts(2)

    def chain_ops(c, D, tmp):
        t = c & 3
        S = vSA if (c & 4) == 0 else vSB
        rs = [r for r in range(4) if r != t]
        return [
            f"v_add_f32_dpp v{tmp}, v{D+rs[0]}, v{D+t} {ror(t - rs[0])} row_mask:0xf bank_mask:0xf",
            f"v_add_f32_dpp v{tmp}, v{D+rs[1]}, v{tmp} {ror(t - rs[1])} row_mask:0xf bank_mask:0xf",
            f"v_add_f32_dpp v{S}, v{D+rs[2]}, v{tmp} {ror(t - rs[2])} row_mask:0xf bank_mask:{hex(1 << t)}",
        ]

    def finalize(off=None):
        A(f"""v_cvt_pk_bf16_f32 v{vT}, v{vSA}, v{vSB}
        v_lshlrev_b32 v{vTA}, 16, v{vT}
        v_and_b32 v{vTB}, 0xffff0000, v{vT}
        v_mul_f32 v{vTA}, s56, v{vTA}
        v_mul_f32 v{vTB}, s56, v{vTB}
        v_max3_f32 v{vM}, v{vM}, v{vTA}, v{vTB}
        v_cvt_pk_bf16_f32 v{vT}, v{vTA}, v{vTB}
        ds_write_b32 v{vSCA}, v{vT}
        v_add_u32 v{vSCA}, 0x100, v{vSCA}""")

    Dof = lambda n: vD0 if n == 0 else (vD1 if n == P - 1 else SLOT(n - 1))
    tmps = [vPA, vPB, vX1]
    ring_at = {}
    for k in range(N):
        ring_at[(P - 6) * (k + 1) // N] = k
    assert min(ring_at) >= N + 5 or True
    for s in range(P + 3):
        if s in ring_at:
            k = ring_at[s]
            assert s >= k + 1 + 4 + 1
            issue(P + k, k)
        if s < P:
            A(f"v_mfma_f32_16x16x32_bf16 {q(Dof(s))}, {q(SLOT(s))}, {q(vQ)}, 0")
        else:
            A("s_nop 0")
        for (lag, opi) in ((4, 2), (3, 1), (2, 0)):
            c = s - lag
            if 0 <= c < P - 1:
                A(chain_ops(c, Dof(c), tmps[c % 3])[opi])
            else:
                A("s_nop 0")
        c = s - 4
        if c >= 0 and (c & 7) == 7 and c < P - 1:
            finalize()
    ts(3)

    def kstep(c, nissue):
        issue(nissue, nissue % 8)
        A(f"v_mfma_f32_16x16x32_bf16 {q(vD1 if c & 1 else vD0)}, {q(SLOT(c % 8))}, {q(vQ)}, 0")
        pc = (c - 1) % 8
        ops = chain_ops(pc, vD1 if pc & 1 else vD0, vX1)
        A("s_nop 1")
        A(ops[0]); A("s_nop 1"); A(ops[1]); A("s_nop 1"); A(ops[2])
        if pc == 7:
            finalize()

    nkit = (256 - P) // 8
    A(f"s_mov_b32 s58, {nkit - 1}")
    A("L_kloop:")
    for c in range(8):
        kstep(c, P + c + N)
    A("s_sub_u32 s58, s58, 1\ns_cmp_lg_u32 s58, 0\ns_cbranch_scc1 L_kloop")
    for c in range(248, 256):
        kstep(c, c + N)
    A("s_nop 7")
    ops = chain_ops(7, vD1, vX1)
    A(ops[0]); A("s_nop 1"); A(ops[1]); A("s_nop 1"); A(ops[2])
    finalize()
    ts(4)
    A(f"v_subrev_u32 v{vSCA}, 0x2000, v{vSCA}")
    A(f"ds_read_b32 v{vTR}, v{vSCA}")
    extra = list(range(256 + N, 256 + LV))
    if extra:
        issue(extra[0], extra[0] % 8)
    def xreduce(v, op, tmp):
        A(f"""s_nop 1
        {op}_dpp v{v}, v{v}, v{v} row_ror:4 row_mask:0xf bank_mask:0xf
        s_nop 1
        {op}_dpp v{v}, v{v}, v{v} row_ror:8 row_mask:0xf bank_mask:0xf
        v_mov_b32 v{tmp}, v{v}
        s_nop 1
        v_permlane16_swap_b32 v{v}, v{tmp}
        {op} v{v}, v{v}, v{tmp}
        v_mov_b32 v{tmp}, v{v}
        s_nop 1
        v_permlane32_swap_b32 v{v}, v{tmp}
        {op} v{v}, v{v}, v{tmp}""")
    xreduce(vM, "v_max_f32", vT)
    A(f"""v_cvt_pk_bf16_f32 v{vM}, v{vM}, v{vM}
    v_lshlrev_b32 v{vM}, 16, v{vM}
    v_mul_f32 v{vM}, s57, v{vM}
    v_sub_f32 v{vNM}, 0, v{vM}
    v_mov_b32 v{vL}, 0""")
    for r in range(16, 28):
        A(f"v_mov_b32 v{r}, 0")
    vO = vQ
    def expblock():
        A(f"""s_waitcnt lgkmcnt(0)
        v_lshlrev_b32 v{vTA}, 16, v{vTR}
        v_and_b32 v{vTB}, 0xffff0000, v{vTR}
        v_fma_f32 v{vTA}, v{vTA}, s57, v{vNM}
        v_fma_f32 v{vTB}, v{vTB}, s57, v{vNM}
        v_exp_f32 v{vTA}, v{vTA}
        v_exp_f32 v{vTB}, v{vTB}
        v_add_f32 v{vL}, v{vL}, v{vTA}
        s_nop 0
        v_add_f32 v{vL}, v{vL}, v{vTB}
        v_cvt_pk_bf16_f32 v{vT}, v{vTA}, v{vTB}""")
    expblock()
    A(f"v_perm_b32 v{vPA}, v{vT}, v{vT}, v{vSELA}\nv_perm_b32 v{vPB}, v{vT}, v{vT}, v{vSELB}")
    for n in extra[1:]:
        issue(n, n % 8)
    A("s_nop 1")

    def vstep(c, missue, waitn=None):
        pb = vD1 if c & 1 else vD0
        build(pb, vPA if (c & 4) == 0 else vPB, c & 3)
        if missue is not None:
            issue(256 + missue, missue % 8)
        else:
            A(f"s_waitcnt vmcnt({waitn})\ns_nop 0")
        A(f"v_mfma_f32_16x16x32_bf16 {q(vO)}, {q(SLOT(c % 8))}, {q(pb)}, {q(vO)}")

    A("s_mov_b32 s58, 31")
    A("L_vloop:")
    for c in range(8):
        vstep(c, c + LV)
        if c == 0:
            A(f"v_add_u32 v{vSCA}, 0x100, v{vSCA}\nds_read_b32 v{vTR}, v{vSCA}")
        if c == 2:
            expblock()
        if c == 4:
            A(f"v_perm_b32 v{vPA}, v{vT}, v{vT}, v{vSELA}")
        if c == 7:
            A(f"v_perm_b32 v{vPB}, v{vT}, v{vT}, v{vSELB}")
    A("s_sub_u32 s58, s58, 1\ns_cmp_lg_u32 s58, 0\ns_cbranch_scc1 L_vloop")
    c = 248
    while c + LV < 256:
        vstep(c, c + LV)
        c += 1
    ts(5)
    xreduce(vL, "v_add_f32", vT)
    A(f"""v_and_b32 v{vX0}, 1, v1
    v_lshlrev_b32 v{vX0}, 5, v{vX0}
    v_add_u32 v{vX0}, {L_ML}, v{vX0}
    s_lshl_b32 s55, s3, 3
    v_add_u32 v{vX1}, s55, v{vX0}
    v_mov_b32 v{vTA}, v{vM}
    v_mov_b32 v{vTB}, v{vL}
    ds_write_b64 v{vX1}, v[{vTA}:{vTB}]
    s_waitcnt lgkmcnt(0)
    s_barrier""")
    m0 = SLOT(9)
    A(f"""ds_read_b128 {q(m0)}, v{vX0}
    ds_read_b128 {q(m0+4)}, v{vX0} offset:16
    v_mov_b32 v{vX0}, {L_TK}
    ds_read_b32 v{m0+8}, v{vX0}
    s_lshl_b32 s55, s3, 10
    s_add_u32 s55, s55, {L_O}
    v_lshlrev_b32 v{vX1}, 4, v1
    v_add_u32 v{vX1}, s55, v{vX1}
    s_waitcnt lgkmcnt(0)
    v_readfirstlane_b32 s59, v{m0+8}
    v_max3_f32 v{vT}, v{m0}, v{m0+2}, v{m0+4}
    v_max_f32 v{vT}, v{vT}, v{m0+6}
    v_sub_f32 v{m0}, v{m0}, v{vT}
    v_sub_f32 v{m0+2}, v{m0+2}, v{vT}
    v_sub_f32 v{m0+4}, v{m0+4}, v{vT}
    v_sub_f32 v{m0+6}, v{m0+6}, v{vT}
    v_sub_f32 v{vTA}, v{vM}, v{vT}
    v_exp_f32 v{m0}, v{m0}
    v_exp_f32 v{m0+2}, v{m0+2}
    v_exp_f32 v{m0+4}, v{m0+4}
    v_exp_f32 v{m0+6}, v{m0+6}
    v_exp_f32 v{vTA}, v{vTA}
    v_mul_f32 v{vTB}, v{m0}, v{m0+1}
    v_fmac_f32 v{vTB}, v{m0+2}, v{m0+3}
    v_fmac_f32 v{vTB}, v{m0+4}, v{m0+5}
    v_fmac_f32 v{vTB}, v{m0+6}, v{m0+7}
    v_rcp_f32 v{vTB}, v{vTB}
    s_nop 0
    v_mul_f32 v{vTA}, v{vTA}, v{vTB}""")
    while c < 256:
        vstep(c, None, 255 - c)
        c += 1
    A("s_nop 7")
    for r in range(4):
        A(f"v_mul_f32 v{vO+r}, v{vO+r}, v{vTA}")
    A(f"""ds_write_b128 v{vX1}, {q(vO)}
    s_waitcnt lgkmcnt(0)""")
    ts(6)
    A("s_barrier")
    A(f"""s_cmp_lg_u32 s59, 15
    s_cbranch_scc1 L_sdone
    s_mul_i32 s50, s49, {16*2304}
    s_add_u32 s40, s18, s50
    s_addc_u32 s41, s19, 0
    s_and_b32 s41, s41, 0xffff
    s_mov_b32 s42, {16*2304}
    s_mov_b32 s43, 0x20000
    s_mul_i32 s50, s49, 1152
    s_add_u32 s44, s14, s50
    s_addc_u32 s45, s15, 0
    s_and_b32 s45, s45, 0xffff
    s_mov_b32 s46, 1152
    s_mov_b32 s47, 0x20000
    s_mul_i32 s50, s3, 36
    v_add_u32 v2, s50, v1
    v_lshlrev_b32 v3, 3, v2
    v_lshlrev_b32 v2, 4, v2
    s_mov_b32 exec_lo, -1
    s_mov_b32 exec_hi, 15
    s_mov_b32 s58, 0x40000
    s_barrier
    L_poll:""")
    R = 32
    for k in range(16):
        A(f"s_mov_b32 s50, {k*2304}\nbuffer_load_dwordx4 {q(R+4*k)}, v2, s[40:43], s50 offen sc1")
    A("s_waitcnt vmcnt(0)")
    A(f"v_max3_u32 v4, v{R}, v{R+1}, v{R+2}\nv_max3_u32 v5, v{R+3}, v{R+4}, v{R+5}")
    i = 6
    tog = 0
    while i < 64:
        A(f"v_max3_u32 v{4+tog}, v{4+tog}, v{R+i}, v{R+i+1}")
        i += 2
        tog ^= 1
    A(f"""v_max_u32 v4, v4, v5
    v_cmp_eq_u32 vcc, -1, v4
    s_sub_u32 s58, s58, 1""")
    step = 1
    while step < 16:
        for k in range(0, 16, 2 * step):
            a, b_ = R + 4 * k, R + 4 * (k + step)
            A(f"v_pk_add_f32 v[{a}:{a+1}], v[{a}:{a+1}], v[{b_}:{b_+1}]\nv_pk_add_f32 v[{a+2}:{a+3}], v[{a+2}:{a+3}], v[{b_+2}:{b_+3}]")
        if step == 1:
            A("s_cbranch_scc1 L_pollout\ns_cbranch_vccnz L_poll\nL_pollout:")
        step *= 2
    A(f"""v_cvt_pk_bf16_f32 v4, v{R}, v{R+1}
    v_cvt_pk_bf16_f32 v5, v{R+2}, v{R+3}
    buffer_store_dwordx2 v[4:5], v3, s[44:47], 0 offen""")
    ts(7)
    A("L_sdone:")
    ts_store()
    A("s_endpgm")

    A("L_aux:")
    A("s_sub_u32 s61, s3, 4")
    XP, AB0, AB1, XR = 10, 28, 32, 36
    QS = lambda n: 48 + 4 * n
    NQS = 52
    vOW, vA, vB, vC = 2, 3, 8, 9
    vACC = 4
    A(f"""v_bfe_u32 v{vA}, v1, 2, 2
    v_lshlrev_b32 v{vA}, 3, v{vA}
    v_and_b32 v{vB}, 1, v1
    v_lshl_add_u32 v{vA}, v{vB}, 2, v{vA}
    v_lshrrev_b32 v{vB}, 4, v1
    v_add_u32 v{vA}, v{vA}, v{vB}
    v_mul_u32_u24 v{vA}, 36, v{vA}
    v_bfe_u32 v{vC}, v1, 3, 1
    v_lshl_add_u32 v{vC}, v{vC}, 2, v{vB}
    v_mul_u32_u24 v{vOW}, {18*8192}, v{vC}
    v_and_b32 v{vC}, 7, v1
    v_lshl_add_u32 v{vOW}, v{vC}, 4, v{vOW}
    s_lshl_b32 s50, s61, 7
    v_add_u32 v{vOW}, s50, v{vOW}
    s_mul_i32 s50, s49, 1152
    s_lshl_b32 s51, s48, 9
    s_mov_b32 s38, 1152
    s_mov_b32 s39, 0x20000
    s_sub_u32 s30, {576*8192}, s51
    s_mov_b32 s31, 0x20000
    s_waitcnt lgkmcnt(0)
    s_add_u32 s36, s4, s50
    s_addc_u32 s37, s5, 0
    s_and_b32 s37, s37, 0xffff
    s_add_u32 s28, s10, s51
    s_addc_u32 s29, s11, 0
    s_and_b32 s29, s29, 0xffff
    buffer_load_dwordx4 {q(XR)}, v{vA}, s[36:39], 0 offen
    buffer_load_dwordx4 {q(XR+4)}, v{vA}, s[36:39], 0 offen offset:16
    buffer_load_dword v{XR+8}, v{vA}, s[36:39], 0 offen offset:32""")
    def wq_issue(tau, slot):
        u, t = tau >> 2, tau & 3
        A(f"s_mov_b32 s50, {(144*t + u) * 8192}\nbuffer_load_dwordx4 {q(QS(slot))}, v{vOW}, s[28:31], s50 offen{wf}")
    for tau in range(NQS):
        wq_issue(tau, tau)
    vSELA2, vSELB2, vST = 45, 46, 47
    A(f"""s_mul_i32 s50, s2, 2304
    s_add_u32 s40, s18, s50
    s_addc_u32 s41, s19, 0
    s_and_b32 s41, s41, 0xffff
    s_mov_b32 s42, 2304
    s_mov_b32 s43, 0x20000
    s_mul_i32 s50, s61, 36
    v_add_u32 v{vST}, s50, v1
    v_lshlrev_b32 v{vST}, 4, v{vST}
    v_mov_b32 v4, -1
    v_mov_b32 v5, -1
    v_mov_b32 v6, -1
    v_mov_b32 v7, -1
    s_mov_b32 exec_hi, 15
    buffer_store_dwordx4 v[4:7], v{vST}, s[40:43], 0 offen sc1
    s_mov_b32 exec_hi, -1
    v_and_b32 v{vA}, 2, v1
    v_cmp_eq_u32 vcc, 0, v{vA}
    v_mov_b32 v{vB}, 0x01000c0c
    v_mov_b32 v{vC}, 0x0c0c0100
    v_cndmask_b32 v{vSELA2}, v{vB}, v{vC}, vcc
    v_mov_b32 v{vB}, 0x03020c0c
    v_mov_b32 v{vC}, 0x0c0c0302
    v_cndmask_b32 v{vSELB2}, v{vB}, v{vC}, vcc""")
    for r in range(AB0, AB0 + 8):
        A(f"v_mov_b32 v{r}, 0")
    A(f"s_waitcnt vmcnt({NQS})")
    for u in range(18):
        A(f"v_perm_b32 v{XP+u}, v{XR + u//2}, v{XR + u//2}, v{vSELB2 if u & 1 else vSELA2}")
    issued = NQS
    for tau in range(72):
        u, t = tau >> 2, tau & 3
        ab = AB1 if tau & 1 else AB0
        build(ab, XP + u, t)
        after = issued - 1 - tau
        A(f"s_waitcnt vmcnt({after})\ns_nop 0")
        slot = tau if tau < NQS else tau - NQS
        A(f"v_mfma_f32_16x16x32_bf16 {q(vACC)}, {q(ab)}, {q(QS(slot))}, {'0' if tau == 0 else q(vACC)}")
        if tau >= 1 and issued < 72:
            wq_issue(issued, issued - NQS)
            issued += 1
    A(f"""v_and_b32 v{vA}, 15, v1
    v_lshlrev_b32 v{vA}, 4, v{vA}
    v_lshrrev_b32 v{vB}, 4, v1
    v_lshl_add_u32 v{vA}, v{vB}, 2, v{vA}
    s_lshl_b32 s50, s61, 7
    s_add_u32 s50, s50, {L_Q}
    v_add_u32 v{vA}, s50, v{vA}
    s_nop 1
    v_add_f32_dpp v{vB}, v{vACC+1}, v{vACC} row_ror:8 row_mask:0xf bank_mask:0xf
    v_add_f32_dpp v{vC}, v{vACC+3}, v{vACC+2} row_ror:8 row_mask:0xf bank_mask:0xf
    v_cvt_pk_bf16_f32 v{vB}, v{vB}, v{vC}
    s_mov_b32 exec_lo, 0x00ff00ff
    s_mov_b32 exec_hi, 0x00ff00ff
    ds_write_b32 v{vA}, v{vB}
    s_mov_b64 exec, -1
    s_waitcnt vmcnt(0) lgkmcnt(0)""")
    ts(1)
    A("s_barrier")
    A(f"""s_cmp_lg_u32 s61, 0
    s_cbranch_scc1 L_noticket
    s_lshl_b32 s50, s49, 4
    v_mov_b32 v4, s50
    v_mov_b32 v5, 1
    v_mov_b32 v7, {L_TK}
    s_mov_b64 exec, 1
    global_atomic_add v6, v4, v5, s[16:17] sc0 sc1
    s_waitcnt vmcnt(0)
    ds_write_b32 v7, v6
    s_mov_b64 exec, -1
    L_noticket:""")
    WS = lambda n: 64 + 4 * n
    NWS = 48
    YACC = 12
    OB0, OB1 = 4, 8
    vOP0, vOP1 = 56, 57
    vAO, vAW, vAY, vAR = 58, 59, 60, 61
    vS1, vS2, vS3 = 62, 63, 3
    A(f"""v_mov_b32 v{vS1}, v{vSELA2}
    v_mov_b32 v{vS2}, v{vSELB2}
    v_mov_b32 v{vS3}, v{vST}
    s_mul_i32 s50, s48, {256*1152}
    s_add_u32 s32, s12, s50
    s_addc_u32 s33, s13, 0
    s_and_b32 s33, s33, 0xffff
    s_mov_b32 s34, {256*1152}
    s_mov_b32 s35, 0x20000
    v_bfe_u32 v8, v1, 4, 1
    v_lshlrev_b32 v8, 7, v8
    v_lshrrev_b32 v9, 5, v1
    v_add_u32 v8, v8, v9
    v_bfe_u32 v9, v1, 3, 1
    v_lshl_add_u32 v8, v9, 4, v8
    s_lshl_b32 s50, s61, 5
    v_add_u32 v8, s50, v8
    v_mul_u32_u24 v{vOW}, 1152, v8
    v_and_b32 v9, 7, v1
    v_lshl_add_u32 v{vOW}, v9, 4, v{vOW}
    s_mul_i32 s52, s61, {24*1024}""")
    for k in range(72):
        rg, cb = divmod(k, 9)
        u, t = rg >> 2, rg & 3
        if k >= cfg.WO_DEPTH:
            A(f"s_waitcnt vmcnt({cfg.WO_DEPTH - 1})")
        A(f"s_mov_b32 s50, {(8*u + 2*t) * 1152 + cb * 128}")
        if k < NWS:
            A(f"buffer_load_dwordx4 {q(WS(k))}, v{vOW}, s[32:35], s50 offen{wf}")
        else:
            A(f"s_add_u32 m0, s52, {L_WO + (k - NWS) * 1024}\ns_nop 0\nbuffer_load_dwordx4 v{vOW}, s[32:35], s50 offen{wf} lds")
    A(f"""v_bfe_u32 v8, v1, 2, 2
    v_lshlrev_b32 v{vAO}, 6, v8
    v_lshrrev_b32 v8, 4, v1
    v_lshl_add_u32 v{vAO}, v8, 4, v{vAO}
    v_and_b32 v9, 1, v1
    v_lshl_add_u32 v{vAO}, v9, 3, v{vAO}
    s_lshl_b32 s50, s61, 8
    s_add_u32 s50, s50, {L_O}
    v_add_u32 v{vAO}, s50, v{vAO}
    v_lshlrev_b32 v{vAW}, 4, v1
    v_add_u32 v{vAW}, s52, v{vAW}
    v_and_b32 v9, 15, v1
    v_lshlrev_b32 v{vAY}, 5, v9
    v_lshl_add_u32 v{vAY}, v8, 3, v{vAY}
    s_mul_i32 s50, s61, 2560
    s_add_u32 s50, s50, {L_Y}
    v_add_u32 v{vAY}, s50, v{vAY}
    v_add_u32 v{vAR}, {L_Y}, v{vS3}""")
    for r in range(OB0, OB0 + 8):
        A(f"v_mov_b32 v{r}, 0")
    A("s_waitcnt vmcnt(0) lgkmcnt(0)")
    ts(2)
    A("s_setprio 3\ns_barrier\ns_barrier")
    ts(3)
    for w in range(4):
        A(f"ds_read_b64 v[{48+2*w}:{49+2*w}], v{vAO} offset:{1024*w}")
    A(f"""s_waitcnt lgkmcnt(2)
    v_pk_add_f32 v[48:49], v[48:49], v[50:51]
    s_waitcnt lgkmcnt(0)
    v_pk_add_f32 v[52:53], v[52:53], v[54:55]
    v_pk_add_f32 v[48:49], v[48:49], v[52:53]
    v_cvt_pk_bf16_f32 v48, v48, v49
    v_perm_b32 v{vOP0}, v48, v48, v{vS1}
    v_perm_b32 v{vOP1}, v48, v48, v{vS2}
    s_nop 0""")
    build(OB0, vOP0, 0)
    A("s_nop 1")
    for k in range(72):
        rg, cb = divmod(k, 9)
        ob = OB1 if rg & 1 else OB0
        slot = k if k < NWS else k - NWS
        if k == NWS:
            A("s_waitcnt lgkmcnt(0)")
        A(f"v_mfma_f32_16x16x32_bf16 {q(YACC+4*cb)}, {q(ob)}, {q(WS(slot))}, {'0' if rg == 0 else q(YACC+4*cb)}")
        if 1 <= k <= 72 - NWS:
            A(f"ds_read_b128 {q(WS(k-1))}, v{vAW} offset:{L_WO + (k-1)*1024}")
        if 1 <= cb <= 4 and rg < 7:
            nrg = rg + 1
            r = cb - 1
            A(f"v_mov_b32_dpp v{(OB1 if nrg & 1 else OB0)+r}, v{vOP1 if nrg >> 2 else vOP0} {ror(r - (nrg & 3))} row_mask:0xf bank_mask:{hex(1 << r)}")
    Y = lambda p: WS(30) + 2 * p
    for p in range(4):
        d = YACC + 4 * (2 * p)
        A(f"v_add_f32_dpp v{Y(p)}, v{d+1}, v{d} row_ror:8 row_mask:0xf bank_mask:0x3")
        A(f"v_add_f32_dpp v{Y(p)+1}, v{d+3}, v{d+2} row_ror:8 row_mask:0xf bank_mask:0x3")
    for p in range(4):
        d = YACC + 4 * (2 * p + 1)
        A(f"v_add_f32_dpp v{Y(p)}, v{d}, v{d+1} row_ror:8 row_mask:0xf bank_mask:0xc")
        A(f"v_add_f32_dpp v{Y(p)+1}, v{d+2}, v{d+3} row_ror:8 row_mask:0xf bank_mask:0xc")
        A(f"ds_write_b64 v{vAY}, v[{Y(p)}:{Y(p)+1}] offset:{512*p}")
    d = YACC + 32
    A(f"v_add_f32_dpp v{Y(4)}, v{d+1}, v{d} row_ror:8 row_mask:0xf bank_mask:0xf")
    A(f"v_add_f32_dpp v{Y(4)+1}, v{d+3}, v{d+2} row_ror:8 row_mask:0xf bank_mask:0xf")
    A(f"ds_write_b64 v{vAY}, v[{Y(4)}:{Y(4)+1}] offset:2048")
    A("s_mov_b32 exec_hi, 15\ns_waitcnt lgkmcnt(0)")
    ts(4)
    A("s_barrier")
    for w in range(4):
        A(f"ds_read_b128 {q(12+4*w)}, v{vAR} offset:{2560*w}")
    A(f"""s_waitcnt lgkmcnt(2)
    v_pk_add_f32 v[12:13], v[12:13], v[16:17]
    v_pk_add_f32 v[14:15], v[14:15], v[18:19]
    s_waitcnt lgkmcnt(0)
    v_pk_add_f32 v[20:21], v[20:21], v[24:25]
    v_pk_add_f32 v[22:23], v[22:23], v[26:27]
    v_pk_add_f32 v[12:13], v[12:13], v[20:21]
    v_pk_add_f32 v[14:15], v[14:15], v[22:23]
    v_min_u32 v12, -2, v12
    v_min_u32 v13, -2, v13
    v_min_u32 v14, -2, v14
    v_min_u32 v15, -2, v15
    buffer_store_dwordx4 v[12:15], v{vS3}, s[40:43], 0 offen sc1""")
    ts(5)
    ts_store()
    A("L_end:\ns_endpgm")
    return "\n".join(o)

HEADER = open("standalone__gqa_block_cached__sampling.s.ref").read().split("; Override launch")[0]

def full(cfg):
    body = gen(cfg)
    return f"""{HEADER}; @launch grid=(256,1,1) block=(512,1,1) lds={LDS_BYTES}
.amdgcn_target "amdgcn-amd-amdhsa--gfx950"
.text
.globl {cfg.kname}
.p2align 8
.type {cfg.kname},@function
{body}
.section .rodata,"a"
.p2align 6
.amdhsa_kernel {cfg.kname}
  .amdhsa_next_free_vgpr 256
  .amdhsa_next_free_sgpr 96
  .amdhsa_accum_offset 256
  .amdhsa_group_segment_fixed_size 0
  .amdhsa_kernarg_size 64
  .amdhsa_user_sgpr_count 2
  .amdhsa_user_sgpr_kernarg_segment_ptr 1
  .amdhsa_system_sgpr_workgroup_id_x 1
.end_amdhsa_kernel
"""

if __name__ == "__main__":
    cfg = Cfg()
    out = sys.argv[1]
    for kv in sys.argv[2:]:
        k, v = kv.split("=")
        cur = getattr(cfg, k)
        setattr(cfg, k, type(cur)(int(v)) if isinstance(cur, (int, bool)) else v)
    open(out, "w").write(full(cfg))
```

```python
import sys

NAME = "standalone__gqa_block_cached__sampling"

class Cfg:
    N = 5
    P = 56
    LV = 7
    LK = 7
    NP = 5
    NK = 5
    NV = 5
    WO_DEPTH = 2
    WFLAG = "nt"
    TS = False
    MAP = 0
    NOK = 0
    QPOLLS = 64
    QSLEEP = 4
    QBAR = 0
    QST = 'sc1'
    QLD = 'sc1'
    YST = 'sc1'
    YLD = 'sc1'
    QSLEEP0 = 8
    kname = NAME + "_kernel"

L_WO = 0
L_SC = 98304
L_Y = L_SC + 32768
L_O = L_Y + 10240
L_Q = L_O + 4096
L_ML = L_Q + 512
L_TK = L_ML + 64
L_END = L_TK + 16
LDS_BYTES = L_END

WS_Q = 0x100000
WS_E = 0x200000
WS_F = 0x1000000
YSLOT = 3072
K_TAG = 0x9e3779b9
C_SCALE = 0x3DB504F3
C_LOG2E = 0x3FB8AA3B

def ror(k):
    k = (4 * k) % 16
    return "quad_perm:[0,1,2,3]" if k == 0 else f"row_ror:{k}"

def q(b):
    return f"v[{b}:{b+3}]"

def gen(cfg):
    o = []
    def A(s):
        for line in s.split("\n"):
            o.append("    " + line.strip() if not line.strip().endswith(":") else line.strip())
    K = cfg.kname
    N, P, LV, LK = cfg.NP, cfg.P, cfg.LV, cfg.LK
    assert cfg.NK <= LK <= 7 and cfg.NV <= LV <= 7 and LV >= LK
    wf = (" " + cfg.WFLAG) if cfg.WFLAG else ""
    nts = [0]
    def ts(idx):
        if cfg.TS:
            A(f"s_memrealtime s[{64+2*idx}:{65+2*idx}]\ns_waitcnt lgkmcnt(0)")
    def ts_store():
        if cfg.TS:
            A(f"""s_mov_b64 exec, 1
            s_lshl_b32 s60, s2, 3
            s_add_u32 s60, s60, s3
            s_lshl_b32 s60, s60, 6
            s_add_u32 s60, s60, 0x400000
            v_mov_b32 v1, s60""")
            for i in range(12):
                A(f"v_mov_b32 v2, s{64+2*i}\nglobal_store_dword v1, v2, s[18:19] offset:{4*i}\ns_nop 1")
            A("s_getreg_b32 s60, hwreg(HW_REG_XCC_ID)\nv_mov_b32 v2, s60\nglobal_store_dword v1, v2, s[18:19] offset:48")

    def build(dst, src, t):
        for r in range(4):
            A(f"v_mov_b32_dpp v{dst+r}, v{src} {ror(r - t)} row_mask:0xf bank_mask:{hex(1 << r)}")

    A(f"{K}:")
    A(f"s_cmp_ge_u32 s2, 256\ns_cbranch_scc1 L_end")
    A("s_load_dwordx16 s[4:19], s[0:1], 0")
    if cfg.TS:
        for i in range(12):
            A(f"s_mov_b64 s[{64+2*i}:{65+2*i}], 0")
        A("s_memrealtime s[64:65]")
    A("""v_lshrrev_b32 v2, 6, v0
    v_and_b32 v1, 63, v0
    v_readfirstlane_b32 s3, v2
    """)
    if cfg.MAP == 0:
        A("s_and_b32 s48, s2, 15\ns_lshr_b32 s49, s2, 4")
    elif cfg.MAP == 1:
        A("s_and_b32 s48, s2, 7\ns_lshl_b32 s48, s48, 1\ns_bfe_u32 s49, s2, 0x10003\ns_add_u32 s48, s48, s49\ns_lshr_b32 s49, s2, 4")
    elif cfg.MAP == 2:
        A("s_and_b32 s48, s2, 3\ns_lshl_b32 s48, s48, 2\ns_bfe_u32 s49, s2, 0x20003\ns_add_u32 s48, s48, s49\ns_lshr_b32 s49, s2, 5\ns_lshl_b32 s49, s49, 1\ns_bfe_u32 s50, s2, 0x10002\ns_add_u32 s49, s49, s50")
    elif cfg.MAP == 3:
        A("s_bfe_u32 s48, s2, 0x40003\ns_lshr_b32 s49, s2, 7\ns_lshl_b32 s49, s49, 3\ns_and_b32 s50, s2, 7\ns_add_u32 s49, s49, s50")
    A("""s_lshl_b32 s62, s49, 4
    s_add_u32 s62, s62, s48
    s_cmp_ge_u32 s3, 4
    s_cbranch_scc1 L_aux""")

    SLOT = lambda n: 32 + 4 * n
    vOK, vOV, vSCA, vM, vL, vSA, vSB, vT, vTA, vTB, vSELA, vSELB, vPA, vPB = range(2, 16)
    vQ, vD0, vD1 = 16, 20, 24
    vNM, vTR, vX0, vX1 = 28, 29, 30, 31
    A("s_setprio 3")
    A(f"""v_and_b32 v{vOK}, 3, v1
    v_lshlrev_b32 v{vOK}, 4, v{vOK}
    v_lshrrev_b32 v{vT}, 4, v1
    v_lshl_add_u32 v{vOK}, v{vT}, 6, v{vOK}
    v_bfe_u32 v{vT}, v1, 2, 2
    v_lshl_add_u32 v{vOK}, v{vT}, 8, v{vOK}
    s_lshl_b32 s50, s3, 12
    v_add_u32 v{vOK}, s50, v{vOK}
    s_lshl_b32 s51, s62, 20
    s_mov_b32 s52, 0
    s_mov_b32 s22, 0x100000
    s_mov_b32 s23, 0x20000
    s_mov_b32 s53, 0
    s_waitcnt lgkmcnt(0)
    s_add_u32 s20, s6, s51
    s_addc_u32 s21, s7, s52
    s_and_b32 s21, s21, 0xffff""")

    def issue(n, slot, wait=True, depth=None):
        if depth is None:
            depth = cfg.NP if n < P else (cfg.NK if n < 256 else cfg.NV)
        if wait:
            A(f"s_waitcnt vmcnt({depth-1})")
        isv = n >= 256
        so = "s54" if isv else "s53"
        A(f"buffer_load_dwordx4 {q(SLOT(slot))}, v{vOV if isv else vOK}, {'s[24:27]' if isv else 's[20:23]'}, {so} offen offset:{(n & 3) * 1024} nt")
        if (n & 3) == 3:
            A(f"s_add_u32 {so}, {so}, 0x4000")

    if cfg.NOK:
        A("s_barrier")
    for n in range(P):
        issue(n, n, wait=(n >= N))
        if cfg.QBAR and n == cfg.QBAR:
            A("s_barrier")
        if n == N:
            ts(8)
        if n == N + 20:
            ts(9)
        if n == N - 1:
            A(f"""s_add_u32 s24, s8, s51
            s_addc_u32 s25, s9, s52
            s_and_b32 s25, s25, 0xffff
            s_mov_b32 s26, 0x100000
            s_mov_b32 s27, 0x20000
            s_mov_b32 s54, 0
            s_lshl_b32 s55, s49, 2
            s_add_u32 s55, s55, {WS_E}
            s_load_dword s59, s[18:19], s55
            v_lshlrev_b32 v{vOV}, 4, v1
            v_add_u32 v{vOV}, s50, v{vOV}
            s_lshl_b32 s55, s3, 13
            s_add_u32 s55, s55, {L_SC}
            v_lshlrev_b32 v{vSCA}, 2, v1
            v_add_u32 v{vSCA}, s55, v{vSCA}
            v_mov_b32 v{vM}, 0xff800000
            s_mov_b32 s56, {hex(C_SCALE)}
            s_mov_b32 s57, {hex(C_LOG2E)}
            v_and_b32 v{vT}, 2, v1
            v_cmp_eq_u32 vcc, 0, v{vT}
            v_mov_b32 v{vTA}, 0x01000c0c
            v_mov_b32 v{vTB}, 0x0c0c0100
            v_cndmask_b32 v{vSELA}, v{vTA}, v{vTB}, vcc
            v_mov_b32 v{vTA}, 0x03020c0c
            v_mov_b32 v{vTB}, 0x0c0c0302
            v_cndmask_b32 v{vSELB}, v{vTA}, v{vTB}, vcc
            v_and_b32 v{vX0}, 1, v1
            v_lshlrev_b32 v{vX0}, 8, v{vX0}
            v_lshrrev_b32 v{vT}, 2, v1
            v_lshl_add_u32 v{vX0}, v{vT}, 4, v{vX0}
            v_add_u32 v{vX0}, {L_Q}, v{vX0}""")
    ts(1)
    if not cfg.NOK:
        A("s_barrier")
    A(f"ds_read_b128 {q(vQ)}, v{vX0}")
    A("s_waitcnt lgkmcnt(0)")
    ts(2)

    def chain_ops(c, D, tmp):
        t = c & 3
        S = vSA if (c & 4) == 0 else vSB
        rs = [r for r in range(4) if r != t]
        return [
            f"v_add_f32_dpp v{tmp}, v{D+rs[0]}, v{D+t} {ror(t - rs[0])} row_mask:0xf bank_mask:0xf",
            f"v_add_f32_dpp v{tmp}, v{D+rs[1]}, v{tmp} {ror(t - rs[1])} row_mask:0xf bank_mask:0xf",
            f"v_add_f32_dpp v{S}, v{D+rs[2]}, v{tmp} {ror(t - rs[2])} row_mask:0xf bank_mask:{hex(1 << t)}",
        ]

    def finalize(off=None):
        A(f"""v_cvt_pk_bf16_f32 v{vT}, v{vSA}, v{vSB}
        v_lshlrev_b32 v{vTA}, 16, v{vT}
        v_and_b32 v{vTB}, 0xffff0000, v{vT}
        v_mul_f32 v{vTA}, s56, v{vTA}
        v_mul_f32 v{vTB}, s56, v{vTB}
        v_max3_f32 v{vM}, v{vM}, v{vTA}, v{vTB}
        v_cvt_pk_bf16_f32 v{vT}, v{vTA}, v{vTB}
        ds_write_b32 v{vSCA}, v{vT}
        v_add_u32 v{vSCA}, 0x100, v{vSCA}""")

    Dof = lambda n: vD0 if n == 0 else (vD1 if n == P - 1 else SLOT(n - 1))
    tmps = [vPA, vPB, vX1]
    ring_at = {}
    for k in range(LK):
        ring_at[(P - 8) * (k + 1) // LK] = k
    for s in range(P + 3):
        if s in ring_at:
            k = ring_at[s]
            assert s >= k + 1 + 4 + 1
            issue(P + k, k)
        if P - 8 <= s < P:
            A(f"s_waitcnt vmcnt({P - 1 - s + LK})")
        if s < P:
            A(f"v_mfma_f32_16x16x32_bf16 {q(Dof(s))}, {q(SLOT(s))}, {q(vQ)}, 0")
        else:
            A("s_nop 0")
        for (lag, opi) in ((4, 2), (3, 1), (2, 0)):
            c = s - lag
            if 0 <= c < P - 1:
                A(chain_ops(c, Dof(c), tmps[c % 3])[opi])
            else:
                A("s_nop 0")
        c = s - 4
        if c >= 0 and (c & 7) == 7 and c < P - 1:
            finalize()
    ts(3)

    def kstep(c, nissue):
        issue(nissue, nissue % 8)
        A(f"v_mfma_f32_16x16x32_bf16 {q(vD1 if c & 1 else vD0)}, {q(SLOT(c % 8))}, {q(vQ)}, 0")
        pc = (c - 1) % 8
        ops = chain_ops(pc, vD1 if pc & 1 else vD0, vX1)
        A("s_nop 1")
        A(ops[0]); A("s_nop 1"); A(ops[1]); A("s_nop 1"); A(ops[2])
        if pc == 7:
            finalize()

    nkit = (256 - P) // 8
    A(f"s_mov_b32 s58, {nkit - 1}")
    A("L_kloop:")
    for c in range(8):
        kstep(c, P + c + LK)
    A("s_sub_u32 s58, s58, 1\ns_cmp_lg_u32 s58, 0\ns_cbranch_scc1 L_kloop")
    for c in range(248, 256):
        kstep(c, c + LK)
    A("s_nop 7")
    ops = chain_ops(7, vD1, vX1)
    A(ops[0]); A("s_nop 1"); A(ops[1]); A("s_nop 1"); A(ops[2])
    finalize()
    ts(4)
    A(f"v_subrev_u32 v{vSCA}, 0x2000, v{vSCA}")
    A(f"ds_read_b32 v{vTR}, v{vSCA}")
    extra = list(range(256 + LK, 256 + LV))
    if extra:
        issue(extra[0], extra[0] % 8)
    def xreduce(v, op, tmp):
        A(f"""s_nop 1
        {op}_dpp v{v}, v{v}, v{v} row_ror:4 row_mask:0xf bank_mask:0xf
        s_nop 1
        {op}_dpp v{v}, v{v}, v{v} row_ror:8 row_mask:0xf bank_mask:0xf
        v_mov_b32 v{tmp}, v{v}
        s_nop 1
        v_permlane16_swap_b32 v{v}, v{tmp}
        {op} v{v}, v{v}, v{tmp}
        v_mov_b32 v{tmp}, v{v}
        s_nop 1
        v_permlane32_swap_b32 v{v}, v{tmp}
        {op} v{v}, v{v}, v{tmp}""")
    xreduce(vM, "v_max_f32", vT)
    A(f"""v_cvt_pk_bf16_f32 v{vM}, v{vM}, v{vM}
    v_lshlrev_b32 v{vM}, 16, v{vM}
    v_mul_f32 v{vM}, s57, v{vM}
    v_sub_f32 v{vNM}, 0, v{vM}
    v_mov_b32 v{vL}, 0""")
    for r in range(16, 28):
        A(f"v_mov_b32 v{r}, 0")
    vO = vQ
    def expblock():
        A(f"""s_waitcnt lgkmcnt(0)
        v_lshlrev_b32 v{vTA}, 16, v{vTR}
        v_and_b32 v{vTB}, 0xffff0000, v{vTR}
        v_fma_f32 v{vTA}, v{vTA}, s57, v{vNM}
        v_fma_f32 v{vTB}, v{vTB}, s57, v{vNM}
        v_exp_f32 v{vTA}, v{vTA}
        v_exp_f32 v{vTB}, v{vTB}
        v_add_f32 v{vL}, v{vL}, v{vTA}
        s_nop 0
        v_add_f32 v{vL}, v{vL}, v{vTB}
        v_cvt_pk_bf16_f32 v{vT}, v{vTA}, v{vTB}""")
    expblock()
    A(f"v_perm_b32 v{vPA}, v{vT}, v{vT}, v{vSELA}\nv_perm_b32 v{vPB}, v{vT}, v{vT}, v{vSELB}")
    for n in extra[1:]:
        issue(n, n % 8)
    A("s_nop 1")

    def vstep(c, missue, waitn=None):
        pb = vD1 if c & 1 else vD0
        build(pb, vPA if (c & 4) == 0 else vPB, c & 3)
        if missue is not None:
            issue(256 + missue, missue % 8)
        else:
            A(f"s_waitcnt vmcnt({waitn})\ns_nop 0")
        A(f"v_mfma_f32_16x16x32_bf16 {q(vO)}, {q(SLOT(c % 8))}, {q(pb)}, {q(vO)}")

    A("s_mov_b32 s58, 31")
    A("L_vloop:")
    for c in range(8):
        vstep(c, c + LV)
        if c == 0:
            A(f"v_add_u32 v{vSCA}, 0x100, v{vSCA}\nds_read_b32 v{vTR}, v{vSCA}")
        if c == 2:
            expblock()
        if c == 4:
            A(f"v_perm_b32 v{vPA}, v{vT}, v{vT}, v{vSELA}")
        if c == 7:
            A(f"v_perm_b32 v{vPB}, v{vT}, v{vT}, v{vSELB}")
    A("s_sub_u32 s58, s58, 1\ns_cmp_lg_u32 s58, 0\ns_cbranch_scc1 L_vloop")
    c = 248
    while c + LV < 256:
        vstep(c, c + LV)
        c += 1
    ts(5)
    xreduce(vL, "v_add_f32", vT)
    A(f"""v_and_b32 v{vX0}, 1, v1
    v_lshlrev_b32 v{vX0}, 5, v{vX0}
    v_add_u32 v{vX0}, {L_ML}, v{vX0}
    s_lshl_b32 s55, s3, 3
    v_add_u32 v{vX1}, s55, v{vX0}
    v_mov_b32 v{vTA}, v{vM}
    v_mov_b32 v{vTB}, v{vL}
    ds_write_b64 v{vX1}, v[{vTA}:{vTB}]
    s_waitcnt lgkmcnt(0)
    s_barrier""")
    m0 = SLOT(9)
    A(f"""ds_read_b128 {q(m0)}, v{vX0}
    ds_read_b128 {q(m0+4)}, v{vX0} offset:16
    s_lshl_b32 s55, s3, 10
    s_add_u32 s55, s55, {L_O}
    v_lshlrev_b32 v{vX1}, 4, v1
    v_add_u32 v{vX1}, s55, v{vX1}
    s_waitcnt lgkmcnt(0)
    v_max3_f32 v{vT}, v{m0}, v{m0+2}, v{m0+4}
    v_max_f32 v{vT}, v{vT}, v{m0+6}
    v_sub_f32 v{m0}, v{m0}, v{vT}
    v_sub_f32 v{m0+2}, v{m0+2}, v{vT}
    v_sub_f32 v{m0+4}, v{m0+4}, v{vT}
    v_sub_f32 v{m0+6}, v{m0+6}, v{vT}
    v_sub_f32 v{vTA}, v{vM}, v{vT}
    v_exp_f32 v{m0}, v{m0}
    v_exp_f32 v{m0+2}, v{m0+2}
    v_exp_f32 v{m0+4}, v{m0+4}
    v_exp_f32 v{m0+6}, v{m0+6}
    v_exp_f32 v{vTA}, v{vTA}
    v_mul_f32 v{vTB}, v{m0}, v{m0+1}
    v_fmac_f32 v{vTB}, v{m0+2}, v{m0+3}
    v_fmac_f32 v{vTB}, v{m0+4}, v{m0+5}
    v_fmac_f32 v{vTB}, v{m0+6}, v{m0+7}
    v_rcp_f32 v{vTB}, v{vTB}
    s_nop 0
    v_mul_f32 v{vTA}, v{vTA}, v{vTB}""")
    while c < 256:
        vstep(c, None, 255 - c)
        c += 1
    A("s_nop 7")
    for r in range(4):
        A(f"v_mul_f32 v{vO+r}, v{vO+r}, v{vTA}")
    A(f"""ds_write_b128 v{vX1}, {q(vO)}
    s_waitcnt lgkmcnt(0)""")
    ts(6)
    A("s_barrier")
    A(f"""s_cmp_lg_u32 s48, s49
    s_cbranch_scc1 L_sdone
    s_cmp_eq_u32 s3, 3
    s_cbranch_scc1 L_sdone
    s_add_u32 s59, s59, {K_TAG}
    s_mul_i32 s50, s49, {16*YSLOT}
    s_add_u32 s40, s18, s50
    s_addc_u32 s41, s19, 0
    s_and_b32 s41, s41, 0xffff
    s_mov_b32 s42, {16*YSLOT}
    s_mov_b32 s43, 0x20000
    s_mul_i32 s50, s49, 1152
    s_add_u32 s44, s14, s50
    s_addc_u32 s45, s15, 0
    s_and_b32 s45, s45, 0xffff
    s_mov_b32 s46, 1152
    s_mov_b32 s47, 0x20000
    v_lshlrev_b32 v2, 4, v0
    v_lshlrev_b32 v3, 2, v0
    v_lshlrev_b32 v6, 1, v0
    s_mov_b32 s58, 0x100000
    s_barrier
    L_poll:""")
    R = 32
    for k in range(16):
        A(f"s_mov_b32 s50, {k*YSLOT}\nbuffer_load_dwordx4 {q(R+4*k)}, v2, s[40:43], s50 offen {cfg.YLD}")
    A("s_sub_u32 s58, s58, 1")
    for k in range(0, 16, 2):
        A(f"s_waitcnt vmcnt({14 - k})")
        a_, b_ = R + 4 * k, R + 4 * k + 4
        if k == 0:
            A(f"v_min_u32 v4, v{a_+3}, v{b_+3}\nv_max_u32 v5, v{a_+3}, v{b_+3}")
        else:
            A(f"v_min3_u32 v4, v4, v{a_+3}, v{b_+3}\nv_max3_u32 v5, v5, v{a_+3}, v{b_+3}")
        A(f"v_pk_add_f32 v[{a_}:{a_+1}], v[{a_}:{a_+1}], v[{b_}:{b_+1}]\nv_add_f32 v{a_+2}, v{a_+2}, v{b_+2}")
        if k:
            A(f"v_pk_add_f32 v[{R}:{R+1}], v[{R}:{R+1}], v[{a_}:{a_+1}]\nv_add_f32 v{R+2}, v{R+2}, v{a_+2}")
    A(f"""v_xor_b32 v4, s59, v4
    v_xor_b32 v5, s59, v5
    v_or_b32 v4, v4, v5
    v_cmp_ne_u32 vcc, 0, v4
    v_cvt_pk_bf16_f32 v4, v{R}, v{R+1}
    v_cvt_pk_bf16_f32 v5, v{R+2}, v{R+2}
    s_cbranch_scc1 L_pollout
    s_nop 2
    s_cbranch_vccnz L_poll
    L_pollout:
    buffer_store_dword v4, v3, s[44:47], 0 offen
    buffer_store_short v5, v6, s[44:47], 0 offen offset:768
    s_cmp_lg_u32 s3, 0
    s_cbranch_scc1 L_sdone
    s_lshl_b32 s50, s49, 2
    s_add_u32 s50, s50, {WS_E}
    v_mov_b32 v7, s50
    v_mov_b32 v8, s59
    s_mov_b64 exec, 1
    global_store_dword v7, v8, s[18:19] sc1""")
    ts(7)
    A("L_sdone:")
    ts_store()
    A("s_endpgm")

    A("L_aux:")
    A("s_sub_u32 s61, s3, 4")
    vOW, vA, vB, vC = 2, 3, 8, 9
    vSELA2, vSELB2, vST = 45, 46, 47
    A("s_cmp_eq_u32 s61, 0\ns_cbranch_scc1 L_qwave\ns_waitcnt lgkmcnt(0)\n" + ("s_barrier\n" if cfg.QBAR else "") + "s_branch L_qdone")
    XR, WR, WP, QA = 48, 72, 148, 224
    vXO, vWO, vPO = 10, 11, 12
    A(f"""L_qwave:
    s_setprio 2
    v_and_b32 v{vA}, 15, v1
    v_lshrrev_b32 v{vB}, 4, v1
    v_mul_u32_u24 v{vXO}, 1152, v{vA}
    v_mad_u32_u24 v{vXO}, v{vB}, 36, v{vXO}
    v_mad_u32_u24 v{vXO}, v{vB}, 36, v{vXO}
    v_mul_u32_u24 v{vWO}, {36*8192}, v{vB}
    v_lshl_add_u32 v{vWO}, v{vA}, 3, v{vWO}
    v_lshlrev_b32 v{vPO}, 14, v{vB}
    v_lshl_add_u32 v{vPO}, v{vA}, 4, v{vPO}
    s_lshl_b32 s51, s48, 9
    s_mov_b32 s38, {16*1152}
    s_mov_b32 s39, 0x20000
    s_sub_u32 s30, {576*8192}, s51
    s_mov_b32 s31, 0x20000
    s_lshl_b32 s52, s48, 16
    s_add_u32 s52, s52, {WS_Q}
    s_mov_b32 s46, 0x10000
    s_mov_b32 s47, 0x20000
    s_mov_b32 s53, s49
    s_mov_b32 s54, 0
    s_mov_b32 s56, 0x05040100
    s_mov_b32 s57, 0x07060302
    s_waitcnt lgkmcnt(0)
    s_mov_b32 s36, s4
    s_and_b32 s37, s5, 0xffff
    s_add_u32 s28, s10, s51
    s_addc_u32 s29, s11, 0
    s_and_b32 s29, s29, 0xffff
    s_add_u32 s44, s18, s52
    s_addc_u32 s45, s19, 0
    s_and_b32 s45, s45, 0xffff
    s_lshl_b32 s50, s49, 2
    s_add_u32 s50, s50, {WS_E}
    s_load_dword s60, s[18:19], s50
    v_mov_b32 v15, 0xff
    L_produce:
    s_lshr_b32 s58, s53, 2
    s_and_b32 s59, s53, 3
    s_mul_i32 s50, s59, {144*8192}
    s_lshl_b32 s55, s58, 7
    s_add_u32 s50, s50, s55
    s_mul_i32 s55, s59, 288""")
    for n in range(36):
        A(f"buffer_load_dwordx2 v[{WR+2*n}:{WR+2*n+1}], v{vWO}, s[28:31], s50 offen{wf}")
        if n < 35:
            A("s_add_u32 s50, s50, 0x2000")
        if n == 7:
            for i in range(4):
                A(f"buffer_load_dwordx4 {q(XR+4*i)}, v{vXO}, s[36:39], s55 offen offset:{16*i}{wf}")
            A(f"buffer_load_dwordx2 v[{XR+16}:{XR+17}], v{vXO}, s[36:39], s55 offen offset:64{wf}")
    ts(6)
    A(f"v_and_b32 v13, 0x30, v1\nv_add_u32 v13, {WS_E}, v13\nglobal_load_dwordx4 v[16:19], v13, s[18:19]{wf}")
    A("s_lshl_b32 s50, s59, 10\ns_lshl_b32 s55, s58, 8\ns_add_u32 s50, s50, s55")
    for st in range(5):
        rows = 8 if st < 4 else 4
        last = 8 * st + rows - 1
        A(f"s_waitcnt vmcnt({36 - last if st < 4 else 0})")
        for c in range(4):
            for m in range(rows // 2):
                r0 = 8 * st + 2 * m
                A(f"v_perm_b32 v{WP + 18*c + 4*st + m}, v{WR + 2*(r0+1) + (c >> 1)}, v{WR + 2*r0 + (c >> 1)}, {'s57' if c & 1 else 's56'}")
        A("s_nop 1")
        for c in range(4):
            w = WP + 18 * c + 4 * st
            cin = "0" if st == 0 else q(QA + 4 * c)
            if st < 4:
                A(f"v_mfma_f32_16x16x32_bf16 {q(QA+4*c)}, {q(XR+4*st)}, {q(w)}, {cin}")
            else:
                A(f"v_mfma_f32_16x16x16_bf16 {q(QA+4*c)}, v[{XR+16}:{XR+17}], v[{w}:{w+1}], {cin}")
    A(f"""s_waitcnt lgkmcnt(0)
    s_add_u32 s27, s60, {K_TAG}
    s_lshr_b32 s24, s27, 8
    s_lshr_b32 s25, s27, 16
    s_lshr_b32 s26, s27, 24
    s_nop 3""")
    tagr = ["s27", "s24", "s25", "s26"]
    for r in range(4):
        for c in range(4):
            A(f"v_bfi_b32 v{QA+16+4*r+c}, v15, {tagr[c]}, v{QA+4*c+r}")
        A(f"buffer_store_dwordx4 {q(QA+16+4*r)}, v{vPO}, s[44:47], s50 offen {cfg.QST}")
        if r < 3:
            A("s_add_u32 s50, s50, 0x1000")
    ts(7)
    A(f"""s_cmp_eq_u32 s54, 0
    s_cbranch_scc1 L_first
    s_waitcnt vmcnt(0)
    s_add_u32 s53, s53, 1
    s_cmp_lt_u32 s53, 16
    s_cbranch_scc1 L_produce
    s_branch L_consume
    L_first:
    """)
    for rb in range(4):
        A(f"v_add_u32 v{20+4*rb}, {K_TAG}, v{16+rb}")
        for c in range(1, 4):
            A(f"v_lshrrev_b32 v{20+4*rb+c}, {8*c}, v{20+4*rb}")
    A(f"""
    {"s_barrier" if cfg.QBAR else f"s_sleep {cfg.QSLEEP0}"}
    L_consume:
    v_lshlrev_b32 v{vA}, 4, v1
    s_lshl_b32 s50, s49, 12
    s_mov_b32 s58, {cfg.QPOLLS}
    L_qpoll:""")
    for rb in range(4):
        A(f"buffer_load_dwordx4 {q(XR+4*rb)}, v{vA}, s[44:47], s50 offen offset:{1024*rb} {cfg.QLD}")
    A("s_waitcnt vmcnt(0)")
    for i in range(16):
        A(f"v_xor_b32 v{WR+i}, v{20+i}, v{XR+i}")
    A(f"v_or3_b32 v{WR}, v{WR}, v{WR+1}, v{WR+2}")
    for i in range(3, 15, 2):
        A(f"v_or3_b32 v{WR}, v{WR}, v{WR+i}, v{WR+i+1}")
    A(f"""v_or_b32 v{WR}, v{WR}, v{WR+15}
    v_and_b32 v{WR}, 0xff, v{WR}
    v_cmp_ne_u32 vcc, 0, v{WR}
    s_mov_b32 s55, 0x80
    s_nop 4
    s_cbranch_vccz L_qready
    s_cmp_lg_u32 s54, 0
    s_cbranch_scc1 L_qready
    s_sleep {cfg.QSLEEP}
    s_sub_u32 s58, s58, 1
    s_cbranch_scc0 L_qpoll
    s_mov_b32 s54, 1
    s_mov_b32 s53, 0
    s_lshl_b32 s52, s62, 16
    s_add_u32 s52, s52, {WS_F}
    s_add_u32 s44, s18, s52
    s_addc_u32 s45, s19, 0
    s_and_b32 s45, s45, 0xffff
    s_branch L_produce
    L_qready:""")
    ts(9)
    for i in range(16):
        A(f"v_bfi_b32 v{XR+i}, v15, s55, v{XR+i}")
    A(f"""v_lshlrev_b32 v{vB}, 3, v1
    v_add_u32 v{vB}, {L_Q}, v{vB}
    v_pk_add_f32 v[{XR}:{XR+1}], v[{XR}:{XR+1}], v[{XR+4}:{XR+5}]
    v_pk_add_f32 v[{XR+2}:{XR+3}], v[{XR+2}:{XR+3}], v[{XR+6}:{XR+7}]
    v_pk_add_f32 v[{XR+8}:{XR+9}], v[{XR+8}:{XR+9}], v[{XR+12}:{XR+13}]
    v_pk_add_f32 v[{XR+10}:{XR+11}], v[{XR+10}:{XR+11}], v[{XR+14}:{XR+15}]
    v_pk_add_f32 v[{XR}:{XR+1}], v[{XR}:{XR+1}], v[{XR+8}:{XR+9}]
    v_pk_add_f32 v[{XR+2}:{XR+3}], v[{XR+2}:{XR+3}], v[{XR+10}:{XR+11}]
    v_cvt_pk_bf16_f32 v{XR}, v{XR}, v{XR+1}
    v_cvt_pk_bf16_f32 v{XR+1}, v{XR+2}, v{XR+3}
    ds_write_b64 v{vB}, v[{XR}:{XR+1}]
    s_setprio 0
    L_qdone:""")
    A(f"""s_lshl_b32 s50, s49, 2
    s_add_u32 s50, s50, {WS_E}
    s_load_dword s60, s[18:19], s50
    s_mul_i32 s50, s62, {YSLOT}
    s_add_u32 s40, s18, s50
    s_addc_u32 s41, s19, 0
    s_and_b32 s41, s41, 0xffff
    s_mov_b32 s42, {YSLOT}
    s_mov_b32 s43, 0x20000
    s_mul_i32 s50, s61, 48
    v_add_u32 v{vST}, s50, v1
    v_and_b32 v{vA}, 2, v1
    v_cmp_eq_u32 vcc, 0, v{vA}
    v_mov_b32 v{vB}, 0x01000c0c
    v_mov_b32 v{vC}, 0x0c0c0100
    v_cndmask_b32 v{vSELA2}, v{vB}, v{vC}, vcc
    v_mov_b32 v{vB}, 0x03020c0c
    v_mov_b32 v{vC}, 0x0c0c0302
    v_cndmask_b32 v{vSELB2}, v{vB}, v{vC}, vcc
    s_waitcnt lgkmcnt(0)""")
    ts(1)
    A("s_barrier")
    WS = lambda n: 64 + 4 * n
    NWS = 48
    YACC = 12
    OB0, OB1 = 4, 8
    vOP0, vOP1 = 56, 57
    vAO, vAW, vAY, vAR = 58, 59, 60, 61
    vS1, vS2, vS3 = 62, 63, 3
    A(f"""v_mov_b32 v{vS1}, v{vSELA2}
    v_mov_b32 v{vS2}, v{vSELB2}
    v_lshlrev_b32 v{vS3}, 4, v{vST}
    s_add_u32 s60, s60, {K_TAG}
    s_mul_i32 s50, s48, {256*1152}
    s_add_u32 s32, s12, s50
    s_addc_u32 s33, s13, 0
    s_and_b32 s33, s33, 0xffff
    s_mov_b32 s34, {256*1152}
    s_mov_b32 s35, 0x20000
    v_bfe_u32 v8, v1, 4, 1
    v_lshlrev_b32 v8, 7, v8
    v_lshrrev_b32 v9, 5, v1
    v_add_u32 v8, v8, v9
    v_bfe_u32 v9, v1, 3, 1
    v_lshl_add_u32 v8, v9, 4, v8
    s_lshl_b32 s50, s61, 5
    v_add_u32 v8, s50, v8
    v_mul_u32_u24 v{vOW}, 1152, v8
    v_and_b32 v9, 7, v1
    v_lshl_add_u32 v{vOW}, v9, 4, v{vOW}
    s_mul_i32 s52, s61, {24*1024}""")
    for k in range(72):
        rg, cb = divmod(k, 9)
        u, t = rg >> 2, rg & 3
        if k >= cfg.WO_DEPTH:
            A(f"s_waitcnt vmcnt({cfg.WO_DEPTH - 1})")
        A(f"s_mov_b32 s50, {(8*u + 2*t) * 1152 + cb * 128}")
        if k < NWS:
            A(f"buffer_load_dwordx4 {q(WS(k))}, v{vOW}, s[32:35], s50 offen{wf}")
        else:
            A(f"s_add_u32 m0, s52, {L_WO + (k - NWS) * 1024}\ns_nop 0\nbuffer_load_dwordx4 v{vOW}, s[32:35], s50 offen{wf} lds")
    A(f"""v_bfe_u32 v8, v1, 2, 2
    v_lshlrev_b32 v{vAO}, 6, v8
    v_lshrrev_b32 v8, 4, v1
    v_lshl_add_u32 v{vAO}, v8, 4, v{vAO}
    v_and_b32 v9, 1, v1
    v_lshl_add_u32 v{vAO}, v9, 3, v{vAO}
    s_lshl_b32 s50, s61, 8
    s_add_u32 s50, s50, {L_O}
    v_add_u32 v{vAO}, s50, v{vAO}
    v_lshlrev_b32 v{vAW}, 4, v1
    v_add_u32 v{vAW}, s52, v{vAW}
    v_and_b32 v9, 15, v1
    v_lshlrev_b32 v{vAY}, 5, v9
    v_lshl_add_u32 v{vAY}, v8, 3, v{vAY}
    s_mul_i32 s50, s61, 2560
    s_add_u32 s50, s50, {L_Y}
    v_add_u32 v{vAY}, s50, v{vAY}
    v_lshrrev_b32 v{vAR}, 1, v{vS3}
    v_add_u32 v{vAR}, {L_Y}, v{vAR}
    v_lshrrev_b32 v0, 2, v{vS3}
    v_add_u32 v0, {L_Y + 1536}, v0""")
    for r in range(OB0, OB0 + 8):
        A(f"v_mov_b32 v{r}, 0")
    A("s_waitcnt vmcnt(0) lgkmcnt(0)")
    ts(2)
    A("s_setprio 3\ns_barrier\ns_barrier")
    ts(3)
    for w in range(4):
        A(f"ds_read_b64 v[{48+2*w}:{49+2*w}], v{vAO} offset:{1024*w}")
    A(f"""s_waitcnt lgkmcnt(2)
    v_pk_add_f32 v[48:49], v[48:49], v[50:51]
    s_waitcnt lgkmcnt(0)
    v_pk_add_f32 v[52:53], v[52:53], v[54:55]
    v_pk_add_f32 v[48:49], v[48:49], v[52:53]
    v_cvt_pk_bf16_f32 v48, v48, v49
    v_perm_b32 v{vOP0}, v48, v48, v{vS1}
    v_perm_b32 v{vOP1}, v48, v48, v{vS2}
    s_nop 0""")
    build(OB0, vOP0, 0)
    A("s_nop 1")
    for k in range(72):
        rg, cb = divmod(k, 9)
        ob = OB1 if rg & 1 else OB0
        slot = k if k < NWS else k - NWS
        if k == NWS:
            A("s_waitcnt lgkmcnt(0)")
        A(f"v_mfma_f32_16x16x32_bf16 {q(YACC+4*cb)}, {q(ob)}, {q(WS(slot))}, {'0' if rg == 0 else q(YACC+4*cb)}")
        if 1 <= k <= 72 - NWS:
            A(f"ds_read_b128 {q(WS(k-1))}, v{vAW} offset:{L_WO + (k-1)*1024}")
        if 1 <= cb <= 4 and rg < 7:
            nrg = rg + 1
            r = cb - 1
            A(f"v_mov_b32_dpp v{(OB1 if nrg & 1 else OB0)+r}, v{vOP1 if nrg >> 2 else vOP0} {ror(r - (nrg & 3))} row_mask:0xf bank_mask:{hex(1 << r)}")
    Y = lambda p: WS(30) + 2 * p
    for p in range(4):
        d = YACC + 4 * (2 * p)
        A(f"v_add_f32_dpp v{Y(p)}, v{d+1}, v{d} row_ror:8 row_mask:0xf bank_mask:0x3")
        A(f"v_add_f32_dpp v{Y(p)+1}, v{d+3}, v{d+2} row_ror:8 row_mask:0xf bank_mask:0x3")
    for p in range(4):
        d = YACC + 4 * (2 * p + 1)
        A(f"v_add_f32_dpp v{Y(p)}, v{d}, v{d+1} row_ror:8 row_mask:0xf bank_mask:0xc")
        A(f"v_add_f32_dpp v{Y(p)+1}, v{d+2}, v{d+3} row_ror:8 row_mask:0xf bank_mask:0xc")
        A(f"ds_write_b64 v{vAY}, v[{Y(p)}:{Y(p)+1}] offset:{512*p}")
    d = YACC + 32
    A(f"v_add_f32_dpp v{Y(4)}, v{d+1}, v{d} row_ror:8 row_mask:0xf bank_mask:0xf")
    A(f"v_add_f32_dpp v{Y(4)+1}, v{d+3}, v{d+2} row_ror:8 row_mask:0xf bank_mask:0xf")
    A(f"ds_write_b64 v{vAY}, v[{Y(4)}:{Y(4)+1}] offset:2048")
    A("s_mov_b32 exec_hi, 0xffff\nv_mov_b32 v15, s60\ns_waitcnt lgkmcnt(0)")
    ts(4)
    A("s_barrier")
    for w in range(4):
        A(f"ds_read_b64 v[{12+4*w}:{13+4*w}], v{vAR} offset:{2560*w}")
        A(f"ds_read_b32 v{14+4*w}, v0 offset:{2560*w}")
    A(f"""s_waitcnt lgkmcnt(4)
    v_pk_add_f32 v[12:13], v[12:13], v[16:17]
    v_add_f32 v14, v14, v18
    s_waitcnt lgkmcnt(0)
    v_pk_add_f32 v[20:21], v[20:21], v[24:25]
    v_add_f32 v22, v22, v26
    v_pk_add_f32 v[12:13], v[12:13], v[20:21]
    v_add_f32 v14, v14, v22
    buffer_store_dwordx4 v[12:15], v{vS3}, s[40:43], 0 offen {cfg.YST}""")
    ts(5)
    ts_store()
    A("L_end:\ns_endpgm")
    return "\n".join(o)

HEADER = open("standalone__gqa_block_cached__sampling.s.ref").read().split("; Override launch")[0]

def full(cfg):
    body = gen(cfg)
    return f"""{HEADER}; @launch grid=(256,1,1) block=(512,1,1) lds={LDS_BYTES}
.amdgcn_target "amdgcn-amd-amdhsa--gfx950"
.text
.globl {cfg.kname}
.p2align 8
.type {cfg.kname},@function
{body}
.section .rodata,"a"
.p2align 6
.amdhsa_kernel {cfg.kname}
  .amdhsa_next_free_vgpr 256
  .amdhsa_next_free_sgpr 96
  .amdhsa_accum_offset 256
  .amdhsa_group_segment_fixed_size 0
  .amdhsa_kernarg_size 64
  .amdhsa_user_sgpr_count 2
  .amdhsa_user_sgpr_kernarg_segment_ptr 1
  .amdhsa_system_sgpr_workgroup_id_x 1
.end_amdhsa_kernel
"""

if __name__ == "__main__":
    cfg = Cfg()
    out = sys.argv[1]
    for kv in sys.argv[2:]:
        k, v = kv.split("=")
        cur = getattr(cfg, k)
        setattr(cfg, k, type(cur)(int(v)) if isinstance(cur, (int, bool)) else v.replace('+', ' '))
    open(out, "w").write(full(cfg))
```

```python
import sys

NAME = "standalone__gqa_block_cached__sampling"

class Cfg:
    N = 5
    P = 56
    LV = 7
    LK = 7
    NP = 5
    NK = 5
    NV = 5
    WO_DEPTH = 2
    WFLAG = "nt"
    TS = False
    MAP = 0
    R = 4
    PW = 1
    YSLEEP = 0
    VEND = 0
    NE = 7
    VODD = 0
    ABL = ''
    WQFLAG = ''
    SPIN = 0
    NOK = 0
    QPOLLS = 64
    QSLEEP = 4
    QBAR = 0
    QST = ''
    QLD = 'sc1'
    YST = 'sc1'
    YLD = 'sc1'
    QSLEEP0 = 8
    kname = NAME + "_kernel"

L_WO = 0
L_SC = 98304
L_Y = L_SC + 32768
L_O = L_Y + 10240
L_Q = L_O + 4096
L_ML = L_Q + 512
L_TK = L_ML + 64
L_END = L_TK + 16
LDS_BYTES = L_END

WS_Q = 0x100000
WS_E = 0x200000
WS_F = 0x1000000
YSLOT = 3072
K_TAG = 0x9e3779b9
C_SCALE = 0x3DB504F3
C_LOG2E = 0x3FB8AA3B

def ror(k):
    k = (4 * k) % 16
    return "quad_perm:[0,1,2,3]" if k == 0 else f"row_ror:{k}"

def q(b):
    return f"v[{b}:{b+3}]"

def gen(cfg):
    o = []
    def A(s):
        for line in s.split("\n"):
            o.append("    " + line.strip() if not line.strip().endswith(":") else line.strip())
    K = cfg.kname
    N, P, LV, LK = cfg.NP, cfg.P, cfg.LV, cfg.LK
    assert cfg.NK <= LK <= 7 and cfg.NV <= LV <= 7 and LV >= LK
    wf = (" " + cfg.WFLAG) if cfg.WFLAG else ""
    nts = [0]
    def ts(idx):
        if cfg.TS:
            A(f"s_memrealtime s[{64+2*idx}:{65+2*idx}]\ns_waitcnt lgkmcnt(0)")
    def ts_store():
        if cfg.TS:
            A(f"""s_mov_b64 exec, 1
            s_lshl_b32 s60, s2, 3
            s_add_u32 s60, s60, s3
            s_lshl_b32 s60, s60, 6
            s_add_u32 s60, s60, 0x400000
            v_mov_b32 v1, s60""")
            for i in range(12):
                A(f"v_mov_b32 v2, s{64+2*i}\nglobal_store_dword v1, v2, s[18:19] offset:{4*i}\ns_nop 1")
            A("s_getreg_b32 s60, hwreg(HW_REG_XCC_ID)\nv_mov_b32 v2, s60\nglobal_store_dword v1, v2, s[18:19] offset:48")

    def build(dst, src, t):
        for r in range(4):
            A(f"v_mov_b32_dpp v{dst+r}, v{src} {ror(r - t)} row_mask:0xf bank_mask:{hex(1 << r)}")

    A(f"{K}:")
    A(f"s_cmp_ge_u32 s2, 256\ns_cbranch_scc1 L_end")
    A("s_load_dwordx16 s[4:19], s[0:1], 0")
    if cfg.TS:
        for i in range(12):
            A(f"s_mov_b64 s[{64+2*i}:{65+2*i}], 0")
        A("s_memrealtime s[64:65]")
    if cfg.SPIN:
        A("s_memrealtime s[90:91]")
    A("""v_lshrrev_b32 v2, 6, v0
    v_and_b32 v1, 63, v0
    v_readfirstlane_b32 s3, v2
    """)
    if cfg.MAP == 0:
        A("s_and_b32 s48, s2, 15\ns_lshr_b32 s49, s2, 4")
    elif cfg.MAP == 1:
        A("s_and_b32 s48, s2, 7\ns_lshl_b32 s48, s48, 1\ns_bfe_u32 s49, s2, 0x10003\ns_add_u32 s48, s48, s49\ns_lshr_b32 s49, s2, 4")
    elif cfg.MAP == 2:
        A("s_and_b32 s48, s2, 3\ns_lshl_b32 s48, s48, 2\ns_bfe_u32 s49, s2, 0x20003\ns_add_u32 s48, s48, s49\ns_lshr_b32 s49, s2, 5\ns_lshl_b32 s49, s49, 1\ns_bfe_u32 s50, s2, 0x10002\ns_add_u32 s49, s49, s50")
    elif cfg.MAP == 3:
        A("s_bfe_u32 s48, s2, 0x40003\ns_lshr_b32 s49, s2, 7\ns_lshl_b32 s49, s49, 3\ns_and_b32 s50, s2, 7\ns_add_u32 s49, s49, s50")
    A("""s_lshl_b32 s62, s49, 4
    s_add_u32 s62, s62, s48
    s_cmp_ge_u32 s3, 4
    s_cbranch_scc1 L_aux""")

    SLOT = lambda n: 32 + 4 * n
    vOK, vOV, vSCA, vM, vL, vSA, vSB, vT, vTA, vTB, vSELA, vSELB, vPA, vPB = range(2, 16)
    vQ, vD0, vD1 = 16, 20, 24
    vNM, vTR, vX0, vX1 = 28, 29, 30, 31
    A("s_setprio 3")
    A(f"""v_and_b32 v{vOK}, 3, v1
    v_lshlrev_b32 v{vOK}, 4, v{vOK}
    v_lshrrev_b32 v{vT}, 4, v1
    v_lshl_add_u32 v{vOK}, v{vT}, 6, v{vOK}
    v_bfe_u32 v{vT}, v1, 2, 2
    v_lshl_add_u32 v{vOK}, v{vT}, 8, v{vOK}
    s_lshl_b32 s50, s3, 12
    v_add_u32 v{vOK}, s50, v{vOK}
    s_lshl_b32 s51, s62, 20
    s_mov_b32 s52, 0
    s_mov_b32 s22, 0x100000
    s_mov_b32 s23, 0x20000
    s_mov_b32 s53, 0
    s_waitcnt lgkmcnt(0)
    s_add_u32 s20, s6, s51
    s_addc_u32 s21, s7, s52
    s_and_b32 s21, s21, 0xffff""")

    def issue(n, slot, wait=True, depth=None):
        if depth is None:
            depth = cfg.NP if n < P else (cfg.NK if n < 256 else cfg.NV)
        if wait:
            A(f"s_waitcnt vmcnt({depth-1})")
        isv = n >= 256
        so = "s54" if isv else "s53"
        A(f"buffer_load_dwordx4 {q(SLOT(slot))}, v{vOV if isv else vOK}, {'s[24:27]' if isv else 's[20:23]'}, {so} offen offset:{(n & 3) * 1024} nt")
        if (n & 3) == 3:
            A(f"s_add_u32 {so}, {so}, 0x4000")

    if cfg.NOK:
        A("s_barrier")
    for n in range(P):
        issue(n, n, wait=(n >= N))
        if cfg.QBAR and n == cfg.QBAR:
            A("s_barrier")
        if n == N:
            ts(8)
        if n == N + 20:
            ts(9)
        if n == N - 1:
            A(f"""s_add_u32 s24, s8, s51
            s_addc_u32 s25, s9, s52
            s_and_b32 s25, s25, 0xffff
            s_mov_b32 s26, 0x100000
            s_mov_b32 s27, 0x20000
            s_mov_b32 s54, 0
            s_lshl_b32 s55, s49, 2
            s_add_u32 s55, s55, {WS_E}
            s_load_dword s59, s[18:19], s55
            v_lshlrev_b32 v{vOV}, 4, v1
            v_add_u32 v{vOV}, s50, v{vOV}
            s_lshl_b32 s55, s3, 13
            s_add_u32 s55, s55, {L_SC}
            v_lshlrev_b32 v{vSCA}, 2, v1
            v_add_u32 v{vSCA}, s55, v{vSCA}
            v_mov_b32 v{vM}, 0xff800000
            s_mov_b32 s56, {hex(C_SCALE)}
            s_mov_b32 s57, {hex(C_LOG2E)}
            v_and_b32 v{vT}, 2, v1
            v_cmp_eq_u32 vcc, 0, v{vT}
            v_mov_b32 v{vTA}, 0x01000c0c
            v_mov_b32 v{vTB}, 0x0c0c0100
            v_cndmask_b32 v{vSELA}, v{vTA}, v{vTB}, vcc
            v_mov_b32 v{vTA}, 0x03020c0c
            v_mov_b32 v{vTB}, 0x0c0c0302
            v_cndmask_b32 v{vSELB}, v{vTA}, v{vTB}, vcc
            v_and_b32 v{vX0}, 1, v1
            v_lshlrev_b32 v{vX0}, 8, v{vX0}
            v_lshrrev_b32 v{vT}, 2, v1
            v_lshl_add_u32 v{vX0}, v{vT}, 4, v{vX0}
            v_add_u32 v{vX0}, {L_Q}, v{vX0}""")
    ts(1)
    if not cfg.NOK:
        A("s_barrier")
    A(f"ds_read_b128 {q(vQ)}, v{vX0}")
    A("s_waitcnt lgkmcnt(0)")
    ts(2)

    def chain_ops(c, D, tmp):
        t = c & 3
        S = vSA if (c & 4) == 0 else vSB
        rs = [r for r in range(4) if r != t]
        return [
            f"v_add_f32_dpp v{tmp}, v{D+rs[0]}, v{D+t} {ror(t - rs[0])} row_mask:0xf bank_mask:0xf",
            f"v_add_f32_dpp v{tmp}, v{D+rs[1]}, v{tmp} {ror(t - rs[1])} row_mask:0xf bank_mask:0xf",
            f"v_add_f32_dpp v{S}, v{D+rs[2]}, v{tmp} {ror(t - rs[2])} row_mask:0xf bank_mask:{hex(1 << t)}",
        ]

    def finalize(off=None):
        A(f"""v_cvt_pk_bf16_f32 v{vT}, v{vSA}, v{vSB}
        v_lshlrev_b32 v{vTA}, 16, v{vT}
        v_and_b32 v{vTB}, 0xffff0000, v{vT}
        v_mul_f32 v{vTA}, s56, v{vTA}
        v_mul_f32 v{vTB}, s56, v{vTB}
        v_max3_f32 v{vM}, v{vM}, v{vTA}, v{vTB}
        v_cvt_pk_bf16_f32 v{vT}, v{vTA}, v{vTB}
        ds_write_b32 v{vSCA}, v{vT}
        v_add_u32 v{vSCA}, 0x100, v{vSCA}""")

    Dof = lambda n: vD0 if n == 0 else (vD1 if n == P - 1 else SLOT(n - 1))
    tmps = [vPA, vPB, vX1]
    ring_at = {}
    for k in range(LK):
        ring_at[(P - 8) * (k + 1) // LK] = k
    for s in range(P + 3):
        if s in ring_at:
            k = ring_at[s]
            assert s >= k + 1 + 4 + 1
            issue(P + k, k)
        if P - 8 <= s < P:
            A(f"s_waitcnt vmcnt({P - 1 - s + LK})")
        if s < P:
            A(f"v_mfma_f32_16x16x32_bf16 {q(Dof(s))}, {q(SLOT(s))}, {q(vQ)}, 0")
        else:
            A("s_nop 0")
        for (lag, opi) in ((4, 2), (3, 1), (2, 0)):
            c = s - lag
            if 0 <= c < P - 1:
                A(chain_ops(c, Dof(c), tmps[c % 3])[opi])
            else:
                A("s_nop 0")
        c = s - 4
        if c >= 0 and (c & 7) == 7 and c < P - 1:
            finalize()
    ts(3)

    def kstep(c, nissue):
        issue(nissue, nissue % 8)
        A(f"v_mfma_f32_16x16x32_bf16 {q(vD1 if c & 1 else vD0)}, {q(SLOT(c % 8))}, {q(vQ)}, 0")
        pc = (c - 1) % 8
        ops = chain_ops(pc, vD1 if pc & 1 else vD0, vX1)
        A("s_nop 1")
        A(ops[0]); A("s_nop 1"); A(ops[1]); A("s_nop 1"); A(ops[2])
        if pc == 7:
            finalize()

    nkit = (256 - P) // 8
    A(f"s_mov_b32 s58, {nkit - 1}")
    A("L_kloop:")
    for c in range(8):
        kstep(c, P + c + LK)
    A("s_sub_u32 s58, s58, 1\ns_cmp_lg_u32 s58, 0\ns_cbranch_scc1 L_kloop")
    for c in range(248, 256):
        kstep(c, c + LK)
    A("s_nop 7")
    ops = chain_ops(7, vD1, vX1)
    A(ops[0]); A("s_nop 1"); A(ops[1]); A("s_nop 1"); A(ops[2])
    finalize()
    ts(4)
    A(f"v_subrev_u32 v{vSCA}, 0x2000, v{vSCA}")
    A(f"ds_read_b32 v{vTR}, v{vSCA}")
    extra = list(range(256 + LK, 256 + LV))
    if extra:
        issue(extra[0], extra[0] % 8)
    def xreduce(v, op, tmp):
        A(f"""s_nop 1
        {op}_dpp v{v}, v{v}, v{v} row_ror:4 row_mask:0xf bank_mask:0xf
        s_nop 1
        {op}_dpp v{v}, v{v}, v{v} row_ror:8 row_mask:0xf bank_mask:0xf
        v_mov_b32 v{tmp}, v{v}
        s_nop 1
        v_permlane16_swap_b32 v{v}, v{tmp}
        {op} v{v}, v{v}, v{tmp}
        v_mov_b32 v{tmp}, v{v}
        s_nop 1
        v_permlane32_swap_b32 v{v}, v{tmp}
        {op} v{v}, v{v}, v{tmp}""")
    xreduce(vM, "v_max_f32", vT)
    A(f"""v_cvt_pk_bf16_f32 v{vM}, v{vM}, v{vM}
    v_lshlrev_b32 v{vM}, 16, v{vM}
    v_mul_f32 v{vM}, s57, v{vM}
    v_sub_f32 v{vNM}, 0, v{vM}
    v_mov_b32 v{vL}, 0""")
    for r in range(16, 28):
        A(f"v_mov_b32 v{r}, 0")
    vO = vQ
    def expblock():
        A(f"""s_waitcnt lgkmcnt(0)
        v_lshlrev_b32 v{vTA}, 16, v{vTR}
        v_and_b32 v{vTB}, 0xffff0000, v{vTR}
        v_fma_f32 v{vTA}, v{vTA}, s57, v{vNM}
        v_fma_f32 v{vTB}, v{vTB}, s57, v{vNM}
        v_exp_f32 v{vTA}, v{vTA}
        v_exp_f32 v{vTB}, v{vTB}
        v_add_f32 v{vL}, v{vL}, v{vTA}
        s_nop 0
        v_add_f32 v{vL}, v{vL}, v{vTB}
        v_cvt_pk_bf16_f32 v{vT}, v{vTA}, v{vTB}""")
    expblock()
    A(f"v_perm_b32 v{vPA}, v{vT}, v{vT}, v{vSELA}\nv_perm_b32 v{vPB}, v{vT}, v{vT}, v{vSELB}")
    for n in extra[1:]:
        issue(n, n % 8)
    A("s_nop 1")

    def vstep(c, missue, waitn=None, depth=None):
        pb = vD1 if c & 1 else vD0
        build(pb, vPA if (c & 4) == 0 else vPB, c & 3)
        if missue is not None:
            issue(256 + missue, missue % 8, depth=depth)
        else:
            A(f"s_waitcnt vmcnt({waitn})\ns_nop 0")
        A(f"v_mfma_f32_16x16x32_bf16 {q(vO)}, {q(SLOT(c % 8))}, {q(pb)}, {q(vO)}")

    def vloop(label, depth):
        A(f"{label}:")
        for c in range(8):
            vstep(c, c + LV, depth=depth)
            if c == 0:
                A(f"v_add_u32 v{vSCA}, 0x100, v{vSCA}\nds_read_b32 v{vTR}, v{vSCA}")
            if c == 2:
                expblock()
            if c == 4:
                A(f"v_perm_b32 v{vPA}, v{vT}, v{vT}, v{vSELA}")
            if c == 7:
                A(f"v_perm_b32 v{vPB}, v{vT}, v{vT}, v{vSELB}")
        A(f"s_sub_u32 s58, s58, 1\ns_cmp_lg_u32 s58, s63\ns_cbranch_scc1 {label}")
    A("s_mov_b32 s58, 31")
    if cfg.VODD:
        A(f"s_getreg_b32 s63, hwreg(HW_REG_XCC_ID, 0, 1)\ns_cmp_eq_u32 s63, 0\ns_cselect_b32 s63, {cfg.VEND + cfg.VODD}, {cfg.VEND}")
    else:
        A(f"s_mov_b32 s63, {cfg.VEND}")
    vloop("L_vloop", cfg.NV)
    if cfg.VEND:
        A("s_mov_b32 s63, 0")
        vloop("L_vloop2", cfg.NE)
    c = 248
    while c + LV < 256:
        vstep(c, c + LV, depth=cfg.NE if cfg.VEND else None)
        c += 1
    ts(5)
    xreduce(vL, "v_add_f32", vT)
    A(f"""v_and_b32 v{vX0}, 1, v1
    v_lshlrev_b32 v{vX0}, 5, v{vX0}
    v_add_u32 v{vX0}, {L_ML}, v{vX0}
    s_lshl_b32 s55, s3, 3
    v_add_u32 v{vX1}, s55, v{vX0}
    v_mov_b32 v{vTA}, v{vM}
    v_mov_b32 v{vTB}, v{vL}
    ds_write_b64 v{vX1}, v[{vTA}:{vTB}]
    s_waitcnt lgkmcnt(0)
    s_barrier""")
    m0 = SLOT(9)
    A(f"""ds_read_b128 {q(m0)}, v{vX0}
    ds_read_b128 {q(m0+4)}, v{vX0} offset:16
    s_lshl_b32 s55, s3, 10
    s_add_u32 s55, s55, {L_O}
    v_lshlrev_b32 v{vX1}, 4, v1
    v_add_u32 v{vX1}, s55, v{vX1}
    s_waitcnt lgkmcnt(0)
    v_max3_f32 v{vT}, v{m0}, v{m0+2}, v{m0+4}
    v_max_f32 v{vT}, v{vT}, v{m0+6}
    v_sub_f32 v{m0}, v{m0}, v{vT}
    v_sub_f32 v{m0+2}, v{m0+2}, v{vT}
    v_sub_f32 v{m0+4}, v{m0+4}, v{vT}
    v_sub_f32 v{m0+6}, v{m0+6}, v{vT}
    v_sub_f32 v{vTA}, v{vM}, v{vT}
    v_exp_f32 v{m0}, v{m0}
    v_exp_f32 v{m0+2}, v{m0+2}
    v_exp_f32 v{m0+4}, v{m0+4}
    v_exp_f32 v{m0+6}, v{m0+6}
    v_exp_f32 v{vTA}, v{vTA}
    v_mul_f32 v{vTB}, v{m0}, v{m0+1}
    v_fmac_f32 v{vTB}, v{m0+2}, v{m0+3}
    v_fmac_f32 v{vTB}, v{m0+4}, v{m0+5}
    v_fmac_f32 v{vTB}, v{m0+6}, v{m0+7}
    v_rcp_f32 v{vTB}, v{vTB}
    s_nop 0
    v_mul_f32 v{vTA}, v{vTA}, v{vTB}""")
    while c < 256:
        vstep(c, None, 255 - c)
        c += 1
    A("s_nop 7")
    for r in range(4):
        A(f"v_mul_f32 v{vO+r}, v{vO+r}, v{vTA}")
    A(f"""ds_write_b128 v{vX1}, {q(vO)}
    s_waitcnt lgkmcnt(0)""")
    ts(6)
    A("s_barrier")
    G = 192 // cfg.R
    sh = {4: 2, 8: 1, 16: 0}[cfg.R]
    A(f"""s_sub_u32 s51, s48, s49
    s_and_b32 s51, s51, 15
    s_and_b32 s50, s51, {(1 << sh) - 1}
    s_cbranch_scc1 L_sdone
    s_cmp_ge_u32 s3, {cfg.PW}
    s_cbranch_scc1 L_sdone
    s_lshr_b32 s51, s51, {sh}
    s_mul_i32 s52, s51, {G}
    v_add_u32 v0, s52, v1
    s_add_u32 s59, s59, {K_TAG}
    s_mul_i32 s50, s49, {16*YSLOT}
    s_add_u32 s40, s18, s50
    s_addc_u32 s41, s19, 0
    s_and_b32 s41, s41, 0xffff
    s_mov_b32 s42, {16*YSLOT}
    s_mov_b32 s43, 0x20000
    s_mul_i32 s50, s49, 1152
    s_add_u32 s44, s14, s50
    s_addc_u32 s45, s15, 0
    s_and_b32 s45, s45, 0xffff
    s_mov_b32 s46, 1152
    s_mov_b32 s47, 0x20000
    v_lshlrev_b32 v2, 4, v0
    v_lshlrev_b32 v3, 2, v0
    v_lshlrev_b32 v6, 1, v0
    s_mov_b32 s58, 0x100000
    s_mov_b32 exec_lo, {hex(((1 << G) - 1) & 0xffffffff)}
    s_mov_b32 exec_hi, {hex(((1 << G) - 1) >> 32)}
    s_barrier
    s_branch L_poll
    L_repoll:
    s_sleep {cfg.YSLEEP}
    L_poll:""")
    R = 32
    for k in range(16):
        A(f"s_mov_b32 s50, {k*YSLOT}\nbuffer_load_dwordx4 {q(R+4*k)}, v2, s[40:43], s50 offen {cfg.YLD}")
    A("s_sub_u32 s58, s58, 1")
    for k in range(0, 16, 2):
        A(f"s_waitcnt vmcnt({14 - k})")
        a_, b_ = R + 4 * k, R + 4 * k + 4
        if k == 0:
            A(f"v_min_u32 v4, v{a_+3}, v{b_+3}\nv_max_u32 v5, v{a_+3}, v{b_+3}")
        else:
            A(f"v_min3_u32 v4, v4, v{a_+3}, v{b_+3}\nv_max3_u32 v5, v5, v{a_+3}, v{b_+3}")
        A(f"v_pk_add_f32 v[{a_}:{a_+1}], v[{a_}:{a_+1}], v[{b_}:{b_+1}]\nv_add_f32 v{a_+2}, v{a_+2}, v{b_+2}")
        if k:
            A(f"v_pk_add_f32 v[{R}:{R+1}], v[{R}:{R+1}], v[{a_}:{a_+1}]\nv_add_f32 v{R+2}, v{R+2}, v{a_+2}")
    A(f"""v_xor_b32 v4, s59, v4
    v_xor_b32 v5, s59, v5
    v_or_b32 v4, v4, v5
    v_cmp_ne_u32 vcc, 0, v4
    v_cvt_pk_bf16_f32 v4, v{R}, v{R+1}
    v_cvt_pk_bf16_f32 v5, v{R+2}, v{R+2}
    s_cbranch_scc1 L_pollout
    s_nop 2
    s_cbranch_vccnz L_repoll
    L_pollout:
    buffer_store_dword v4, v3, s[44:47], 0 offen
    buffer_store_short v5, v6, s[44:47], 0 offen offset:768""")
    ts(7)
    A(f"""s_cmp_lg_u32 s51, 0
    s_cbranch_scc1 L_sdone
    s_lshl_b32 s50, s49, 2
    s_add_u32 s50, s50, {WS_E}
    v_mov_b32 v7, s50
    v_mov_b32 v8, s59
    s_mov_b64 exec, 1
    global_store_dword v7, v8, s[18:19] sc1""")
    A("L_sdone:")
    ts_store()
    A("s_endpgm")

    A("L_aux:")
    A("s_sub_u32 s61, s3, 4")
    vOW, vA, vB, vC = 2, 3, 8, 9
    vSELA2, vSELB2, vST = 45, 46, 47
    A(f"s_cmp_eq_u32 s61, {7 if 'q' in cfg.ABL else 0}\ns_cbranch_scc1 L_qwave\ns_waitcnt lgkmcnt(0)\n" + ("s_barrier\n" if cfg.QBAR else "") + "s_branch L_qdone")
    XR, WR, WP, QA = 48, 72, 148, 224
    vXO, vWO, vPO = 10, 11, 12
    A(f"""L_qwave:
    s_setprio 2
    v_and_b32 v{vA}, 15, v1
    v_lshrrev_b32 v{vB}, 4, v1
    v_mul_u32_u24 v{vXO}, 1152, v{vA}
    v_mad_u32_u24 v{vXO}, v{vB}, 36, v{vXO}
    v_mad_u32_u24 v{vXO}, v{vB}, 36, v{vXO}
    v_mul_u32_u24 v{vWO}, {36*8192}, v{vB}
    v_lshl_add_u32 v{vWO}, v{vA}, 3, v{vWO}
    v_lshlrev_b32 v{vPO}, 14, v{vB}
    v_lshl_add_u32 v{vPO}, v{vA}, 4, v{vPO}
    s_lshl_b32 s51, s48, 9
    s_mov_b32 s38, {16*1152}
    s_mov_b32 s39, 0x20000
    s_sub_u32 s30, {576*8192}, s51
    s_mov_b32 s31, 0x20000
    s_lshl_b32 s52, s48, 16
    s_add_u32 s52, s52, {WS_Q}
    s_mov_b32 s46, 0x10000
    s_mov_b32 s47, 0x20000
    s_mov_b32 s53, s49
    s_mov_b32 s54, 0
    s_mov_b32 s56, 0x05040100
    s_mov_b32 s57, 0x07060302
    s_waitcnt lgkmcnt(0)
    s_mov_b32 s36, s4
    s_and_b32 s37, s5, 0xffff
    s_add_u32 s28, s10, s51
    s_addc_u32 s29, s11, 0
    s_and_b32 s29, s29, 0xffff
    s_add_u32 s44, s18, s52
    s_addc_u32 s45, s19, 0
    s_and_b32 s45, s45, 0xffff
    s_lshl_b32 s50, s49, 2
    s_add_u32 s50, s50, {WS_E}
    s_load_dword s60, s[18:19], s50
    v_mov_b32 v15, 0xff
    L_produce:
    s_lshr_b32 s58, s53, 2
    s_and_b32 s59, s53, 3
    s_mul_i32 s50, s59, {144*8192}
    s_lshl_b32 s55, s58, 7
    s_add_u32 s50, s50, s55
    s_mul_i32 s55, s59, 288""")
    for n in range(36):
        A(f"buffer_load_dwordx2 v[{WR+2*n}:{WR+2*n+1}], v{vWO}, s[28:31], s50 offen {cfg.WQFLAG}")
        if n < 35:
            A("s_add_u32 s50, s50, 0x2000")
        if n == 7:
            for i in range(4):
                A(f"buffer_load_dwordx4 {q(XR+4*i)}, v{vXO}, s[36:39], s55 offen offset:{16*i} {cfg.WQFLAG}")
            A(f"buffer_load_dwordx2 v[{XR+16}:{XR+17}], v{vXO}, s[36:39], s55 offen offset:64 {cfg.WQFLAG}")
    ts(6)
    A(f"v_and_b32 v13, 0x30, v1\nv_add_u32 v13, {WS_E}, v13\nglobal_load_dwordx4 v[16:19], v13, s[18:19] {cfg.WQFLAG}")
    A("s_lshl_b32 s50, s59, 10\ns_lshl_b32 s55, s58, 8\ns_add_u32 s50, s50, s55")
    for st in range(5):
        rows = 8 if st < 4 else 4
        last = 8 * st + rows - 1
        A(f"s_waitcnt vmcnt({36 - last if st < 4 else 0})")
        for c in range(4):
            for m in range(rows // 2):
                r0 = 8 * st + 2 * m
                A(f"v_perm_b32 v{WP + 18*c + 4*st + m}, v{WR + 2*(r0+1) + (c >> 1)}, v{WR + 2*r0 + (c >> 1)}, {'s57' if c & 1 else 's56'}")
        A("s_nop 1")
        for c in range(4):
            w = WP + 18 * c + 4 * st
            cin = "0" if st == 0 else q(QA + 4 * c)
            if st < 4:
                A(f"v_mfma_f32_16x16x32_bf16 {q(QA+4*c)}, {q(XR+4*st)}, {q(w)}, {cin}")
            else:
                A(f"v_mfma_f32_16x16x16_bf16 {q(QA+4*c)}, v[{XR+16}:{XR+17}], v[{w}:{w+1}], {cin}")
    A(f"""s_waitcnt lgkmcnt(0)
    s_add_u32 s27, s60, {K_TAG}
    s_lshr_b32 s24, s27, 8
    s_lshr_b32 s25, s27, 16
    s_lshr_b32 s26, s27, 24
    s_nop 3""")
    if 's' in cfg.ABL:
        A("s_branch L_qdone")
    tagr = ["s27", "s24", "s25", "s26"]
    for r in range(4):
        for c in range(4):
            A(f"v_bfi_b32 v{QA+16+4*r+c}, v15, {tagr[c]}, v{QA+4*c+r}")
        A(f"buffer_store_dwordx4 {q(QA+16+4*r)}, v{vPO}, s[44:47], s50 offen {cfg.QST}")
        if r < 3:
            A("s_add_u32 s50, s50, 0x1000")
    ts(7)
    A(f"""s_cmp_eq_u32 s54, 0
    s_cbranch_scc1 L_first
    s_waitcnt vmcnt(0)
    s_add_u32 s53, s53, 1
    s_cmp_lt_u32 s53, 16
    s_cbranch_scc1 L_produce
    s_branch L_consume
    L_first:
    """)
    for rb in range(4):
        A(f"v_add_u32 v{20+4*rb}, {K_TAG}, v{16+rb}")
        for c in range(1, 4):
            A(f"v_lshrrev_b32 v{20+4*rb+c}, {8*c}, v{20+4*rb}")
    A(f"""
    {"s_barrier" if cfg.QBAR else f"s_sleep {cfg.QSLEEP0}"}
    L_consume:
    v_lshlrev_b32 v{vA}, 4, v1
    s_lshl_b32 s50, s49, 12
    s_mov_b32 s58, {cfg.QPOLLS}
    L_qpoll:""")
    for rb in range(4):
        A(f"buffer_load_dwordx4 {q(XR+4*rb)}, v{vA}, s[44:47], s50 offen offset:{1024*rb} {cfg.QLD}")
    A("s_waitcnt vmcnt(0)")
    for i in range(16):
        A(f"v_xor_b32 v{WR+i}, v{20+i}, v{XR+i}")
    A(f"v_or3_b32 v{WR}, v{WR}, v{WR+1}, v{WR+2}")
    for i in range(3, 15, 2):
        A(f"v_or3_b32 v{WR}, v{WR}, v{WR+i}, v{WR+i+1}")
    A(f"""v_or_b32 v{WR}, v{WR}, v{WR+15}
    v_and_b32 v{WR}, 0xff, v{WR}
    v_cmp_ne_u32 vcc, 0, v{WR}
    s_mov_b32 s55, 0x80
    s_nop 4
    s_cbranch_vccz L_qready
    s_cmp_lg_u32 s54, 0
    s_cbranch_scc1 L_qready
    s_sleep {cfg.QSLEEP}
    s_sub_u32 s58, s58, 1
    s_cbranch_scc0 L_qpoll
    s_mov_b32 s54, 1
    s_mov_b32 s53, 0
    s_lshl_b32 s52, s62, 16
    s_add_u32 s52, s52, {WS_F}
    s_add_u32 s44, s18, s52
    s_addc_u32 s45, s19, 0
    s_and_b32 s45, s45, 0xffff
    s_branch L_produce
    L_qready:""")
    ts(9)
    for i in range(16):
        A(f"v_bfi_b32 v{XR+i}, v15, s55, v{XR+i}")
    A(f"""v_lshlrev_b32 v{vB}, 3, v1
    v_add_u32 v{vB}, {L_Q}, v{vB}
    v_pk_add_f32 v[{XR}:{XR+1}], v[{XR}:{XR+1}], v[{XR+4}:{XR+5}]
    v_pk_add_f32 v[{XR+2}:{XR+3}], v[{XR+2}:{XR+3}], v[{XR+6}:{XR+7}]
    v_pk_add_f32 v[{XR+8}:{XR+9}], v[{XR+8}:{XR+9}], v[{XR+12}:{XR+13}]
    v_pk_add_f32 v[{XR+10}:{XR+11}], v[{XR+10}:{XR+11}], v[{XR+14}:{XR+15}]
    v_pk_add_f32 v[{XR}:{XR+1}], v[{XR}:{XR+1}], v[{XR+8}:{XR+9}]
    v_pk_add_f32 v[{XR+2}:{XR+3}], v[{XR+2}:{XR+3}], v[{XR+10}:{XR+11}]
    v_cvt_pk_bf16_f32 v{XR}, v{XR}, v{XR+1}
    v_cvt_pk_bf16_f32 v{XR+1}, v{XR+2}, v{XR+3}
    ds_write_b64 v{vB}, v[{XR}:{XR+1}]
    s_setprio 0
    L_qdone:""")
    A(f"""s_lshl_b32 s50, s49, 2
    s_add_u32 s50, s50, {WS_E}
    s_load_dword s60, s[18:19], s50
    s_mul_i32 s50, s62, {YSLOT}
    s_add_u32 s40, s18, s50
    s_addc_u32 s41, s19, 0
    s_and_b32 s41, s41, 0xffff
    s_mov_b32 s42, {YSLOT}
    s_mov_b32 s43, 0x20000
    s_mul_i32 s50, s61, 48
    v_add_u32 v{vST}, s50, v1
    v_and_b32 v{vA}, 2, v1
    v_cmp_eq_u32 vcc, 0, v{vA}
    v_mov_b32 v{vB}, 0x01000c0c
    v_mov_b32 v{vC}, 0x0c0c0100
    v_cndmask_b32 v{vSELA2}, v{vB}, v{vC}, vcc
    v_mov_b32 v{vB}, 0x03020c0c
    v_mov_b32 v{vC}, 0x0c0c0302
    v_cndmask_b32 v{vSELB2}, v{vB}, v{vC}, vcc
    s_waitcnt lgkmcnt(0)""")
    ts(1)
    A("s_barrier")
    WS = lambda n: 64 + 4 * n
    NWS = 48
    YACC = 12
    OB0, OB1 = 4, 8
    vOP0, vOP1 = 56, 57
    vAO, vAW, vAY, vAR = 58, 59, 60, 61
    vS1, vS2, vS3 = 62, 63, 3
    A(f"""v_mov_b32 v{vS1}, v{vSELA2}
    v_mov_b32 v{vS2}, v{vSELB2}
    v_lshlrev_b32 v{vS3}, 4, v{vST}
    s_add_u32 s60, s60, {K_TAG}
    s_mul_i32 s50, s48, {256*1152}
    s_add_u32 s32, s12, s50
    s_addc_u32 s33, s13, 0
    s_and_b32 s33, s33, 0xffff
    s_mov_b32 s34, {256*1152}
    s_mov_b32 s35, 0x20000
    v_bfe_u32 v8, v1, 4, 1
    v_lshlrev_b32 v8, 7, v8
    v_lshrrev_b32 v9, 5, v1
    v_add_u32 v8, v8, v9
    v_bfe_u32 v9, v1, 3, 1
    v_lshl_add_u32 v8, v9, 4, v8
    s_lshl_b32 s50, s61, 5
    v_add_u32 v8, s50, v8
    v_mul_u32_u24 v{vOW}, 1152, v8
    v_and_b32 v9, 7, v1
    v_lshl_add_u32 v{vOW}, v9, 4, v{vOW}
    s_mul_i32 s52, s61, {24*1024}""")
    for k in range(0 if 'w' in cfg.ABL else 72):
        rg, cb = divmod(k, 9)
        u, t = rg >> 2, rg & 3
        if k >= cfg.WO_DEPTH:
            A(f"s_waitcnt vmcnt({cfg.WO_DEPTH - 1})")
        A(f"s_mov_b32 s50, {(8*u + 2*t) * 1152 + cb * 128}")
        if k < NWS:
            A(f"buffer_load_dwordx4 {q(WS(k))}, v{vOW}, s[32:35], s50 offen{wf}")
        else:
            A(f"s_add_u32 m0, s52, {L_WO + (k - NWS) * 1024}\ns_nop 0\nbuffer_load_dwordx4 v{vOW}, s[32:35], s50 offen{wf} lds")
    A(f"""v_bfe_u32 v8, v1, 2, 2
    v_lshlrev_b32 v{vAO}, 6, v8
    v_lshrrev_b32 v8, 4, v1
    v_lshl_add_u32 v{vAO}, v8, 4, v{vAO}
    v_and_b32 v9, 1, v1
    v_lshl_add_u32 v{vAO}, v9, 3, v{vAO}
    s_lshl_b32 s50, s61, 8
    s_add_u32 s50, s50, {L_O}
    v_add_u32 v{vAO}, s50, v{vAO}
    v_lshlrev_b32 v{vAW}, 4, v1
    v_add_u32 v{vAW}, s52, v{vAW}
    v_and_b32 v9, 15, v1
    v_lshlrev_b32 v{vAY}, 5, v9
    v_lshl_add_u32 v{vAY}, v8, 3, v{vAY}
    s_mul_i32 s50, s61, 2560
    s_add_u32 s50, s50, {L_Y}
    v_add_u32 v{vAY}, s50, v{vAY}
    v_lshrrev_b32 v{vAR}, 1, v{vS3}
    v_add_u32 v{vAR}, {L_Y}, v{vAR}
    v_lshrrev_b32 v0, 2, v{vS3}
    v_add_u32 v0, {L_Y + 1536}, v0""")
    for r in range(OB0, OB0 + 8):
        A(f"v_mov_b32 v{r}, 0")
    A("s_waitcnt vmcnt(0) lgkmcnt(0)")
    ts(2)
    A("s_setprio 3\ns_barrier\ns_barrier")
    ts(3)
    for w in range(4):
        A(f"ds_read_b64 v[{48+2*w}:{49+2*w}], v{vAO} offset:{1024*w}")
    A(f"""s_waitcnt lgkmcnt(2)
    v_pk_add_f32 v[48:49], v[48:49], v[50:51]
    s_waitcnt lgkmcnt(0)
    v_pk_add_f32 v[52:53], v[52:53], v[54:55]
    v_pk_add_f32 v[48:49], v[48:49], v[52:53]
    v_cvt_pk_bf16_f32 v48, v48, v49
    v_perm_b32 v{vOP0}, v48, v48, v{vS1}
    v_perm_b32 v{vOP1}, v48, v48, v{vS2}
    s_nop 0""")
    build(OB0, vOP0, 0)
    A("s_nop 1")
    for k in range(72):
        rg, cb = divmod(k, 9)
        ob = OB1 if rg & 1 else OB0
        slot = k if k < NWS else k - NWS
        if k == NWS:
            A("s_waitcnt lgkmcnt(0)")
        A(f"v_mfma_f32_16x16x32_bf16 {q(YACC+4*cb)}, {q(ob)}, {q(WS(slot))}, {'0' if rg == 0 else q(YACC+4*cb)}")
        if 1 <= k <= 72 - NWS:
            A(f"ds_read_b128 {q(WS(k-1))}, v{vAW} offset:{L_WO + (k-1)*1024}")
        if 1 <= cb <= 4 and rg < 7:
            nrg = rg + 1
            r = cb - 1
            A(f"v_mov_b32_dpp v{(OB1 if nrg & 1 else OB0)+r}, v{vOP1 if nrg >> 2 else vOP0} {ror(r - (nrg & 3))} row_mask:0xf bank_mask:{hex(1 << r)}")
    Y = lambda p: WS(30) + 2 * p
    for p in range(4):
        d = YACC + 4 * (2 * p)
        A(f"v_add_f32_dpp v{Y(p)}, v{d+1}, v{d} row_ror:8 row_mask:0xf bank_mask:0x3")
        A(f"v_add_f32_dpp v{Y(p)+1}, v{d+3}, v{d+2} row_ror:8 row_mask:0xf bank_mask:0x3")
    for p in range(4):
        d = YACC + 4 * (2 * p + 1)
        A(f"v_add_f32_dpp v{Y(p)}, v{d}, v{d+1} row_ror:8 row_mask:0xf bank_mask:0xc")
        A(f"v_add_f32_dpp v{Y(p)+1}, v{d+2}, v{d+3} row_ror:8 row_mask:0xf bank_mask:0xc")
        A(f"ds_write_b64 v{vAY}, v[{Y(p)}:{Y(p)+1}] offset:{512*p}")
    d = YACC + 32
    A(f"v_add_f32_dpp v{Y(4)}, v{d+1}, v{d} row_ror:8 row_mask:0xf bank_mask:0xf")
    A(f"v_add_f32_dpp v{Y(4)+1}, v{d+3}, v{d+2} row_ror:8 row_mask:0xf bank_mask:0xf")
    A(f"ds_write_b64 v{vAY}, v[{Y(4)}:{Y(4)+1}] offset:2048")
    A("s_mov_b32 exec_hi, 0xffff\nv_mov_b32 v15, s60\ns_waitcnt lgkmcnt(0)")
    ts(4)
    A("s_barrier")
    for w in range(4):
        A(f"ds_read_b64 v[{12+4*w}:{13+4*w}], v{vAR} offset:{2560*w}")
        A(f"ds_read_b32 v{14+4*w}, v0 offset:{2560*w}")
    A(f"""s_waitcnt lgkmcnt(4)
    v_pk_add_f32 v[12:13], v[12:13], v[16:17]
    v_add_f32 v14, v14, v18
    s_waitcnt lgkmcnt(0)
    v_pk_add_f32 v[20:21], v[20:21], v[24:25]
    v_add_f32 v22, v22, v26
    v_pk_add_f32 v[12:13], v[12:13], v[20:21]
    v_add_f32 v14, v14, v22
    buffer_store_dwordx4 v[12:15], v{vS3}, s[40:43], 0 offen {cfg.YST}""")
    ts(5)
    ts_store()
    if cfg.SPIN:
        A(f"L_spin:\ns_memrealtime s[92:93]\ns_waitcnt lgkmcnt(0)\ns_sub_u32 s92, s92, s90\ns_cmp_lt_u32 s92, {cfg.SPIN}\ns_cbranch_scc1 L_spin")
    A("L_end:\ns_endpgm")
    return "\n".join(o)

HEADER = open("standalone__gqa_block_cached__sampling.s.ref").read().split("; Override launch")[0]

def full(cfg):
    body = gen(cfg)
    return f"""{HEADER}; @launch grid=(256,1,1) block=(512,1,1) lds={LDS_BYTES}
.amdgcn_target "amdgcn-amd-amdhsa--gfx950"
.text
.globl {cfg.kname}
.p2align 8
.type {cfg.kname},@function
{body}
.section .rodata,"a"
.p2align 6
.amdhsa_kernel {cfg.kname}
  .amdhsa_next_free_vgpr 256
  .amdhsa_next_free_sgpr 96
  .amdhsa_accum_offset 256
  .amdhsa_group_segment_fixed_size 0
  .amdhsa_kernarg_size 64
  .amdhsa_user_sgpr_count 2
  .amdhsa_user_sgpr_kernarg_segment_ptr 1
  .amdhsa_system_sgpr_workgroup_id_x 1
.end_amdhsa_kernel
"""

if __name__ == "__main__":
    cfg = Cfg()
    out = sys.argv[1]
    for kv in sys.argv[2:]:
        k, v = kv.split("=")
        cur = getattr(cfg, k)
        setattr(cfg, k, type(cur)(int(v)) if isinstance(cur, (int, bool)) else v.replace('+', ' '))
    open(out, "w").write(full(cfg))
```

```python
import sys

NAME = "standalone__gqa_block_cached__sampling"

class Cfg:
    N = 5
    P = 56
    LV = 7
    LK = 7
    NP = 6
    NK = 5
    NV = 5
    WO_DEPTH = 2
    WFLAG = "nt"
    TS = False
    MAP = 0
    FC = 1
    CK0 = 31
    CKIT = 2
    THI = 23
    TLO = 7
    GX = 2
    GMASK = 1
    PAR = 0
    NLO = 4
    NHI = 6
    TS2 = 0
    SM = 1
    ROT = 0
    RSH = 0
    PT = 1
    R = 4
    PW = 1
    YSLEEP = 0
    VEND = 6
    NE = 7
    VODD = 0
    ABL = ''
    WQFLAG = ''
    SPIN = 0
    NOK = 0
    QPOLLS = 64
    QSLEEP = 4
    QBAR = 0
    QST = ''
    QLD = 'sc1'
    YST = 'sc1'
    YLD = 'sc1'
    QSLEEP0 = 8
    kname = NAME + "_kernel"

L_WO = 0
L_SC = 98304
L_Y = L_SC + 32768
L_O = L_Y + 10240
L_Q = L_O + 4096
L_ML = L_Q + 512
L_FC = L_ML + 64
L_END = L_FC + 32
LDS_BYTES = L_END

WS_Q = 0x100000
WS_E = 0xF0000
WS_F = 0x1000000
YSLOT = 3072
WS_P = 0xD0000
WS_G = 0xE0000
K_TAG = 0x9e3779b9
C_SCALE = 0x3DB504F3
C_LOG2E = 0x3FB8AA3B

def ror(k):
    k = (4 * k) % 16
    return "quad_perm:[0,1,2,3]" if k == 0 else f"row_ror:{k}"

def q(b):
    return f"v[{b}:{b+3}]"

def gen(cfg):
    o = []
    def A(s):
        for line in s.split("\n"):
            o.append("    " + line.strip() if not line.strip().endswith(":") else line.strip())
    K = cfg.kname
    N, P, LV, LK = cfg.NP, cfg.P, cfg.LV, cfg.LK
    assert cfg.NK <= LK <= 7 and cfg.NV <= LV <= 7 and LV >= LK
    wf = (" " + cfg.WFLAG) if cfg.WFLAG else ""
    nts = [0]
    def ts(idx):
        if cfg.TS:
            A(f"s_memrealtime s[{64+2*idx}:{65+2*idx}]\ns_waitcnt lgkmcnt(0)")
    def ts_store():
        if cfg.TS:
            A(f"""s_mov_b64 exec, 1
            s_lshl_b32 s60, s2, 3
            s_add_u32 s60, s60, s3
            s_lshl_b32 s60, s60, 6
            s_add_u32 s60, s60, 0x400000
            v_mov_b32 v1, s60""")
            for i in range(12):
                A(f"v_mov_b32 v2, s{64+2*i}\nglobal_store_dword v1, v2, s[18:19] offset:{4*i}\ns_nop 1")
            A("s_getreg_b32 s60, hwreg(HW_REG_XCC_ID)\nv_mov_b32 v2, s60\nglobal_store_dword v1, v2, s[18:19] offset:48")

    def build(dst, src, t):
        for r in range(4):
            A(f"v_mov_b32_dpp v{dst+r}, v{src} {ror(r - t)} row_mask:0xf bank_mask:{hex(1 << r)}")

    A(f"{K}:")
    A(f"s_cmp_ge_u32 s2, 256\ns_cbranch_scc1 L_end")
    A("s_load_dwordx16 s[4:19], s[0:1], 0")
    if cfg.TS:
        for i in range(12):
            A(f"s_mov_b64 s[{64+2*i}:{65+2*i}], 0")
        A("s_memrealtime s[64:65]")
    if cfg.SPIN:
        A("s_memrealtime s[90:91]")
    A("""v_lshrrev_b32 v2, 6, v0
    v_and_b32 v1, 63, v0
    v_readfirstlane_b32 s3, v2
    """)
    if cfg.MAP == 0:
        A("s_and_b32 s48, s2, 15\ns_lshr_b32 s49, s2, 4")
    elif cfg.MAP == 1:
        A("s_and_b32 s48, s2, 7\ns_lshl_b32 s48, s48, 1\ns_bfe_u32 s49, s2, 0x10003\ns_add_u32 s48, s48, s49\ns_lshr_b32 s49, s2, 4")
    elif cfg.MAP == 2:
        A("s_and_b32 s48, s2, 3\ns_lshl_b32 s48, s48, 2\ns_bfe_u32 s49, s2, 0x20003\ns_add_u32 s48, s48, s49\ns_lshr_b32 s49, s2, 5\ns_lshl_b32 s49, s49, 1\ns_bfe_u32 s50, s2, 0x10002\ns_add_u32 s49, s49, s50")
    elif cfg.MAP == 3:
        A("s_bfe_u32 s48, s2, 0x40003\ns_lshr_b32 s49, s2, 7\ns_lshl_b32 s49, s49, 3\ns_and_b32 s50, s2, 7\ns_add_u32 s49, s49, s50")
    A("""s_lshl_b32 s62, s49, 4
    s_add_u32 s62, s62, s48
    s_cmp_ge_u32 s3, 4
    s_cbranch_scc1 L_aux""")

    SLOT = lambda n: 32 + 4 * n
    vOK, vOV, vSCA, vM, vL, vSA, vSB, vT, vTA, vTB, vSELA, vSELB, vPA, vPB = range(2, 16)
    vQ, vD0, vD1 = 16, 20, 24
    vNM, vTR, vX0, vX1 = 28, 29, 30, 31
    A("s_setprio 3")
    A(f"""v_and_b32 v{vOK}, 3, v1
    v_lshlrev_b32 v{vOK}, 4, v{vOK}
    v_lshrrev_b32 v{vT}, 4, v1
    v_lshl_add_u32 v{vOK}, v{vT}, 6, v{vOK}
    v_bfe_u32 v{vT}, v1, 2, 2
    v_lshl_add_u32 v{vOK}, v{vT}, 8, v{vOK}
    s_lshl_b32 s50, s3, 12
    v_add_u32 v{vOK}, s50, v{vOK}
    s_lshl_b32 s51, s62, 20
    s_mov_b32 s52, 0
    s_mov_b32 s22, 0x100000
    s_mov_b32 s23, 0x20000
    s_lshr_b32 s53, s62, {cfg.RSH}
    s_mul_i32 s53, s53, {cfg.ROT * 16384}
    s_and_b32 s53, s53, 0xfffff
    s_mov_b32 s54, s53
    s_waitcnt lgkmcnt(0)
    s_add_u32 s20, s6, s51
    s_addc_u32 s21, s7, s52
    s_and_b32 s21, s21, 0xffff""")

    def issue(n, slot, wait=True, depth=None):
        if depth is None:
            depth = cfg.NP if n < P else (cfg.NK if n < 256 else cfg.NV)
        if wait:
            A(f"s_waitcnt vmcnt({depth-1})")
        isv = n >= 256
        so = "s54" if isv else "s53"
        A(f"buffer_load_dwordx4 {q(SLOT(slot))}, v{vOV if isv else vOK}, {'s[24:27]' if isv else 's[20:23]'}, {so} offen offset:{(n & 3) * 1024} nt")
        if (n & 3) == 3:
            A(f"s_add_u32 {so}, {so}, 0x4000")
            if cfg.ROT:
                A(f"s_and_b32 {so}, {so}, 0xfffff")

    if cfg.NOK:
        A("s_barrier")
    for n in range(P):
        issue(n, n, wait=(n >= N))
        if cfg.QBAR and n == cfg.QBAR:
            A("s_barrier")
        if n == N:
            ts(8)
        if n == N + 20:
            ts(9)
        if n == N - 1:
            A(f"""s_add_u32 s24, s8, s51
            s_addc_u32 s25, s9, s52
            s_and_b32 s25, s25, 0xffff
            s_mov_b32 s26, 0x100000
            s_mov_b32 s27, 0x20000
            s_lshl_b32 s55, s49, 2
            s_add_u32 s55, s55, {WS_E}
            s_load_dword s59, s[18:19], s55
            v_lshlrev_b32 v{vOV}, 4, v1
            v_add_u32 v{vOV}, s50, v{vOV}
            s_lshl_b32 s55, s3, 13
            s_add_u32 s55, s55, {L_SC}
            v_lshlrev_b32 v{vSCA}, 2, v1
            v_add_u32 v{vSCA}, s55, v{vSCA}
            v_mov_b32 v{vM}, 0xff800000
            s_mov_b32 s56, {hex(C_SCALE)}
            s_mov_b32 s57, {hex(C_LOG2E)}
            v_and_b32 v{vT}, 2, v1
            v_cmp_eq_u32 vcc, 0, v{vT}
            v_mov_b32 v{vTA}, 0x01000c0c
            v_mov_b32 v{vTB}, 0x0c0c0100
            v_cndmask_b32 v{vSELA}, v{vTA}, v{vTB}, vcc
            v_mov_b32 v{vTA}, 0x03020c0c
            v_mov_b32 v{vTB}, 0x0c0c0302
            v_cndmask_b32 v{vSELB}, v{vTA}, v{vTB}, vcc
            v_and_b32 v{vX0}, 1, v1
            v_lshlrev_b32 v{vX0}, 8, v{vX0}
            v_lshrrev_b32 v{vT}, 2, v1
            v_lshl_add_u32 v{vX0}, v{vT}, 4, v{vX0}
            v_add_u32 v{vX0}, {L_Q}, v{vX0}""")
    ts(1)
    if not cfg.NOK:
        A("s_barrier")
    A(f"ds_read_b128 {q(vQ)}, v{vX0}")
    A("s_waitcnt lgkmcnt(0)")
    ts(2)

    def chain_ops(c, D, tmp):
        t = c & 3
        S = vSA if (c & 4) == 0 else vSB
        rs = [r for r in range(4) if r != t]
        return [
            f"v_add_f32_dpp v{tmp}, v{D+rs[0]}, v{D+t} {ror(t - rs[0])} row_mask:0xf bank_mask:0xf",
            f"v_add_f32_dpp v{tmp}, v{D+rs[1]}, v{tmp} {ror(t - rs[1])} row_mask:0xf bank_mask:0xf",
            f"v_add_f32_dpp v{S}, v{D+rs[2]}, v{tmp} {ror(t - rs[2])} row_mask:0xf bank_mask:{hex(1 << t)}",
        ]

    def finalize(off=None):
        A(f"""v_cvt_pk_bf16_f32 v{vT}, v{vSA}, v{vSB}
        v_lshlrev_b32 v{vTA}, 16, v{vT}
        v_and_b32 v{vTB}, 0xffff0000, v{vT}
        v_mul_f32 v{vTA}, s56, v{vTA}
        v_mul_f32 v{vTB}, s56, v{vTB}
        v_max3_f32 v{vM}, v{vM}, v{vTA}, v{vTB}
        v_cvt_pk_bf16_f32 v{vT}, v{vTA}, v{vTB}
        ds_write_b32 v{vSCA}, v{vT}
        v_add_u32 v{vSCA}, 0x100, v{vSCA}""")

    Dof = lambda n: vD0 if n == 0 else (vD1 if n == P - 1 else SLOT(n - 1))
    tmps = [vPA, vPB, vX1]
    ring_at = {}
    for k in range(LK):
        ring_at[(P - 8) * (k + 1) // LK] = k
    for s in range(P + 3):
        if s in ring_at:
            k = ring_at[s]
            assert s >= k + 1 + 4 + 1
            issue(P + k, k)
        if P - 8 <= s < P:
            A(f"s_waitcnt vmcnt({P - 1 - s + LK})")
        if s < P:
            A(f"v_mfma_f32_16x16x32_bf16 {q(Dof(s))}, {q(SLOT(s))}, {q(vQ)}, 0")
        else:
            A("s_nop 0")
        for (lag, opi) in ((4, 2), (3, 1), (2, 0)):
            c = s - lag
            if 0 <= c < P - 1:
                A(chain_ops(c, Dof(c), tmps[c % 3])[opi])
            else:
                A("s_nop 0")
        c = s - 4
        if c >= 0 and (c & 7) == 7 and c < P - 1:
            finalize()
    ts(3)

    def kstep(c, nissue):
        issue(nissue, nissue % 8)
        A(f"v_mfma_f32_16x16x32_bf16 {q(vD1 if c & 1 else vD0)}, {q(SLOT(c % 8))}, {q(vQ)}, 0")
        pc = (c - 1) % 8
        ops = chain_ops(pc, vD1 if pc & 1 else vD0, vX1)
        A("s_nop 1")
        A(ops[0]); A("s_nop 1"); A(ops[1]); A("s_nop 1"); A(ops[2])
        if pc == 7:
            finalize()

    nkit = (256 - P) // 8
    A(f"s_mov_b32 s58, {nkit - 1}")
    A("L_kloop:")
    for c in range(8):
        kstep(c, P + c + LK)
    A("s_sub_u32 s58, s58, 1\ns_cmp_lg_u32 s58, 0\ns_cbranch_scc1 L_kloop")
    for c in range(248, 256):
        kstep(c, c + LK)
    A("s_nop 7")
    ops = chain_ops(7, vD1, vX1)
    A(ops[0]); A("s_nop 1"); A(ops[1]); A("s_nop 1"); A(ops[2])
    finalize()
    ts(4)
    A(f"v_subrev_u32 v{vSCA}, 0x2000, v{vSCA}")
    A(f"ds_read_b32 v{vTR}, v{vSCA}")
    extra = list(range(256 + LK, 256 + LV))
    if extra:
        issue(extra[0], extra[0] % 8)
    def xreduce(v, op, tmp):
        A(f"""s_nop 1
        {op}_dpp v{v}, v{v}, v{v} row_ror:4 row_mask:0xf bank_mask:0xf
        s_nop 1
        {op}_dpp v{v}, v{v}, v{v} row_ror:8 row_mask:0xf bank_mask:0xf
        v_mov_b32 v{tmp}, v{v}
        s_nop 1
        v_permlane16_swap_b32 v{v}, v{tmp}
        {op} v{v}, v{v}, v{tmp}
        v_mov_b32 v{tmp}, v{v}
        s_nop 1
        v_permlane32_swap_b32 v{v}, v{tmp}
        {op} v{v}, v{v}, v{tmp}""")
    xreduce(vM, "v_max_f32", vT)
    A(f"""v_cvt_pk_bf16_f32 v{vM}, v{vM}, v{vM}
    v_lshlrev_b32 v{vM}, 16, v{vM}
    v_mul_f32 v{vM}, s57, v{vM}
    v_sub_f32 v{vNM}, 0, v{vM}
    v_mov_b32 v{vL}, 0""")
    for r in range(16, 28):
        A(f"v_mov_b32 v{r}, 0")
    vO = vQ
    def expblock():
        A(f"""s_waitcnt lgkmcnt(0)
        v_lshlrev_b32 v{vTA}, 16, v{vTR}
        v_and_b32 v{vTB}, 0xffff0000, v{vTR}
        v_fma_f32 v{vTA}, v{vTA}, s57, v{vNM}
        v_fma_f32 v{vTB}, v{vTB}, s57, v{vNM}
        v_exp_f32 v{vTA}, v{vTA}
        v_exp_f32 v{vTB}, v{vTB}
        v_add_f32 v{vL}, v{vL}, v{vTA}
        s_nop 0
        v_add_f32 v{vL}, v{vL}, v{vTB}
        v_cvt_pk_bf16_f32 v{vT}, v{vTA}, v{vTB}""")
    expblock()
    A(f"v_perm_b32 v{vPA}, v{vT}, v{vT}, v{vSELA}\nv_perm_b32 v{vPB}, v{vT}, v{vT}, v{vSELB}")
    for n in extra[1:]:
        issue(n, n % 8)
    A("s_nop 1")

    def vstep(c, missue, waitn=None, depth=None):
        pb = vD1 if c & 1 else vD0
        build(pb, vPA if (c & 4) == 0 else vPB, c & 3)
        if missue is not None:
            issue(256 + missue, missue % 8, depth=depth)
        else:
            A(f"s_waitcnt vmcnt({waitn})\ns_nop 0")
        A(f"v_mfma_f32_16x16x32_bf16 {q(vO)}, {q(SLOT(c % 8))}, {q(pb)}, {q(vO)}")

    vFA, vFM = vSA, vSB
    def vbody(depth, fc):
        for c in range(8):
            vstep(c, c + LV, depth=depth)
            if c == 0:
                A(f"v_add_u32 v{vSCA}, 0x100, v{vSCA}\nds_read_b32 v{vTR}, v{vSCA}")
            if c == 2:
                expblock()
            if c == 4:
                A(f"v_perm_b32 v{vPA}, v{vT}, v{vT}, v{vSELA}")
            if c == 6 and fc:
                A(f"ds_read_b32 v{vFM}, v{vX0}")
            if c == 7:
                A(f"v_perm_b32 v{vPB}, v{vT}, v{vT}, v{vSELB}")
    def vloop(label, depth):
        A(f"{label}:")
        vbody(depth, False)
        A(f"s_sub_u32 s58, s58, 1\ns_cmp_lg_u32 s58, s63\ns_cbranch_scc1 {label}")
    A("s_mov_b32 s58, 31")
    if cfg.VODD:
        A(f"s_getreg_b32 s63, hwreg(HW_REG_XCC_ID, 0, 1)\ns_cmp_eq_u32 s63, 0\ns_cselect_b32 s63, {cfg.VEND + cfg.VODD}, {cfg.VEND}")
    else:
        A(f"s_mov_b32 s63, {cfg.VEND}")
    if cfg.FC:
        A(f"""v_mov_b32 v{vX0}, {L_FC}
        s_lshl_b32 s55, s3, 2
        v_add_u32 v{vFA}, s55, v{vX0}
        v_mov_b32 v{vX1}, s58
        ds_write_b32 v{vFA}, v{vX1} offset:16""")
        for lab, depth in (("L_vmid", cfg.NV), ("L_vlo", cfg.NLO), ("L_vhi", cfg.NHI)):
            A(f"{lab}:")
            vbody(depth, True)
            if lab != "L_vhi":
                A("s_branch L_vbot")
        A(f"""L_vbot:
        s_sub_u32 s58, s58, 1
        v_mov_b32 v{vX1}, s58
        s_waitcnt lgkmcnt(0)
        v_readfirstlane_b32 s55, v{vFM}
        ds_write_b32 v{vFA}, v{vX1} offset:16
        s_cmp_eq_u32 s58, s63
        s_cbranch_scc1 L_vout
        s_cmp_eq_u32 s55, 1
        s_cbranch_scc1 L_vmid
        s_cmp_eq_u32 s55, 0
        s_cbranch_scc1 L_vlo
        s_branch L_vhi
        L_vout:""")
    else:
        vloop("L_vloop", cfg.NV)
    if cfg.VEND:
        A("s_mov_b32 s63, 0")
        vloop("L_vloop2", cfg.NE)
    c = 248
    while c + LV < 256:
        vstep(c, c + LV, depth=cfg.NE if cfg.VEND else None)
        c += 1
    ts(5)
    xreduce(vL, "v_add_f32", vT)
    A(f"""v_and_b32 v{vX0}, 1, v1
    v_lshlrev_b32 v{vX0}, 5, v{vX0}
    v_add_u32 v{vX0}, {L_ML}, v{vX0}
    s_lshl_b32 s55, s3, 3
    v_add_u32 v{vX1}, s55, v{vX0}
    v_mov_b32 v{vTA}, v{vM}
    v_mov_b32 v{vTB}, v{vL}
    ds_write_b64 v{vX1}, v[{vTA}:{vTB}]
    s_waitcnt lgkmcnt(0)
    s_barrier""")
    m0 = SLOT(9)
    A(f"""ds_read_b128 {q(m0)}, v{vX0}
    ds_read_b128 {q(m0+4)}, v{vX0} offset:16
    s_lshl_b32 s55, s3, 10
    s_add_u32 s55, s55, {L_O}
    v_lshlrev_b32 v{vX1}, 4, v1
    v_add_u32 v{vX1}, s55, v{vX1}
    s_waitcnt lgkmcnt(0)
    v_max3_f32 v{vT}, v{m0}, v{m0+2}, v{m0+4}
    v_max_f32 v{vT}, v{vT}, v{m0+6}
    v_sub_f32 v{m0}, v{m0}, v{vT}
    v_sub_f32 v{m0+2}, v{m0+2}, v{vT}
    v_sub_f32 v{m0+4}, v{m0+4}, v{vT}
    v_sub_f32 v{m0+6}, v{m0+6}, v{vT}
    v_sub_f32 v{vTA}, v{vM}, v{vT}
    v_exp_f32 v{m0}, v{m0}
    v_exp_f32 v{m0+2}, v{m0+2}
    v_exp_f32 v{m0+4}, v{m0+4}
    v_exp_f32 v{m0+6}, v{m0+6}
    v_exp_f32 v{vTA}, v{vTA}
    v_mul_f32 v{vTB}, v{m0}, v{m0+1}
    v_fmac_f32 v{vTB}, v{m0+2}, v{m0+3}
    v_fmac_f32 v{vTB}, v{m0+4}, v{m0+5}
    v_fmac_f32 v{vTB}, v{m0+6}, v{m0+7}
    v_rcp_f32 v{vTB}, v{vTB}
    s_nop 0
    v_mul_f32 v{vTA}, v{vTA}, v{vTB}""")
    while c < 256:
        vstep(c, None, 255 - c)
        c += 1
    A("s_nop 7")
    for r in range(4):
        A(f"v_mul_f32 v{vO+r}, v{vO+r}, v{vTA}")
    A(f"""ds_write_b128 v{vX1}, {q(vO)}
    s_waitcnt lgkmcnt(0)""")
    ts(6)
    A("s_barrier")
    G = 192 // cfg.R
    sh = {4: 2, 8: 1, 16: 0}[cfg.R]
    A(f"""s_sub_u32 s51, s48, s49
    s_and_b32 s51, s51, 15
    s_and_b32 s50, s51, {(1 << sh) - 1}
    s_cbranch_scc1 L_sdone
    s_cmp_ge_u32 s3, {0 if ('y' in cfg.ABL or 'p' in cfg.ABL) else cfg.PW}
    s_cbranch_scc1 L_sdone
    s_lshr_b32 s51, s51, {sh}
    s_mul_i32 s52, s51, {G}
    v_add_u32 v0, s52, v1
    s_add_u32 s59, s59, {K_TAG}
    s_mul_i32 s50, s49, {16*YSLOT}
    s_add_u32 s40, s18, s50
    s_addc_u32 s41, s19, 0
    s_and_b32 s41, s41, 0xffff
    s_mov_b32 s42, {16*YSLOT}
    s_mov_b32 s43, 0x20000
    s_mul_i32 s50, s49, 1152
    s_add_u32 s44, s14, s50
    s_addc_u32 s45, s15, 0
    s_and_b32 s45, s45, 0xffff
    s_mov_b32 s46, 1152
    s_mov_b32 s47, 0x20000
    v_lshlrev_b32 v2, 4, v0
    v_lshlrev_b32 v3, 2, v0
    v_lshlrev_b32 v6, 1, v0
    s_mov_b32 s58, 0x100000
    s_mov_b32 exec_lo, {hex(((1 << G) - 1) & 0xffffffff)}
    s_mov_b32 exec_hi, {hex(((1 << G) - 1) >> 32)}
    s_barrier
    s_branch L_poll
    L_repoll:
    s_sleep {cfg.YSLEEP}
    L_poll:""")
    R = 32
    for k in range(16):
        A(f"s_mov_b32 s50, {k*YSLOT}\nbuffer_load_dwordx4 {q(R+4*k)}, v2, s[40:43], s50 offen {cfg.YLD}")
    A("s_sub_u32 s58, s58, 1")
    for k in range(0, 16, 2):
        A(f"s_waitcnt vmcnt({14 - k})")
        a_, b_ = R + 4 * k, R + 4 * k + 4
        if k == 0:
            A(f"v_min_u32 v4, v{a_+3}, v{b_+3}\nv_max_u32 v5, v{a_+3}, v{b_+3}")
        else:
            A(f"v_min3_u32 v4, v4, v{a_+3}, v{b_+3}\nv_max3_u32 v5, v5, v{a_+3}, v{b_+3}")
        A(f"v_pk_add_f32 v[{a_}:{a_+1}], v[{a_}:{a_+1}], v[{b_}:{b_+1}]\nv_add_f32 v{a_+2}, v{a_+2}, v{b_+2}")
        if k:
            A(f"v_pk_add_f32 v[{R}:{R+1}], v[{R}:{R+1}], v[{a_}:{a_+1}]\nv_add_f32 v{R+2}, v{R+2}, v{a_+2}")
    A(f"""v_xor_b32 v4, s59, v4
    v_xor_b32 v5, s59, v5
    v_or_b32 v4, v4, v5
    v_cmp_ne_u32 vcc, 0, v4
    v_cvt_pk_bf16_f32 v4, v{R}, v{R+1}
    v_cvt_pk_bf16_f32 v5, v{R+2}, v{R+2}
    s_cbranch_scc1 L_pollout
    s_nop 2
    s_cbranch_vccnz L_repoll
    L_pollout:
    buffer_store_dword v4, v3, s[44:47], 0 offen
    buffer_store_short v5, v6, s[44:47], 0 offen offset:768""")
    ts(7)
    A(f"""s_cmp_lg_u32 s51, 0
    s_cbranch_scc1 L_sdone
    s_lshl_b32 s50, s49, 2
    s_add_u32 s50, s50, {WS_E}
    v_mov_b32 v7, s50
    v_mov_b32 v8, s59
    s_mov_b64 exec, 1
    global_store_dword v7, v8, s[18:19] sc1""")
    A("L_sdone:")
    ts_store()
    A("s_endpgm")

    A("L_aux:")
    A("s_sub_u32 s61, s3, 4")
    vOW, vA, vB, vC = 2, 3, 8, 9
    vSELA2, vSELB2, vST = 45, 46, 47
    A(f"s_cmp_eq_u32 s61, {7 if 'q' in cfg.ABL else 0}\ns_cbranch_scc1 L_qwave\ns_waitcnt lgkmcnt(0)\n" + ("s_barrier\n" if cfg.QBAR else "") + "s_branch L_qdone")
    XR, WR, WP, QA = 48, 72, 148, 224
    vXO, vWO, vPO = 10, 11, 12
    A(f"""L_qwave:
    s_setprio 2
    v_and_b32 v{vA}, 15, v1
    v_lshrrev_b32 v{vB}, 4, v1
    v_mul_u32_u24 v{vXO}, 1152, v{vA}
    v_mad_u32_u24 v{vXO}, v{vB}, 36, v{vXO}
    v_mad_u32_u24 v{vXO}, v{vB}, 36, v{vXO}
    v_mul_u32_u24 v{vWO}, {36*8192}, v{vB}
    v_lshl_add_u32 v{vWO}, v{vA}, 3, v{vWO}
    v_lshlrev_b32 v{vPO}, 14, v{vB}
    v_lshl_add_u32 v{vPO}, v{vA}, 4, v{vPO}
    s_lshl_b32 s51, s48, 9
    s_mov_b32 s38, {16*1152}
    s_mov_b32 s39, 0x20000
    s_sub_u32 s30, {576*8192}, s51
    s_mov_b32 s31, 0x20000
    s_lshl_b32 s52, s48, 16
    s_add_u32 s52, s52, {WS_Q}
    s_mov_b32 s46, 0x10000
    s_mov_b32 s47, 0x20000
    s_mov_b32 s53, s49
    s_mov_b32 s54, 0
    s_mov_b32 s56, 0x05040100
    s_mov_b32 s57, 0x07060302
    s_waitcnt lgkmcnt(0)
    s_mov_b32 s36, s4
    s_and_b32 s37, s5, 0xffff
    s_add_u32 s28, s10, s51
    s_addc_u32 s29, s11, 0
    s_and_b32 s29, s29, 0xffff
    s_add_u32 s44, s18, s52
    s_addc_u32 s45, s19, 0
    s_and_b32 s45, s45, 0xffff
    s_lshl_b32 s50, s49, 2
    s_add_u32 s50, s50, {WS_E}
    s_load_dword s60, s[18:19], s50
    v_mov_b32 v15, 0xff
    L_produce:
    s_lshr_b32 s58, s53, 2
    s_and_b32 s59, s53, 3
    s_mul_i32 s50, s59, {144*8192}
    s_lshl_b32 s55, s58, 7
    s_add_u32 s50, s50, s55
    s_mul_i32 s55, s59, 288""")
    for n in range(36):
        A(f"buffer_load_dwordx2 v[{WR+2*n}:{WR+2*n+1}], v{vWO}, s[28:31], s50 offen {cfg.WQFLAG}")
        if n < 35:
            A("s_add_u32 s50, s50, 0x2000")
        if n == 7:
            for i in range(4):
                A(f"buffer_load_dwordx4 {q(XR+4*i)}, v{vXO}, s[36:39], s55 offen offset:{16*i} {cfg.WQFLAG}")
            A(f"buffer_load_dwordx2 v[{XR+16}:{XR+17}], v{vXO}, s[36:39], s55 offen offset:64 {cfg.WQFLAG}")
    ts(6)
    A(f"v_and_b32 v13, 0x30, v1\nv_add_u32 v13, {WS_E}, v13\nglobal_load_dwordx4 v[16:19], v13, s[18:19] {cfg.WQFLAG}")
    A("s_lshl_b32 s50, s59, 10\ns_lshl_b32 s55, s58, 8\ns_add_u32 s50, s50, s55")
    for st in range(5):
        rows = 8 if st < 4 else 4
        last = 8 * st + rows - 1
        A(f"s_waitcnt vmcnt({36 - last if st < 4 else 0})")
        for c in range(4):
            for m in range(rows // 2):
                r0 = 8 * st + 2 * m
                A(f"v_perm_b32 v{WP + 18*c + 4*st + m}, v{WR + 2*(r0+1) + (c >> 1)}, v{WR + 2*r0 + (c >> 1)}, {'s57' if c & 1 else 's56'}")
        A("s_nop 1")
        for c in range(4):
            w = WP + 18 * c + 4 * st
            cin = "0" if st == 0 else q(QA + 4 * c)
            if st < 4:
                A(f"v_mfma_f32_16x16x32_bf16 {q(QA+4*c)}, {q(XR+4*st)}, {q(w)}, {cin}")
            else:
                A(f"v_mfma_f32_16x16x16_bf16 {q(QA+4*c)}, v[{XR+16}:{XR+17}], v[{w}:{w+1}], {cin}")
    A(f"""s_waitcnt lgkmcnt(0)
    s_add_u32 s27, s60, {K_TAG}
    s_lshr_b32 s24, s27, 8
    s_lshr_b32 s25, s27, 16
    s_lshr_b32 s26, s27, 24
    s_nop 3""")
    if 's' in cfg.ABL:
        A("s_branch L_qdone")
    tagr = ["s27", "s24", "s25", "s26"]
    for r in range(4):
        for c in range(4):
            A(f"v_bfi_b32 v{QA+16+4*r+c}, v15, {tagr[c]}, v{QA+4*c+r}")
        A(f"buffer_store_dwordx4 {q(QA+16+4*r)}, v{vPO}, s[44:47], s50 offen {cfg.QST}")
        if r < 3:
            A("s_add_u32 s50, s50, 0x1000")
    ts(7)
    A(f"""s_cmp_eq_u32 s54, 0
    s_cbranch_scc1 L_first
    s_waitcnt vmcnt(0)
    s_add_u32 s53, s53, 1
    s_cmp_lt_u32 s53, 16
    s_cbranch_scc1 L_produce
    s_branch L_consume
    L_first:
    """)
    for rb in range(4):
        A(f"v_add_u32 v{20+4*rb}, {K_TAG}, v{16+rb}")
        for c in range(1, 4):
            A(f"v_lshrrev_b32 v{20+4*rb+c}, {8*c}, v{20+4*rb}")
    A(f"""
    {"s_barrier" if cfg.QBAR else f"s_sleep {cfg.QSLEEP0}"}
    L_consume:
    v_lshlrev_b32 v{vA}, 4, v1
    s_lshl_b32 s50, s49, 12
    s_mov_b32 s58, {cfg.QPOLLS}
    L_qpoll:""")
    for rb in range(4):
        A(f"buffer_load_dwordx4 {q(XR+4*rb)}, v{vA}, s[44:47], s50 offen offset:{1024*rb} {cfg.QLD}")
    A("s_waitcnt vmcnt(0)")
    for i in range(16):
        A(f"v_xor_b32 v{WR+i}, v{20+i}, v{XR+i}")
    A(f"v_or3_b32 v{WR}, v{WR}, v{WR+1}, v{WR+2}")
    for i in range(3, 15, 2):
        A(f"v_or3_b32 v{WR}, v{WR}, v{WR+i}, v{WR+i+1}")
    A(f"""v_or_b32 v{WR}, v{WR}, v{WR+15}
    v_and_b32 v{WR}, 0xff, v{WR}
    v_cmp_ne_u32 vcc, 0, v{WR}
    s_mov_b32 s55, 0x80
    s_nop 4
    s_cbranch_vccz L_qready
    s_cmp_lg_u32 s54, 0
    s_cbranch_scc1 L_qready
    s_sleep {cfg.QSLEEP}
    s_sub_u32 s58, s58, 1
    s_cbranch_scc0 L_qpoll
    s_mov_b32 s54, 1
    s_mov_b32 s53, 0
    s_lshl_b32 s52, s62, 16
    s_add_u32 s52, s52, {WS_F}
    s_add_u32 s44, s18, s52
    s_addc_u32 s45, s19, 0
    s_and_b32 s45, s45, 0xffff
    s_branch L_produce
    L_qready:""")
    ts(9)
    for i in range(16):
        A(f"v_bfi_b32 v{XR+i}, v15, s55, v{XR+i}")
    A(f"""v_lshlrev_b32 v{vB}, 3, v1
    v_add_u32 v{vB}, {L_Q}, v{vB}
    v_pk_add_f32 v[{XR}:{XR+1}], v[{XR}:{XR+1}], v[{XR+4}:{XR+5}]
    v_pk_add_f32 v[{XR+2}:{XR+3}], v[{XR+2}:{XR+3}], v[{XR+6}:{XR+7}]
    v_pk_add_f32 v[{XR+8}:{XR+9}], v[{XR+8}:{XR+9}], v[{XR+12}:{XR+13}]
    v_pk_add_f32 v[{XR+10}:{XR+11}], v[{XR+10}:{XR+11}], v[{XR+14}:{XR+15}]
    v_pk_add_f32 v[{XR}:{XR+1}], v[{XR}:{XR+1}], v[{XR+8}:{XR+9}]
    v_pk_add_f32 v[{XR+2}:{XR+3}], v[{XR+2}:{XR+3}], v[{XR+10}:{XR+11}]
    v_cvt_pk_bf16_f32 v{XR}, v{XR}, v{XR+1}
    v_cvt_pk_bf16_f32 v{XR+1}, v{XR+2}, v{XR+3}
    ds_write_b64 v{vB}, v[{XR}:{XR+1}]
    s_setprio 0
    L_qdone:""")
    A(f"""s_lshl_b32 s50, s49, 2
    s_add_u32 s50, s50, {WS_E}
    s_load_dword s60, s[18:19], s50
    s_mul_i32 s50, s62, {YSLOT}
    s_add_u32 s40, s18, s50
    s_addc_u32 s41, s19, 0
    s_and_b32 s41, s41, 0xffff
    s_mov_b32 s42, {YSLOT}
    s_mov_b32 s43, 0x20000
    s_mul_i32 s50, s61, 48
    v_add_u32 v{vST}, s50, v1
    v_and_b32 v{vA}, 2, v1
    v_cmp_eq_u32 vcc, 0, v{vA}
    v_mov_b32 v{vB}, 0x01000c0c
    v_mov_b32 v{vC}, 0x0c0c0100
    v_cndmask_b32 v{vSELA2}, v{vB}, v{vC}, vcc
    v_mov_b32 v{vB}, 0x03020c0c
    v_mov_b32 v{vC}, 0x0c0c0302
    v_cndmask_b32 v{vSELB2}, v{vB}, v{vC}, vcc""")
    if cfg.FC:
        A(f"""s_mov_b32 s50, {WS_E}
        s_load_dword s63, s[18:19], s50
        v_mov_b32 v{vA}, {L_FC}
        v_mov_b32 v{vB}, 1
        v_mov_b32 v{vC}, 99
        ds_write2_b32 v{vA}, v{vB}, v{vC} offset0:0 offset1:4""")
    A("s_waitcnt lgkmcnt(0)")
    ts(1)
    A("s_barrier")
    WS = lambda n: 64 + 4 * n
    NWS = 48
    YACC = 12
    OB0, OB1 = 4, 8
    vOP0, vOP1 = 56, 57
    vAO, vAW, vAY, vAR = 58, 59, 60, 61
    vS1, vS2, vS3 = 62, 63, 3
    A(f"""v_mov_b32 v{vS1}, v{vSELA2}
    v_mov_b32 v{vS2}, v{vSELB2}
    v_lshlrev_b32 v{vS3}, 4, v{vST}
    s_add_u32 s60, s60, {K_TAG}
    s_mul_i32 s50, s48, {256*1152}
    s_add_u32 s32, s12, s50
    s_addc_u32 s33, s13, 0
    s_and_b32 s33, s33, 0xffff
    s_mov_b32 s34, {256*1152}
    s_mov_b32 s35, 0x20000
    v_bfe_u32 v8, v1, {5 if cfg.SM else 4}, 1
    v_lshlrev_b32 v8, 7, v8
    v_bfe_u32 v9, v1, {4 if cfg.SM else 5}, 1
    v_lshlrev_b32 v9, {3 if cfg.SM else 0}, v9
    v_add_u32 v8, v8, v9
    v_bfe_u32 v9, v1, 3, 1
    v_lshl_add_u32 v8, v9, 4, v8
    s_lshl_b32 s50, s61, 5
    v_add_u32 v8, s50, v8
    v_mul_u32_u24 v{vOW}, 1152, v8
    v_and_b32 v9, 7, v1
    v_lshl_add_u32 v{vOW}, v9, 4, v{vOW}
    s_mul_i32 s52, s61, {24*1024}""")
    if cfg.PT:
        A("s_lshl_b32 s50, s62, 20\nv_mov_b32 v8, s50\ns_mul_i32 s50, s49, 1152\nv_mov_b32 v9, s50\ns_mov_b64 exec, 1")
        if cfg.PT & 1:
            A("global_load_dword v10, v8, s[8:9] nt")
        if cfg.PT & 2:
            A("global_load_dword v11, v9, s[14:15] nt")
        A("s_mov_b64 exec, -1\ns_waitcnt vmcnt(0)")
    for k in range(0 if 'w' in cfg.ABL else 72):
        rg, cb = divmod(k, 9)
        u, t = rg >> 2, rg & 3
        if k >= cfg.WO_DEPTH:
            A(f"s_waitcnt vmcnt({cfg.WO_DEPTH - 1})")
        if cfg.SM:
            t, cb = divmod(k >> 1, 9)
            A(f"s_mov_b32 s50, {(2*t + (k & 1)) * 1152 + cb * 128}")
        else:
            A(f"s_mov_b32 s50, {(8*u + 2*t) * 1152 + cb * 128}")
        if k < NWS:
            A(f"buffer_load_dwordx4 {q(WS(k))}, v{vOW}, s[32:35], s50 offen{wf}")
        else:
            A(f"s_add_u32 m0, s52, {L_WO + (k - NWS) * 1024}\ns_nop 0\nbuffer_load_dwordx4 v{vOW}, s[32:35], s50 offen{wf} lds")
    A(f"""v_bfe_u32 v8, v1, 2, 2
    v_lshlrev_b32 v{vAO}, 6, v8
    v_lshrrev_b32 v8, 4, v1
    v_lshl_add_u32 v{vAO}, v8, 4, v{vAO}
    v_and_b32 v9, 1, v1
    v_lshl_add_u32 v{vAO}, v9, 3, v{vAO}
    s_lshl_b32 s50, s61, 8
    s_add_u32 s50, s50, {L_O}
    v_add_u32 v{vAO}, s50, v{vAO}
    v_lshlrev_b32 v{vAW}, 4, v1
    v_add_u32 v{vAW}, s52, v{vAW}
    v_and_b32 v9, 15, v1
    v_lshlrev_b32 v{vAY}, 5, v9
    v_lshl_add_u32 v{vAY}, v8, 3, v{vAY}
    s_mul_i32 s50, s61, 2560
    s_add_u32 s50, s50, {L_Y}
    v_add_u32 v{vAY}, s50, v{vAY}
    v_lshrrev_b32 v{vAR}, 1, v{vS3}
    v_add_u32 v{vAR}, {L_Y}, v{vAR}
    v_lshrrev_b32 v0, 2, v{vS3}
    v_add_u32 v0, {L_Y + 1536}, v0""")
    for r in range(OB0, OB0 + 8 + (36 if cfg.SM else 0)):
        A(f"v_mov_b32 v{r}, 0")
    if cfg.SM:
        A(f"v_bfe_u32 v{vS1}, v1, 1, 2\nv_xor_b32 v{vS2}, 1, v{vS1}\nv_lshl_add_u32 v{vS1}, v{vS2}, 2, v{vS1}\nv_mul_u32_u24 v{vS1}, 0x1111, v{vS1}")
    A("s_waitcnt vmcnt(0) lgkmcnt(0)")
    ts(2)
    if cfg.FC:
        gx = cfg.GX if cfg.FC == 2 else 0
        A(f"""s_cmp_lg_u32 s61, 3
        s_cbranch_scc1 L_noctl
        s_add_u32 s63, s63, {K_TAG}
        s_and_b32 s24, s2, 7
        s_lshr_b32 s25, s2, 3
        s_mul_i32 s26, s24, 4352
        s_add_u32 s26, s26, {WS_P}
        v_min_u32 v48, 32, v1
        v_lshlrev_b32 v48, 2, v48
        v_add_u32 v48, s26, v48
        s_lshl_b32 s50, s25, 2
        s_add_u32 s50, s50, s26
        v_mov_b32 v49, s50
        v_mov_b32 v50, {L_FC}
        s_mov_b32 s27, {cfg.CK0}
        s_mov_b32 s28, 0""")
        if cfg.PAR:
            A(f"s_getreg_b32 s29, hwreg(HW_REG_XCC_ID, 0, 1)\ns_cmp_eq_u32 s29, 0\ns_cselect_b32 s29, {4*cfg.PAR}, 0")
        if gx:
            A(f"""s_add_u32 s50, s26, 128
            v_mov_b32 v54, s50
            s_mul_i32 s50, s24, 4224
            s_add_u32 s50, s50, {WS_G}
            v_mov_b32 v55, s50
            v_and_b32 v56, 7, v1
            v_mul_u32_u24 v56, 4224, v56
            v_add_u32 v56, {WS_G}, v56""")
        A(f"""L_ctl:
        s_sleep 1
        ds_read_b32 v51, v50 offset:16
        s_waitcnt lgkmcnt(0)
        v_readfirstlane_b32 s50, v51
        s_cmp_gt_u32 s50, s27
        s_cbranch_scc1 L_ctl
        s_sub_u32 s30, s63, s27
        v_mov_b32 v52, s30
        s_mov_b64 exec, 1
        global_store_dword v49, v52, s[18:19]
        s_mov_b64 exec, -1
        global_load_dword v53, v48, s[18:19] sc1
        s_waitcnt vmcnt(0)""")
        if gx:
            A("v_readlane_b32 s36, v53, 32")
        A(f"""v_subrev_u32 v53, s30, v53
        v_cmp_gt_u32 vcc, 32, v53
        s_nop 3
        s_bcnt1_i32_b32 s31, vcc_lo
        s_lshl_b32 s37, s31, 1""")
        if gx:
            A(f"""s_sub_u32 s36, s36, s63
            s_cmp_lt_u32 s36, 17
            s_cselect_b32 s36, s36, 9
            s_mul_i32 s36, s36, {gx}
            s_add_u32 s37, s37, s36""")
        if cfg.PAR:
            A("s_add_u32 s37, s37, s29")
        off = 9 * gx + 2 * cfg.PAR
        A(f"""s_mov_b32 s38, 1
        s_cmp_ge_u32 s37, {2*cfg.THI + off}
        s_cselect_b32 s38, 2, s38
        s_cmp_lt_u32 s37, {2*cfg.TLO + off}
        s_cselect_b32 s38, 0, s38
        v_mov_b32 v51, s38
        ds_write_b32 v50, v51""")
        if gx:
            A(f"""s_add_u32 s28, s28, 1
            s_and_b32 s50, s28, {cfg.GMASK}
            s_cbranch_scc1 L_ctlnext
            s_sub_u32 s50, s31, 15
            s_cmp_ge_u32 s50, 2
            s_cbranch_scc1 L_ctlnext
            s_mov_b64 exec, 1
            global_store_dword v55, v52, s[18:19] sc1
            s_mov_b64 exec, -1
            global_load_dword v53, v56, s[18:19] sc1
            s_waitcnt vmcnt(0)
            v_subrev_u32 v53, s30, v53
            v_cmp_gt_u32 vcc, 32, v53
            s_lshl_b32 s50, 1, s24
            s_nop 3
            s_or_b32 s50, s50, vcc_lo
            s_and_b32 s50, s50, 0xff
            s_bcnt1_i32_b32 s50, s50
            s_lshl_b32 s50, s50, 1
            s_add_u32 s50, s50, s63
            v_mov_b32 v52, s50
            s_mov_b64 exec, 1
            global_store_dword v54, v52, s[18:19]
            s_mov_b64 exec, -1
            L_ctlnext:""")
        A(f"""s_sub_u32 s27, s27, {cfg.CKIT}
        s_cmp_gt_i32 s27, {cfg.VEND}
        s_cbranch_scc1 L_ctl
        s_waitcnt vmcnt(0) lgkmcnt(0)
        L_noctl:""")
    A("s_setprio 3\ns_barrier\ns_barrier")
    ts(3)
    for w in range(4):
        A(f"ds_read_b64 v[{48+2*w}:{49+2*w}], v{vAO} offset:{1024*w}")
    A(f"""s_waitcnt lgkmcnt(2)
    v_pk_add_f32 v[48:49], v[48:49], v[50:51]
    s_waitcnt lgkmcnt(0)
    v_pk_add_f32 v[52:53], v[52:53], v[54:55]
    v_pk_add_f32 v[48:49], v[48:49], v[52:53]
    """)
    if cfg.SM:
        A(f"v_cvt_pk_bf16_f32 v{vOP0}, v48, 0\nv_cvt_pk_bf16_f32 v{vOP1}, v49, 0\ns_nop 0")
        def sbuild(t):
            ob = OB1 if t & 1 else OB0
            r = []
            for odd in range(2):
                for a_ in range(4):
                    bank = 2 * (a_ & 1) + odd
                    r.append(f"v_mov_b32_dpp v{ob+a_}, v{vOP1 if a_ >> 1 else vOP0} {ror(bank - t)} row_mask:0xf bank_mask:{hex(1 << bank)}")
            return r
        if cfg.TS2:
            ts(8)
        for l in sbuild(0):
            A(l)
        A("s_nop 1")
        nov = (72 - NWS) // 2
        for m in range(36):
            t, cb = divmod(m, 9)
            ob = OB1 if t & 1 else OB0
            slot = 2 * m if 2 * m < NWS else 2 * m - NWS
            if 2 * m >= NWS:
                issued = min(72 - NWS, m - 1)
                A(f"s_waitcnt lgkmcnt({min(14, issued - (2 * m - NWS + 2))})")
            A(f"v_smfmac_f32_16x16x64_bf16 {q(YACC+4*cb)}, {q(ob)}, v[{WS(slot)}:{WS(slot)+7}], v{vS1}")
            if 1 <= m <= 72 - NWS:
                A(f"ds_read_b128 {q(WS(m-1))}, v{vAW} offset:{L_WO + (m-1)*1024}")
            if t < 3 and 1 <= cb <= 6:
                bl = sbuild(t + 1)
                for l in {1: bl[0:2], 2: bl[2:4], 3: bl[4:5], 4: bl[5:6], 5: bl[6:7], 6: bl[7:8]}[cb]:
                    A(l)
    else:
        A(f"""v_cvt_pk_bf16_f32 v48, v48, v49
        v_perm_b32 v{vOP0}, v48, v48, v{vS1}
        v_perm_b32 v{vOP1}, v48, v48, v{vS2}
        s_nop 0""")
        build(OB0, vOP0, 0)
        A("s_nop 1")
        for k in range(72):
            rg, cb = divmod(k, 9)
            ob = OB1 if rg & 1 else OB0
            slot = k if k < NWS else k - NWS
            if k == NWS:
                A("s_waitcnt lgkmcnt(0)")
            A(f"v_mfma_f32_16x16x32_bf16 {q(YACC+4*cb)}, {q(ob)}, {q(WS(slot))}, {'0' if rg == 0 else q(YACC+4*cb)}")
            if 1 <= k <= 72 - NWS:
                A(f"ds_read_b128 {q(WS(k-1))}, v{vAW} offset:{L_WO + (k-1)*1024}")
            if 1 <= cb <= 4 and rg < 7:
                nrg = rg + 1
                r = cb - 1
                A(f"v_mov_b32_dpp v{(OB1 if nrg & 1 else OB0)+r}, v{vOP1 if nrg >> 2 else vOP0} {ror(r - (nrg & 3))} row_mask:0xf bank_mask:{hex(1 << r)}")
    if cfg.TS2:
        ts(10)
    Y = lambda p: WS(30) + 2 * p
    for p in range(4):
        d = YACC + 4 * (2 * p)
        A(f"v_add_f32_dpp v{Y(p)}, v{d+1}, v{d} row_ror:8 row_mask:0xf bank_mask:0x3")
        A(f"v_add_f32_dpp v{Y(p)+1}, v{d+3}, v{d+2} row_ror:8 row_mask:0xf bank_mask:0x3")
    for p in range(4):
        d = YACC + 4 * (2 * p + 1)
        A(f"v_add_f32_dpp v{Y(p)}, v{d}, v{d+1} row_ror:8 row_mask:0xf bank_mask:0xc")
        A(f"v_add_f32_dpp v{Y(p)+1}, v{d+2}, v{d+3} row_ror:8 row_mask:0xf bank_mask:0xc")
        A(f"ds_write_b64 v{vAY}, v[{Y(p)}:{Y(p)+1}] offset:{512*p}")
    d = YACC + 32
    A(f"v_add_f32_dpp v{Y(4)}, v{d+1}, v{d} row_ror:8 row_mask:0xf bank_mask:0xf")
    A(f"v_add_f32_dpp v{Y(4)+1}, v{d+3}, v{d+2} row_ror:8 row_mask:0xf bank_mask:0xf")
    A(f"ds_write_b64 v{vAY}, v[{Y(4)}:{Y(4)+1}] offset:2048")
    A("s_mov_b32 exec_hi, 0xffff\nv_mov_b32 v15, s60\ns_waitcnt lgkmcnt(0)")
    ts(4)
    A("s_barrier")
    for w in range(4):
        A(f"ds_read_b64 v[{12+4*w}:{13+4*w}], v{vAR} offset:{2560*w}")
        A(f"ds_read_b32 v{14+4*w}, v0 offset:{2560*w}")
    A(f"""s_waitcnt lgkmcnt(4)
    v_pk_add_f32 v[12:13], v[12:13], v[16:17]
    v_add_f32 v14, v14, v18
    s_waitcnt lgkmcnt(0)
    v_pk_add_f32 v[20:21], v[20:21], v[24:25]
    v_add_f32 v22, v22, v26
    v_pk_add_f32 v[12:13], v[12:13], v[20:21]
    v_add_f32 v14, v14, v22
    """)
    if 'y' not in cfg.ABL:
        A(f"buffer_store_dwordx4 v[12:15], v{vS3}, s[40:43], 0 offen {cfg.YST}")
    ts(5)
    ts_store()
    if cfg.SPIN:
        A(f"L_spin:\ns_memrealtime s[92:93]\ns_waitcnt lgkmcnt(0)\ns_sub_u32 s92, s92, s90\ns_cmp_lt_u32 s92, {cfg.SPIN}\ns_cbranch_scc1 L_spin")
    A("L_end:\ns_endpgm")
    return "\n".join(o)

HEADER = open("standalone__gqa_block_cached__sampling.s.ref").read().split("; Override launch")[0]

def full(cfg):
    body = gen(cfg)
    return f"""{HEADER}; @launch grid=(256,1,1) block=(512,1,1) lds={LDS_BYTES}
.amdgcn_target "amdgcn-amd-amdhsa--gfx950"
.text
.globl {cfg.kname}
.p2align 8
.type {cfg.kname},@function
{body}
.section .rodata,"a"
.p2align 6
.amdhsa_kernel {cfg.kname}
  .amdhsa_next_free_vgpr 256
  .amdhsa_next_free_sgpr 96
  .amdhsa_accum_offset 256
  .amdhsa_group_segment_fixed_size 0
  .amdhsa_kernarg_size 64
  .amdhsa_user_sgpr_count 2
  .amdhsa_user_sgpr_kernarg_segment_ptr 1
  .amdhsa_system_sgpr_workgroup_id_x 1
.end_amdhsa_kernel
"""

if __name__ == "__main__":
    cfg = Cfg()
    out = sys.argv[1]
    for kv in sys.argv[2:]:
        k, v = kv.split("=")
        cur = getattr(cfg, k)
        setattr(cfg, k, type(cur)(int(v)) if isinstance(cur, (int, bool)) else v.replace('+', ' '))
    open(out, "w").write(full(cfg))
```

```python
import sys

NAME = "standalone__gqa_block_cached__sampling"

class Cfg:
    N = 5
    P = 56
    LV = 7
    LK = 7
    NP = 6
    NK = 5
    NV = 5
    WO_DEPTH = 2
    WFLAG = "nt"
    TS = False
    MAP = 0
    WARM = 2
    WARMF = ''
    WARMS = 0
    WO_MIX = 0
    WARMD = 18
    WB = 0
    FC = 2
    CK0 = 31
    CKIT = 2
    THI = 23
    TLO = 7
    GX = 2
    GMASK = 1
    PAR = 0
    NLO = 4
    NHI = 6
    NH2 = 7
    TH2 = 0
    TS2 = 0
    SM = 1
    ROT = 0
    RSH = 0
    PT = 1
    R = 4
    PW = 1
    YSLEEP = 0
    NSET = 1
    VEND = 6
    NE = 7
    VODD = 0
    ABL = ''
    WQFLAG = ''
    SPIN = 0
    NOK = 0
    QPOLLS = 64
    QSLEEP = 4
    QBAR = 0
    QST = ''
    QLD = 'sc1'
    YST = 'sc1'
    YLD = 'sc1'
    QSLEEP0 = 8
    kname = NAME + "_kernel"

L_WO = 0
L_SC = 98304
L_Y = L_SC + 32768
L_O = L_Y + 10240
L_Q = L_O + 4096
L_ML = L_Q + 512
L_FC = L_ML + 64
L_END = L_FC + 32
LDS_BYTES = L_END

WS_Q = 0x100000
WS_E = 0xF0000
WS_F = 0x1000000
YSLOT = 3072
WS_P = 0xD0000
WS_G = 0xE0000
K_TAG = 0x9e3779b9
C_SCALE = 0x3DB504F3
C_LOG2E = 0x3FB8AA3B

def ror(k):
    k = (4 * k) % 16
    return "quad_perm:[0,1,2,3]" if k == 0 else f"row_ror:{k}"

def q(b):
    return f"v[{b}:{b+3}]"

def gen(cfg):
    o = []
    def A(s):
        for line in s.split("\n"):
            o.append("    " + line.strip() if not line.strip().endswith(":") else line.strip())
    K = cfg.kname
    N, P, LV, LK = cfg.NP, cfg.P, cfg.LV, cfg.LK
    assert cfg.NK <= LK <= 7 and cfg.NV <= LV <= 7 and LV >= LK
    wf = (" " + cfg.WFLAG) if cfg.WFLAG else ""
    nts = [0]
    def ts(idx):
        if cfg.TS:
            A(f"s_memrealtime s[{64+2*idx}:{65+2*idx}]\ns_waitcnt lgkmcnt(0)")
    def ts_store():
        if cfg.TS:
            A(f"""s_mov_b64 exec, 1
            s_lshl_b32 s60, s2, 3
            s_add_u32 s60, s60, s3
            s_lshl_b32 s60, s60, 6
            s_add_u32 s60, s60, 0x400000
            v_mov_b32 v1, s60""")
            for i in range(12):
                A(f"v_mov_b32 v2, s{64+2*i}\nglobal_store_dword v1, v2, s[18:19] offset:{4*i}\ns_nop 1")
            A("s_getreg_b32 s60, hwreg(HW_REG_XCC_ID)\nv_mov_b32 v2, s60\nglobal_store_dword v1, v2, s[18:19] offset:48")

    def build(dst, src, t):
        for r in range(4):
            A(f"v_mov_b32_dpp v{dst+r}, v{src} {ror(r - t)} row_mask:0xf bank_mask:{hex(1 << r)}")

    A(f"{K}:")
    A(f"s_cmp_ge_u32 s2, 256\ns_cbranch_scc1 L_end")
    A("s_load_dwordx16 s[4:19], s[0:1], 0")
    if cfg.TS:
        for i in range(12):
            A(f"s_mov_b64 s[{64+2*i}:{65+2*i}], 0")
        A("s_memrealtime s[64:65]")
    if cfg.SPIN:
        A("s_memrealtime s[90:91]")
    A("""v_lshrrev_b32 v2, 6, v0
    v_and_b32 v1, 63, v0
    v_readfirstlane_b32 s3, v2
    """)
    if cfg.MAP == 0:
        A("s_and_b32 s48, s2, 15\ns_lshr_b32 s49, s2, 4")
    elif cfg.MAP == 1:
        A("s_and_b32 s48, s2, 7\ns_lshl_b32 s48, s48, 1\ns_bfe_u32 s49, s2, 0x10003\ns_add_u32 s48, s48, s49\ns_lshr_b32 s49, s2, 4")
    elif cfg.MAP == 2:
        A("s_and_b32 s48, s2, 3\ns_lshl_b32 s48, s48, 2\ns_bfe_u32 s49, s2, 0x20003\ns_add_u32 s48, s48, s49\ns_lshr_b32 s49, s2, 5\ns_lshl_b32 s49, s49, 1\ns_bfe_u32 s50, s2, 0x10002\ns_add_u32 s49, s49, s50")
    elif cfg.MAP == 3:
        A("s_bfe_u32 s48, s2, 0x40003\ns_lshr_b32 s49, s2, 7\ns_lshl_b32 s49, s49, 3\ns_and_b32 s50, s2, 7\ns_add_u32 s49, s49, s50")
    A("""s_lshl_b32 s62, s49, 4
    s_add_u32 s62, s62, s48
    s_cmp_ge_u32 s3, 4
    s_cbranch_scc1 L_aux""")

    SLOT = lambda n: 32 + 4 * n
    vOK, vOV, vSCA, vM, vL, vSA, vSB, vT, vTA, vTB, vSELA, vSELB, vPA, vPB = range(2, 16)
    vQ, vD0, vD1 = 16, 20, 24
    vNM, vTR, vX0, vX1 = 28, 29, 30, 31
    A("s_setprio 3")
    A(f"""v_and_b32 v{vOK}, 3, v1
    v_lshlrev_b32 v{vOK}, 4, v{vOK}
    v_lshrrev_b32 v{vT}, 4, v1
    v_lshl_add_u32 v{vOK}, v{vT}, 6, v{vOK}
    v_bfe_u32 v{vT}, v1, 2, 2
    v_lshl_add_u32 v{vOK}, v{vT}, 8, v{vOK}
    s_lshl_b32 s50, s3, 12
    v_add_u32 v{vOK}, s50, v{vOK}
    s_lshl_b32 s51, s62, 20
    s_mov_b32 s52, 0
    s_mov_b32 s22, 0x100000
    s_mov_b32 s23, 0x20000
    s_lshr_b32 s53, s62, {cfg.RSH}
    s_mul_i32 s53, s53, {cfg.ROT * 16384}
    s_and_b32 s53, s53, 0xfffff
    s_mov_b32 s54, s53
    s_waitcnt lgkmcnt(0)
    s_add_u32 s20, s6, s51
    s_addc_u32 s21, s7, s52
    s_and_b32 s21, s21, 0xffff""")

    def issue(n, slot, wait=True, depth=None):
        if depth is None:
            depth = cfg.NP if n < P else (cfg.NK if n < 256 else cfg.NV)
        if wait:
            A(f"s_waitcnt vmcnt({depth-1})")
        isv = n >= 256
        so = "s54" if isv else "s53"
        A(f"buffer_load_dwordx4 {q(SLOT(slot))}, v{vOV if isv else vOK}, {'s[24:27]' if isv else 's[20:23]'}, {so} offen offset:{(n & 3) * 1024} nt")
        if (n & 3) == 3:
            A(f"s_add_u32 {so}, {so}, 0x4000")
            if cfg.ROT:
                A(f"s_and_b32 {so}, {so}, 0xfffff")

    if cfg.NOK:
        A("s_barrier")
    for n in range(P):
        issue(n, n, wait=(n >= N))
        if cfg.QBAR and n == cfg.QBAR:
            A("s_barrier")
        if n == N:
            ts(8)
        if n == N + 20:
            ts(9)
        if n == N - 1:
            A(f"""s_add_u32 s24, s8, s51
            s_addc_u32 s25, s9, s52
            s_and_b32 s25, s25, 0xffff
            s_mov_b32 s26, 0x100000
            s_mov_b32 s27, 0x20000
            s_lshl_b32 s55, s49, 2
            s_add_u32 s55, s55, {WS_E}
            s_load_dword s59, s[18:19], s55
            v_lshlrev_b32 v{vOV}, 4, v1
            v_add_u32 v{vOV}, s50, v{vOV}
            s_lshl_b32 s55, s3, 13
            s_add_u32 s55, s55, {L_SC}
            v_lshlrev_b32 v{vSCA}, 2, v1
            v_add_u32 v{vSCA}, s55, v{vSCA}
            v_mov_b32 v{vM}, 0xff800000
            s_mov_b32 s56, {hex(C_SCALE)}
            s_mov_b32 s57, {hex(C_LOG2E)}
            v_and_b32 v{vT}, 2, v1
            v_cmp_eq_u32 vcc, 0, v{vT}
            v_mov_b32 v{vTA}, 0x01000c0c
            v_mov_b32 v{vTB}, 0x0c0c0100
            v_cndmask_b32 v{vSELA}, v{vTA}, v{vTB}, vcc
            v_mov_b32 v{vTA}, 0x03020c0c
            v_mov_b32 v{vTB}, 0x0c0c0302
            v_cndmask_b32 v{vSELB}, v{vTA}, v{vTB}, vcc
            v_and_b32 v{vX0}, 1, v1
            v_lshlrev_b32 v{vX0}, 8, v{vX0}
            v_lshrrev_b32 v{vT}, 2, v1
            v_lshl_add_u32 v{vX0}, v{vT}, 4, v{vX0}
            v_add_u32 v{vX0}, {L_Q}, v{vX0}""")
    ts(1)
    if not cfg.NOK:
        A("s_barrier")
    A(f"ds_read_b128 {q(vQ)}, v{vX0}")
    A("s_waitcnt lgkmcnt(0)")
    ts(2)

    def chain_ops(c, D, tmp):
        t = c & 3
        S = vSA if (c & 4) == 0 else vSB
        rs = [r for r in range(4) if r != t]
        return [
            f"v_add_f32_dpp v{tmp}, v{D+rs[0]}, v{D+t} {ror(t - rs[0])} row_mask:0xf bank_mask:0xf",
            f"v_add_f32_dpp v{tmp}, v{D+rs[1]}, v{tmp} {ror(t - rs[1])} row_mask:0xf bank_mask:0xf",
            f"v_add_f32_dpp v{S}, v{D+rs[2]}, v{tmp} {ror(t - rs[2])} row_mask:0xf bank_mask:{hex(1 << t)}",
        ]

    def finalize(off=None):
        A(f"""v_cvt_pk_bf16_f32 v{vT}, v{vSA}, v{vSB}
        v_lshlrev_b32 v{vTA}, 16, v{vT}
        v_and_b32 v{vTB}, 0xffff0000, v{vT}
        v_mul_f32 v{vTA}, s56, v{vTA}
        v_mul_f32 v{vTB}, s56, v{vTB}
        v_max3_f32 v{vM}, v{vM}, v{vTA}, v{vTB}
        v_cvt_pk_bf16_f32 v{vT}, v{vTA}, v{vTB}
        ds_write_b32 v{vSCA}, v{vT}
        v_add_u32 v{vSCA}, 0x100, v{vSCA}""")

    Dof = lambda n: vD0 if n == 0 else (vD1 if n == P - 1 else SLOT(n - 1))
    tmps = [vPA, vPB, vX1]
    ring_at = {}
    for k in range(LK):
        ring_at[(P - 8) * (k + 1) // LK] = k
    for s in range(P + 3):
        if s in ring_at:
            k = ring_at[s]
            assert s >= k + 1 + 4 + 1
            issue(P + k, k)
        if P - 8 <= s < P:
            A(f"s_waitcnt vmcnt({P - 1 - s + LK})")
        if s < P:
            A(f"v_mfma_f32_16x16x32_bf16 {q(Dof(s))}, {q(SLOT(s))}, {q(vQ)}, 0")
        else:
            A("s_nop 0")
        for (lag, opi) in ((4, 2), (3, 1), (2, 0)):
            c = s - lag
            if 0 <= c < P - 1:
                A(chain_ops(c, Dof(c), tmps[c % 3])[opi])
            else:
                A("s_nop 0")
        c = s - 4
        if c >= 0 and (c & 7) == 7 and c < P - 1:
            finalize()
    ts(3)

    def kstep(c, nissue):
        issue(nissue, nissue % 8)
        A(f"v_mfma_f32_16x16x32_bf16 {q(vD1 if c & 1 else vD0)}, {q(SLOT(c % 8))}, {q(vQ)}, 0")
        pc = (c - 1) % 8
        ops = chain_ops(pc, vD1 if pc & 1 else vD0, vX1)
        A("s_nop 1")
        A(ops[0]); A("s_nop 1"); A(ops[1]); A("s_nop 1"); A(ops[2])
        if pc == 7:
            finalize()

    nkit = (256 - P) // 8
    A(f"s_mov_b32 s58, {nkit - 1}")
    A("L_kloop:")
    for c in range(8):
        kstep(c, P + c + LK)
    A("s_sub_u32 s58, s58, 1\ns_cmp_lg_u32 s58, 0\ns_cbranch_scc1 L_kloop")
    for c in range(248, 256):
        kstep(c, c + LK)
    A("s_nop 7")
    ops = chain_ops(7, vD1, vX1)
    A(ops[0]); A("s_nop 1"); A(ops[1]); A("s_nop 1"); A(ops[2])
    finalize()
    ts(4)
    A(f"v_subrev_u32 v{vSCA}, 0x2000, v{vSCA}")
    A(f"ds_read_b32 v{vTR}, v{vSCA}")
    extra = list(range(256 + LK, 256 + LV))
    if extra:
        issue(extra[0], extra[0] % 8)
    def xreduce(v, op, tmp):
        A(f"""s_nop 1
        {op}_dpp v{v}, v{v}, v{v} row_ror:4 row_mask:0xf bank_mask:0xf
        s_nop 1
        {op}_dpp v{v}, v{v}, v{v} row_ror:8 row_mask:0xf bank_mask:0xf
        v_mov_b32 v{tmp}, v{v}
        s_nop 1
        v_permlane16_swap_b32 v{v}, v{tmp}
        {op} v{v}, v{v}, v{tmp}
        v_mov_b32 v{tmp}, v{v}
        s_nop 1
        v_permlane32_swap_b32 v{v}, v{tmp}
        {op} v{v}, v{v}, v{tmp}""")
    xreduce(vM, "v_max_f32", vT)
    A(f"""v_cvt_pk_bf16_f32 v{vM}, v{vM}, v{vM}
    v_lshlrev_b32 v{vM}, 16, v{vM}
    v_mul_f32 v{vM}, s57, v{vM}
    v_sub_f32 v{vNM}, 0, v{vM}
    v_mov_b32 v{vL}, 0""")
    for r in range(16, 28):
        A(f"v_mov_b32 v{r}, 0")
    vO = vQ
    def expblock():
        A(f"""s_waitcnt lgkmcnt(0)
        v_lshlrev_b32 v{vTA}, 16, v{vTR}
        v_and_b32 v{vTB}, 0xffff0000, v{vTR}
        v_fma_f32 v{vTA}, v{vTA}, s57, v{vNM}
        v_fma_f32 v{vTB}, v{vTB}, s57, v{vNM}
        v_exp_f32 v{vTA}, v{vTA}
        v_exp_f32 v{vTB}, v{vTB}
        v_add_f32 v{vL}, v{vL}, v{vTA}
        s_nop 0
        v_add_f32 v{vL}, v{vL}, v{vTB}
        v_cvt_pk_bf16_f32 v{vT}, v{vTA}, v{vTB}""")
    expblock()
    A(f"v_perm_b32 v{vPA}, v{vT}, v{vT}, v{vSELA}\nv_perm_b32 v{vPB}, v{vT}, v{vT}, v{vSELB}")
    for n in extra[1:]:
        issue(n, n % 8)
    A("s_nop 1")

    def vstep(c, missue, waitn=None, depth=None):
        pb = vD1 if c & 1 else vD0
        build(pb, vPA if (c & 4) == 0 else vPB, c & 3)
        if missue is not None:
            issue(256 + missue, missue % 8, depth=depth)
        else:
            A(f"s_waitcnt vmcnt({waitn})\ns_nop 0")
        A(f"v_mfma_f32_16x16x32_bf16 {q(vO)}, {q(SLOT(c % 8))}, {q(pb)}, {q(vO)}")

    vFA, vFM = vSA, vSB
    def vbody(depth, fc):
        for c in range(8):
            vstep(c, c + LV, depth=depth)
            if c == 0:
                A(f"v_add_u32 v{vSCA}, 0x100, v{vSCA}\nds_read_b32 v{vTR}, v{vSCA}")
            if c == 2:
                expblock()
            if c == 4:
                A(f"v_perm_b32 v{vPA}, v{vT}, v{vT}, v{vSELA}")
            if c == 6 and fc:
                A(f"ds_read_b32 v{vFM}, v{vX0}")
            if c == 7:
                A(f"v_perm_b32 v{vPB}, v{vT}, v{vT}, v{vSELB}")
    def vloop(label, depth):
        A(f"{label}:")
        vbody(depth, False)
        A(f"s_sub_u32 s58, s58, 1\ns_cmp_lg_u32 s58, s63\ns_cbranch_scc1 {label}")
    A("s_mov_b32 s58, 31")
    if cfg.VODD:
        A(f"s_getreg_b32 s63, hwreg(HW_REG_XCC_ID, 0, 1)\ns_cmp_eq_u32 s63, 0\ns_cselect_b32 s63, {cfg.VEND + cfg.VODD}, {cfg.VEND}")
    else:
        A(f"s_mov_b32 s63, {cfg.VEND}")
    if cfg.FC:
        A(f"""v_mov_b32 v{vX0}, {L_FC}
        s_lshl_b32 s55, s3, 2
        v_add_u32 v{vFA}, s55, v{vX0}
        v_mov_b32 v{vX1}, s58
        ds_write_b32 v{vFA}, v{vX1} offset:16""")
        for lab, depth in (("L_vmid", cfg.NV), ("L_vlo", cfg.NLO)) + ((("L_vh2", cfg.NH2),) if cfg.TH2 else ()) + (("L_vhi", cfg.NHI),):
            A(f"{lab}:")
            vbody(depth, True)
            if lab != "L_vhi":
                A("s_branch L_vbot")
        A(f"""L_vbot:
        s_sub_u32 s58, s58, 1
        v_mov_b32 v{vX1}, s58
        s_waitcnt lgkmcnt(0)
        v_readfirstlane_b32 s55, v{vFM}
        ds_write_b32 v{vFA}, v{vX1} offset:16
        s_cmp_eq_u32 s58, s63
        s_cbranch_scc1 L_vout
        s_cmp_eq_u32 s55, 1
        s_cbranch_scc1 L_vmid
        s_cmp_eq_u32 s55, 0
        s_cbranch_scc1 L_vlo
        {"s_cmp_eq_u32 s55, 3" if cfg.TH2 else ""}
        {"s_cbranch_scc1 L_vh2" if cfg.TH2 else ""}
        s_branch L_vhi
        L_vout:""")
    else:
        vloop("L_vloop", cfg.NV)
    if cfg.VEND:
        A("s_mov_b32 s63, 0")
        vloop("L_vloop2", cfg.NE)
    c = 248
    while c + LV < 256:
        vstep(c, c + LV, depth=cfg.NE if cfg.VEND else None)
        c += 1
    ts(5)
    xreduce(vL, "v_add_f32", vT)
    A(f"""v_and_b32 v{vX0}, 1, v1
    v_lshlrev_b32 v{vX0}, 5, v{vX0}
    v_add_u32 v{vX0}, {L_ML}, v{vX0}
    s_lshl_b32 s55, s3, 3
    v_add_u32 v{vX1}, s55, v{vX0}
    v_mov_b32 v{vTA}, v{vM}
    v_mov_b32 v{vTB}, v{vL}
    ds_write_b64 v{vX1}, v[{vTA}:{vTB}]
    s_waitcnt lgkmcnt(0)
    s_barrier""")
    m0 = SLOT(9)
    A(f"""ds_read_b128 {q(m0)}, v{vX0}
    ds_read_b128 {q(m0+4)}, v{vX0} offset:16
    s_lshl_b32 s55, s3, 10
    s_add_u32 s55, s55, {L_O}
    v_lshlrev_b32 v{vX1}, 4, v1
    v_add_u32 v{vX1}, s55, v{vX1}
    s_waitcnt lgkmcnt(0)
    v_max3_f32 v{vT}, v{m0}, v{m0+2}, v{m0+4}
    v_max_f32 v{vT}, v{vT}, v{m0+6}
    v_sub_f32 v{m0}, v{m0}, v{vT}
    v_sub_f32 v{m0+2}, v{m0+2}, v{vT}
    v_sub_f32 v{m0+4}, v{m0+4}, v{vT}
    v_sub_f32 v{m0+6}, v{m0+6}, v{vT}
    v_sub_f32 v{vTA}, v{vM}, v{vT}
    v_exp_f32 v{m0}, v{m0}
    v_exp_f32 v{m0+2}, v{m0+2}
    v_exp_f32 v{m0+4}, v{m0+4}
    v_exp_f32 v{m0+6}, v{m0+6}
    v_exp_f32 v{vTA}, v{vTA}
    v_mul_f32 v{vTB}, v{m0}, v{m0+1}
    v_fmac_f32 v{vTB}, v{m0+2}, v{m0+3}
    v_fmac_f32 v{vTB}, v{m0+4}, v{m0+5}
    v_fmac_f32 v{vTB}, v{m0+6}, v{m0+7}
    v_rcp_f32 v{vTB}, v{vTB}
    s_nop 0
    v_mul_f32 v{vTA}, v{vTA}, v{vTB}""")
    while c < 256:
        vstep(c, None, 255 - c)
        c += 1
    A("s_nop 7")
    for r in range(4):
        A(f"v_mul_f32 v{vO+r}, v{vO+r}, v{vTA}")
    A(f"""ds_write_b128 v{vX1}, {q(vO)}
    s_waitcnt lgkmcnt(0)""")
    ts(6)
    A("s_barrier")
    G = 192 // cfg.R
    sh = {4: 2, 8: 1, 16: 0}[cfg.R]
    A(f"""s_sub_u32 s51, s48, s49
    s_and_b32 s51, s51, 15
    s_and_b32 s50, s51, {(1 << sh) - 1}
    s_cbranch_scc1 L_sdone
    s_cmp_ge_u32 s3, {0 if ('y' in cfg.ABL or 'p' in cfg.ABL) else cfg.PW}
    s_cbranch_scc1 L_sdone
    s_lshr_b32 s51, s51, {sh}
    s_cmp_ge_u32 s51, {2 if 'h' in cfg.ABL else (1 if 'i' in cfg.ABL else 16)}
    s_cbranch_scc1 L_sdone
    s_mul_i32 s52, s51, {G}
    v_add_u32 v0, s52, v1
    s_add_u32 s59, s59, {K_TAG}
    s_mul_i32 s50, s49, {16*YSLOT}
    s_add_u32 s40, s18, s50
    s_addc_u32 s41, s19, 0
    s_and_b32 s41, s41, 0xffff
    s_mov_b32 s42, {16*YSLOT}
    s_mov_b32 s43, 0x20000
    s_mul_i32 s50, s49, 1152
    s_add_u32 s44, s14, s50
    s_addc_u32 s45, s15, 0
    s_and_b32 s45, s45, 0xffff
    s_mov_b32 s46, 1152
    s_mov_b32 s47, 0x20000
    v_lshlrev_b32 v10, 4, v0
    v_add_u32 v11, {4*YSLOT}, v10
    v_add_u32 v12, {8*YSLOT}, v10
    v_add_u32 v13, {12*YSLOT}, v10
    s_mov_b32 s89, {YSLOT}
    s_mov_b32 s90, {2*YSLOT}
    s_mov_b32 s91, {3*YSLOT}
    v_lshlrev_b32 v3, 2, v0
    v_lshlrev_b32 v6, 1, v0
    s_mov_b32 s58, 0x100000
    s_mov_b32 exec_lo, {hex(((1 << G) - 1) & 0xffffffff)}
    s_mov_b32 exec_hi, {hex(((1 << G) - 1) >> 32)}
    s_barrier""")
    NS = cfg.NSET
    def pissue(R):
        for k in range(16):
            A(f"buffer_load_dwordx4 {q(R+4*k)}, v{10 + (k >> 2)}, s[40:43], s{88 + (k & 3) if (k & 3) else 0} offen {cfg.YLD}".replace("s0 offen", "0 offen"))
    for st in range(NS):
        pissue(32 + 64 * st)
    A("L_poll:")
    for st in range(NS):
        R = 32 + 64 * st
        for k in range(0, 16, 2):
            A(f"s_waitcnt vmcnt({14 - k + 16 * (NS - 1)})")
            a_, b_ = R + 4 * k, R + 4 * k + 4
            if k == 0:
                A(f"v_min_u32 v4, v{a_+3}, v{b_+3}\nv_max_u32 v5, v{a_+3}, v{b_+3}")
            else:
                A(f"v_min3_u32 v4, v4, v{a_+3}, v{b_+3}\nv_max3_u32 v5, v5, v{a_+3}, v{b_+3}")
            A(f"v_pk_add_f32 v[{a_}:{a_+1}], v[{a_}:{a_+1}], v[{b_}:{b_+1}]\nv_add_f32 v{a_+2}, v{a_+2}, v{b_+2}")
            if k:
                A(f"v_pk_add_f32 v[{R}:{R+1}], v[{R}:{R+1}], v[{a_}:{a_+1}]\nv_add_f32 v{R+2}, v{R+2}, v{a_+2}")
        A(f"""v_xor_b32 v4, s59, v4
        v_xor_b32 v5, s59, v5
        v_or_b32 v4, v4, v5
        v_cmp_ne_u32 vcc, 0, v4
        v_cvt_pk_bf16_f32 v4, v{R}, v{R+1}
        v_cvt_pk_bf16_f32 v5, v{R+2}, v{R+2}
        s_nop 2
        s_cbranch_vccz L_pollout""")
        pissue(R)
    A(f"""s_sub_u32 s58, s58, 1
    s_cbranch_scc0 L_poll
    L_pollout:
    buffer_store_dword v4, v3, s[44:47], 0 offen
    buffer_store_short v5, v6, s[44:47], 0 offen offset:768""")
    ts(7)
    A(f"""s_cmp_lg_u32 s51, 0
    s_cbranch_scc1 L_sdone
    s_lshl_b32 s50, s49, 2
    s_add_u32 s50, s50, {WS_E}
    v_mov_b32 v7, s50
    v_mov_b32 v8, s59
    s_mov_b64 exec, 1
    global_store_dword v7, v8, s[18:19] sc1""")
    A("L_sdone:")
    ts_store()
    A("s_endpgm")

    A("L_aux:")
    A("s_sub_u32 s61, s3, 4")
    vOW, vA, vB, vC = 2, 3, 8, 9
    vSELA2, vSELB2, vST = 45, 46, 47
    A(f"s_cmp_eq_u32 s61, {7 if 'q' in cfg.ABL else 0}\ns_cbranch_scc1 L_qwave\ns_waitcnt lgkmcnt(0)")
    if cfg.WARM == 1:
        A(f"""s_mul_i32 s50, s48, {256*1152}
        s_add_u32 s32, s12, s50
        s_addc_u32 s33, s13, 0
        s_and_b32 s33, s33, 0xffff
        s_mov_b32 s34, {256*1152}
        s_mov_b32 s35, 0x20000
        s_mul_i32 s50, s49, 3
        s_add_u32 s50, s50, s61
        s_sub_u32 s50, s50, 1
        s_mul_i32 s50, s50, 6144
        v_lshlrev_b32 v2, 4, v1
        s_add_u32 s51, s50, 3072""")
        if cfg.WARMS:
            A(f"s_sleep {cfg.WARMS}")
        for i in range(6):
            A(f"buffer_load_dwordx4 {q(64+4*i)}, v2, s[32:35], {'s50' if i < 3 else 's51'} offen offset:{1024*(i % 3)} {cfg.WARMF}")
        A("s_waitcnt vmcnt(0)")
    A(("s_barrier\n" if cfg.QBAR else "") + "s_branch L_qdone")
    XR, WR, WP, QA = 48, 72, 148, 224
    vXO, vWO, vPO = 10, 11, 12
    A(f"""L_qwave:
    s_setprio 2
    v_and_b32 v{vA}, 15, v1
    v_lshrrev_b32 v{vB}, 4, v1
    v_mul_u32_u24 v{vXO}, 1152, v{vA}
    v_mad_u32_u24 v{vXO}, v{vB}, 36, v{vXO}
    v_mad_u32_u24 v{vXO}, v{vB}, 36, v{vXO}
    v_mul_u32_u24 v{vWO}, {36*8192}, v{vB}
    v_lshl_add_u32 v{vWO}, v{vA}, 3, v{vWO}
    v_lshlrev_b32 v{vPO}, 14, v{vB}
    v_lshl_add_u32 v{vPO}, v{vA}, 4, v{vPO}
    s_lshl_b32 s51, s48, 9
    s_mov_b32 s38, {16*1152}
    s_mov_b32 s39, 0x20000
    s_sub_u32 s30, {576*8192}, s51
    s_mov_b32 s31, 0x20000
    s_lshl_b32 s52, s48, 16
    s_add_u32 s52, s52, {WS_Q}
    s_mov_b32 s46, 0x10000
    s_mov_b32 s47, 0x20000
    s_mov_b32 s53, s49
    s_mov_b32 s54, 0
    s_mov_b32 s56, 0x05040100
    s_mov_b32 s57, 0x07060302
    s_waitcnt lgkmcnt(0)
    s_mov_b32 s36, s4
    s_and_b32 s37, s5, 0xffff
    s_add_u32 s28, s10, s51
    s_addc_u32 s29, s11, 0
    s_and_b32 s29, s29, 0xffff
    s_add_u32 s44, s18, s52
    s_addc_u32 s45, s19, 0
    s_and_b32 s45, s45, 0xffff
    s_lshl_b32 s50, s49, 2
    s_add_u32 s50, s50, {WS_E}
    s_load_dword s60, s[18:19], s50
    v_mov_b32 v15, 0xff
    L_produce:
    s_lshr_b32 s58, s53, 2
    s_and_b32 s59, s53, 3
    s_mul_i32 s50, s59, {144*8192}
    s_lshl_b32 s55, s58, 7
    s_add_u32 s50, s50, s55
    s_mul_i32 s55, s59, 288""")
    for n in range(36):
        A(f"buffer_load_dwordx2 v[{WR+2*n}:{WR+2*n+1}], v{vWO}, s[28:31], s50 offen {cfg.WQFLAG}")
        if n < 35:
            A("s_add_u32 s50, s50, 0x2000")
        if n == 7:
            for i in range(4):
                A(f"buffer_load_dwordx4 {q(XR+4*i)}, v{vXO}, s[36:39], s55 offen offset:{16*i} {cfg.WQFLAG}")
            A(f"buffer_load_dwordx2 v[{XR+16}:{XR+17}], v{vXO}, s[36:39], s55 offen offset:64 {cfg.WQFLAG}")
    ts(6)
    A(f"v_and_b32 v13, 0x30, v1\nv_add_u32 v13, {WS_E}, v13\nglobal_load_dwordx4 v[16:19], v13, s[18:19] {cfg.WQFLAG}")
    A("s_lshl_b32 s50, s59, 10\ns_lshl_b32 s55, s58, 8\ns_add_u32 s50, s50, s55")
    for st in range(5):
        rows = 8 if st < 4 else 4
        last = 8 * st + rows - 1
        A(f"s_waitcnt vmcnt({36 - last if st < 4 else 0})")
        for c in range(4):
            for m in range(rows // 2):
                r0 = 8 * st + 2 * m
                A(f"v_perm_b32 v{WP + 18*c + 4*st + m}, v{WR + 2*(r0+1) + (c >> 1)}, v{WR + 2*r0 + (c >> 1)}, {'s57' if c & 1 else 's56'}")
        A("s_nop 1")
        for c in range(4):
            w = WP + 18 * c + 4 * st
            cin = "0" if st == 0 else q(QA + 4 * c)
            if st < 4:
                A(f"v_mfma_f32_16x16x32_bf16 {q(QA+4*c)}, {q(XR+4*st)}, {q(w)}, {cin}")
            else:
                A(f"v_mfma_f32_16x16x16_bf16 {q(QA+4*c)}, v[{XR+16}:{XR+17}], v[{w}:{w+1}], {cin}")
    A(f"""s_waitcnt lgkmcnt(0)
    s_add_u32 s27, s60, {K_TAG}
    s_lshr_b32 s24, s27, 8
    s_lshr_b32 s25, s27, 16
    s_lshr_b32 s26, s27, 24
    s_nop 3""")
    if 's' in cfg.ABL:
        A("s_branch L_qdone")
    tagr = ["s27", "s24", "s25", "s26"]
    for r in range(4):
        for c in range(4):
            A(f"v_bfi_b32 v{QA+16+4*r+c}, v15, {tagr[c]}, v{QA+4*c+r}")
        A(f"buffer_store_dwordx4 {q(QA+16+4*r)}, v{vPO}, s[44:47], s50 offen {cfg.QST}")
        if r < 3:
            A("s_add_u32 s50, s50, 0x1000")
    ts(7)
    A(f"""s_cmp_eq_u32 s54, 0
    s_cbranch_scc1 L_first
    s_waitcnt vmcnt(0)
    s_add_u32 s53, s53, 1
    s_cmp_lt_u32 s53, 16
    s_cbranch_scc1 L_produce
    s_branch L_consume
    L_first:
    """)
    def warm():
        A(f"""s_mul_i32 s50, s48, {256*1152}
        s_add_u32 s32, s12, s50
        s_addc_u32 s33, s13, 0
        s_and_b32 s33, s33, 0xffff
        s_mov_b32 s34, {256*1152}
        s_mov_b32 s35, 0x20000
        s_mul_i32 s50, s49, 18432
        v_lshlrev_b32 v2, 4, v1""")
        for i in range(18):
            if i >= cfg.WARMD:
                A(f"s_waitcnt vmcnt({cfg.WARMD - 1})")
            A(f"buffer_load_dwordx4 {q(WP+4*i)}, v2, s[32:35], s50 offen offset:{1024*(i % 4)} {cfg.WARMF}")
            if i % 4 == 3:
                A("s_add_u32 s50, s50, 0x1000")
    if cfg.WARM == 2:
        warm()
    for rb in range(4):
        A(f"v_add_u32 v{20+4*rb}, {K_TAG}, v{16+rb}")
        for c in range(1, 4):
            A(f"v_lshrrev_b32 v{20+4*rb+c}, {8*c}, v{20+4*rb}")
    A(f"""
    {"s_barrier" if cfg.QBAR else ("s_waitcnt vmcnt(0)" if cfg.WARM == 2 else f"s_sleep {cfg.QSLEEP0}")}
    L_consume:
    v_lshlrev_b32 v{vA}, 4, v1
    s_lshl_b32 s50, s49, 12
    s_mov_b32 s58, {cfg.QPOLLS}
    L_qpoll:""")
    for rb in range(4):
        A(f"buffer_load_dwordx4 {q(XR+4*rb)}, v{vA}, s[44:47], s50 offen offset:{1024*rb} {cfg.QLD}")
    A("s_waitcnt vmcnt(0)")
    for i in range(16):
        A(f"v_xor_b32 v{WR+i}, v{20+i}, v{XR+i}")
    A(f"v_or3_b32 v{WR}, v{WR}, v{WR+1}, v{WR+2}")
    for i in range(3, 15, 2):
        A(f"v_or3_b32 v{WR}, v{WR}, v{WR+i}, v{WR+i+1}")
    A(f"""v_or_b32 v{WR}, v{WR}, v{WR+15}
    v_and_b32 v{WR}, 0xff, v{WR}
    v_cmp_ne_u32 vcc, 0, v{WR}
    s_mov_b32 s55, 0x80
    s_nop 4
    s_cbranch_vccz L_qready
    s_cmp_lg_u32 s54, 0
    s_cbranch_scc1 L_qready
    s_sleep {cfg.QSLEEP}
    s_sub_u32 s58, s58, 1
    s_cbranch_scc0 L_qpoll
    s_mov_b32 s54, 1
    s_mov_b32 s53, 0
    s_lshl_b32 s52, s62, 16
    s_add_u32 s52, s52, {WS_F}
    s_add_u32 s44, s18, s52
    s_addc_u32 s45, s19, 0
    s_and_b32 s45, s45, 0xffff
    s_branch L_produce
    L_qready:""")
    ts(9)
    for i in range(16):
        A(f"v_bfi_b32 v{XR+i}, v15, s55, v{XR+i}")
    A(f"""v_lshlrev_b32 v{vB}, 3, v1
    v_add_u32 v{vB}, {L_Q}, v{vB}
    v_pk_add_f32 v[{XR}:{XR+1}], v[{XR}:{XR+1}], v[{XR+4}:{XR+5}]
    v_pk_add_f32 v[{XR+2}:{XR+3}], v[{XR+2}:{XR+3}], v[{XR+6}:{XR+7}]
    v_pk_add_f32 v[{XR+8}:{XR+9}], v[{XR+8}:{XR+9}], v[{XR+12}:{XR+13}]
    v_pk_add_f32 v[{XR+10}:{XR+11}], v[{XR+10}:{XR+11}], v[{XR+14}:{XR+15}]
    v_pk_add_f32 v[{XR}:{XR+1}], v[{XR}:{XR+1}], v[{XR+8}:{XR+9}]
    v_pk_add_f32 v[{XR+2}:{XR+3}], v[{XR+2}:{XR+3}], v[{XR+10}:{XR+11}]
    v_cvt_pk_bf16_f32 v{XR}, v{XR}, v{XR+1}
    v_cvt_pk_bf16_f32 v{XR+1}, v{XR+2}, v{XR+3}
    ds_write_b64 v{vB}, v[{XR}:{XR+1}]
    s_setprio 0""")
    if cfg.WARM == 3:
        warm()
    A("L_qdone:")
    A(f"""s_lshl_b32 s50, s49, 2
    s_add_u32 s50, s50, {WS_E}
    s_load_dword s60, s[18:19], s50
    s_mul_i32 s50, s62, {YSLOT}
    s_add_u32 s40, s18, s50
    s_addc_u32 s41, s19, 0
    s_and_b32 s41, s41, 0xffff
    s_mov_b32 s42, {YSLOT}
    s_mov_b32 s43, 0x20000
    s_mul_i32 s50, s61, 48
    v_add_u32 v{vST}, s50, v1
    v_and_b32 v{vA}, 2, v1
    v_cmp_eq_u32 vcc, 0, v{vA}
    v_mov_b32 v{vB}, 0x01000c0c
    v_mov_b32 v{vC}, 0x0c0c0100
    v_cndmask_b32 v{vSELA2}, v{vB}, v{vC}, vcc
    v_mov_b32 v{vB}, 0x03020c0c
    v_mov_b32 v{vC}, 0x0c0c0302
    v_cndmask_b32 v{vSELB2}, v{vB}, v{vC}, vcc""")
    if cfg.FC:
        A(f"""s_mov_b32 s50, {WS_E}
        s_load_dword s63, s[18:19], s50
        v_mov_b32 v{vA}, {L_FC}
        v_mov_b32 v{vB}, 1
        v_mov_b32 v{vC}, 99
        ds_write2_b32 v{vA}, v{vB}, v{vC} offset0:0 offset1:4""")
    A("s_waitcnt lgkmcnt(0)")
    ts(1)
    A("s_barrier")
    WS = lambda n: 64 + 4 * n
    NWS = 48
    YACC = 12
    OB0, OB1 = 4, 8
    vOP0, vOP1 = 56, 57
    vAO, vAW, vAY, vAR = 58, 59, 60, 61
    vS1, vS2, vS3 = 62, 63, 3
    A(f"""v_mov_b32 v{vS1}, v{vSELA2}
    v_mov_b32 v{vS2}, v{vSELB2}
    v_lshlrev_b32 v{vS3}, 4, v{vST}
    s_add_u32 s60, s60, {K_TAG}
    s_mul_i32 s50, s48, {256*1152}
    s_add_u32 s32, s12, s50
    s_addc_u32 s33, s13, 0
    s_and_b32 s33, s33, 0xffff
    s_mov_b32 s34, {256*1152}
    s_mov_b32 s35, 0x20000
    v_bfe_u32 v8, v1, {5 if cfg.SM else 4}, 1
    v_lshlrev_b32 v8, 7, v8
    v_bfe_u32 v9, v1, {4 if cfg.SM else 5}, 1
    v_lshlrev_b32 v9, {3 if cfg.SM else 0}, v9
    v_add_u32 v8, v8, v9
    v_bfe_u32 v9, v1, 3, 1
    v_lshl_add_u32 v8, v9, 4, v8
    s_lshl_b32 s50, s61, 5
    v_add_u32 v8, s50, v8
    v_mul_u32_u24 v{vOW}, 1152, v8
    v_and_b32 v9, 7, v1
    v_lshl_add_u32 v{vOW}, v9, 4, v{vOW}
    s_mul_i32 s52, s61, {24*1024}""")
    if cfg.WO_MIX:
        A("s_cmp_eq_u32 s61, 3\ns_cselect_b64 vcc, -1, 0")
    if 'z' in cfg.ABL:
        A(f"v_lshlrev_b32 v{vOW}, 4, v1")
    if 'r' in cfg.ABL:
        A(f"v_lshrrev_b32 v8, 3, v1\ns_lshl_b32 s50, s61, 6\nv_add_u32 v8, s50, v8\nv_mul_u32_u24 v{vOW}, 1152, v8\nv_lshl_add_u32 v{vOW}, v9, 4, v{vOW}")
    if 'l' in cfg.ABL:
        A(f"v_lshlrev_b32 v{vOW}, 4, v1\ns_mul_i32 s50, s61, 1024\nv_add_u32 v{vOW}, s50, v{vOW}")
    if cfg.PT:
        A("s_lshl_b32 s50, s62, 20\nv_mov_b32 v8, s50\ns_mul_i32 s50, s49, 1152\nv_mov_b32 v9, s50\ns_mov_b64 exec, 1")
        if cfg.PT & 1:
            A("global_load_dword v10, v8, s[8:9] nt")
        if cfg.PT & 2:
            A("global_load_dword v11, v9, s[14:15] nt")
        A("s_mov_b64 exec, -1\ns_waitcnt vmcnt(0)")
    for k in range(0 if 'w' in cfg.ABL else 72):
        rg, cb = divmod(k, 9)
        u, t = rg >> 2, rg & 3
        if k >= cfg.WO_DEPTH:
            A(f"s_waitcnt vmcnt({cfg.WO_DEPTH - 1})")
        if cfg.WO_MIX and k:
            A(f"s_cbranch_vccnz L_wo{k}\ns_waitcnt vmcnt(0)\nL_wo{k}:")
        if 'z' in cfg.ABL:
            A("s_mov_b32 s50, 0")
        elif 'r' in cfg.ABL:
            A(f"s_mov_b32 s50, {(k // 9) * 8 * 1152 + (k % 9) * 128}")
        elif 'l' in cfg.ABL:
            A(f"s_mov_b32 s50, {k * 4096}")
        elif cfg.SM:
            t, cb = divmod(k >> 1, 9)
            A(f"s_mov_b32 s50, {(2*t + (k & 1)) * 1152 + cb * 128}")
        else:
            A(f"s_mov_b32 s50, {(8*u + 2*t) * 1152 + cb * 128}")
        if k < NWS:
            A(f"buffer_load_dwordx4 {q(WS(k))}, v{vOW}, s[32:35], s50 offen{wf}")
        else:
            A(f"s_add_u32 m0, s52, {L_WO + (k - NWS) * 1024}\ns_nop 0\nbuffer_load_dwordx4 v{vOW}, s[32:35], s50 offen{wf} lds")
    A(f"""v_bfe_u32 v8, v1, 2, 2
    v_lshlrev_b32 v{vAO}, 6, v8
    v_lshrrev_b32 v8, 4, v1
    v_lshl_add_u32 v{vAO}, v8, 4, v{vAO}
    v_and_b32 v9, 1, v1
    v_lshl_add_u32 v{vAO}, v9, 3, v{vAO}
    s_lshl_b32 s50, s61, 8
    s_add_u32 s50, s50, {L_O}
    v_add_u32 v{vAO}, s50, v{vAO}
    v_lshlrev_b32 v{vAW}, 4, v1
    v_add_u32 v{vAW}, s52, v{vAW}
    v_and_b32 v9, 15, v1
    v_lshlrev_b32 v{vAY}, 5, v9
    v_lshl_add_u32 v{vAY}, v8, 3, v{vAY}
    s_mul_i32 s50, s61, 2560
    s_add_u32 s50, s50, {L_Y}
    v_add_u32 v{vAY}, s50, v{vAY}
    v_lshrrev_b32 v{vAR}, 1, v{vS3}
    v_add_u32 v{vAR}, {L_Y}, v{vAR}
    v_lshrrev_b32 v0, 2, v{vS3}
    v_add_u32 v0, {L_Y + 1536}, v0""")
    for r in range(OB0, OB0 + 8 + (36 if cfg.SM else 0)):
        A(f"v_mov_b32 v{r}, 0")
    if cfg.SM:
        A(f"v_bfe_u32 v{vS1}, v1, 1, 2\nv_xor_b32 v{vS2}, 1, v{vS1}\nv_lshl_add_u32 v{vS1}, v{vS2}, 2, v{vS1}\nv_mul_u32_u24 v{vS1}, 0x1111, v{vS1}")
    A("s_waitcnt vmcnt(0) lgkmcnt(0)")
    ts(2)
    if cfg.WB:
        A(f"s_lshr_b32 s50, s2, 3\ns_or_b32 s50, s50, s61\ns_cbranch_scc1 L_nowb\nbuffer_wbl2 sc1\ns_waitcnt vmcnt(0)\nL_nowb:")
    if cfg.FC:
        gx = cfg.GX if cfg.FC == 2 else 0
        A(f"""s_cmp_lg_u32 s61, 3
        s_cbranch_scc1 L_noctl
        s_add_u32 s63, s63, {K_TAG}
        s_and_b32 s24, s2, 7
        s_lshr_b32 s25, s2, 3
        s_mul_i32 s26, s24, 4352
        s_add_u32 s26, s26, {WS_P}
        v_min_u32 v48, 32, v1
        v_lshlrev_b32 v48, 2, v48
        v_add_u32 v48, s26, v48
        s_lshl_b32 s50, s25, 2
        s_add_u32 s50, s50, s26
        v_mov_b32 v49, s50
        v_mov_b32 v50, {L_FC}
        s_mov_b32 s27, {cfg.CK0}
        s_mov_b32 s28, 0""")
        if cfg.PAR:
            A(f"s_getreg_b32 s29, hwreg(HW_REG_XCC_ID, 0, 1)\ns_cmp_eq_u32 s29, 0\ns_cselect_b32 s29, {4*cfg.PAR}, 0")
        if gx:
            A(f"""s_add_u32 s50, s26, 128
            v_mov_b32 v54, s50
            s_mul_i32 s50, s24, 4224
            s_add_u32 s50, s50, {WS_G}
            v_mov_b32 v55, s50
            v_and_b32 v56, 7, v1
            v_mul_u32_u24 v56, 4224, v56
            v_add_u32 v56, {WS_G}, v56""")
        A(f"""L_ctl:
        s_sleep 1
        ds_read_b32 v51, v50 offset:16
        s_waitcnt lgkmcnt(0)
        v_readfirstlane_b32 s50, v51
        s_cmp_gt_u32 s50, s27
        s_cbranch_scc1 L_ctl
        s_sub_u32 s30, s63, s27
        v_mov_b32 v52, s30
        s_mov_b64 exec, 1
        global_store_dword v49, v52, s[18:19]
        s_mov_b64 exec, -1
        global_load_dword v53, v48, s[18:19] sc1
        s_waitcnt vmcnt(0)""")
        if gx:
            A("v_readlane_b32 s36, v53, 32")
        A(f"""v_subrev_u32 v53, s30, v53
        v_cmp_gt_u32 vcc, 32, v53
        s_nop 3
        s_bcnt1_i32_b32 s31, vcc_lo
        s_lshl_b32 s37, s31, 1""")
        if gx:
            A(f"""s_sub_u32 s36, s36, s63
            s_cmp_lt_u32 s36, 17
            s_cselect_b32 s36, s36, 9
            s_mul_i32 s36, s36, {gx}
            s_add_u32 s37, s37, s36""")
        if cfg.PAR:
            A("s_add_u32 s37, s37, s29")
        off = 9 * gx + 2 * cfg.PAR
        A(f"""s_mov_b32 s38, 1
        s_cmp_ge_u32 s37, {2*cfg.THI + off}
        s_cselect_b32 s38, 2, s38
        s_cmp_ge_u32 s37, {2*cfg.TH2 + off if cfg.TH2 else 9999}
        s_cselect_b32 s38, 3, s38
        s_cmp_lt_u32 s37, {2*cfg.TLO + off}
        s_cselect_b32 s38, 0, s38
        v_mov_b32 v51, s38
        ds_write_b32 v50, v51""")
        if gx:
            A(f"""s_add_u32 s28, s28, 1
            s_and_b32 s50, s28, {cfg.GMASK}
            s_cbranch_scc1 L_ctlnext
            s_sub_u32 s50, s31, 15
            s_cmp_ge_u32 s50, 2
            s_cbranch_scc1 L_ctlnext
            s_mov_b64 exec, 1
            global_store_dword v55, v52, s[18:19] sc1
            s_mov_b64 exec, -1
            global_load_dword v53, v56, s[18:19] sc1
            s_waitcnt vmcnt(0)
            v_subrev_u32 v53, s30, v53
            v_cmp_gt_u32 vcc, 32, v53
            s_lshl_b32 s50, 1, s24
            s_nop 3
            s_or_b32 s50, s50, vcc_lo
            s_and_b32 s50, s50, 0xff
            s_bcnt1_i32_b32 s50, s50
            s_lshl_b32 s50, s50, 1
            s_add_u32 s50, s50, s63
            v_mov_b32 v52, s50
            s_mov_b64 exec, 1
            global_store_dword v54, v52, s[18:19]
            s_mov_b64 exec, -1
            L_ctlnext:""")
        A(f"""s_sub_u32 s27, s27, {cfg.CKIT}
        s_cmp_gt_i32 s27, {cfg.VEND}
        s_cbranch_scc1 L_ctl
        s_waitcnt vmcnt(0) lgkmcnt(0)
        L_noctl:""")
    A("s_setprio 3\ns_barrier\ns_barrier")
    ts(3)
    for w in range(4):
        A(f"ds_read_b64 v[{48+2*w}:{49+2*w}], v{vAO} offset:{1024*w}")
    A(f"""s_waitcnt lgkmcnt(2)
    v_pk_add_f32 v[48:49], v[48:49], v[50:51]
    s_waitcnt lgkmcnt(0)
    v_pk_add_f32 v[52:53], v[52:53], v[54:55]
    v_pk_add_f32 v[48:49], v[48:49], v[52:53]
    """)
    if cfg.SM:
        A(f"v_cvt_pk_bf16_f32 v{vOP0}, v48, 0\nv_cvt_pk_bf16_f32 v{vOP1}, v49, 0\ns_nop 0")
        def sbuild(t):
            ob = OB1 if t & 1 else OB0
            r = []
            for odd in range(2):
                for a_ in range(4):
                    bank = 2 * (a_ & 1) + odd
                    r.append(f"v_mov_b32_dpp v{ob+a_}, v{vOP1 if a_ >> 1 else vOP0} {ror(bank - t)} row_mask:0xf bank_mask:{hex(1 << bank)}")
            return r
        if cfg.TS2:
            ts(8)
        for l in sbuild(0):
            A(l)
        A("s_nop 1")
        nov = (72 - NWS) // 2
        for m in range(36):
            t, cb = divmod(m, 9)
            ob = OB1 if t & 1 else OB0
            slot = 2 * m if 2 * m < NWS else 2 * m - NWS
            if 2 * m >= NWS:
                issued = min(72 - NWS, m - 1)
                A(f"s_waitcnt lgkmcnt({min(14, issued - (2 * m - NWS + 2))})")
            A(f"v_smfmac_f32_16x16x64_bf16 {q(YACC+4*cb)}, {q(ob)}, v[{WS(slot)}:{WS(slot)+7}], v{vS1}")
            if 1 <= m <= 72 - NWS:
                A(f"ds_read_b128 {q(WS(m-1))}, v{vAW} offset:{L_WO + (m-1)*1024}")
            if t < 3 and 1 <= cb <= 6:
                bl = sbuild(t + 1)
                for l in {1: bl[0:2], 2: bl[2:4], 3: bl[4:5], 4: bl[5:6], 5: bl[6:7], 6: bl[7:8]}[cb]:
                    A(l)
    else:
        A(f"""v_cvt_pk_bf16_f32 v48, v48, v49
        v_perm_b32 v{vOP0}, v48, v48, v{vS1}
        v_perm_b32 v{vOP1}, v48, v48, v{vS2}
        s_nop 0""")
        build(OB0, vOP0, 0)
        A("s_nop 1")
        for k in range(72):
            rg, cb = divmod(k, 9)
            ob = OB1 if rg & 1 else OB0
            slot = k if k < NWS else k - NWS
            if k == NWS:
                A("s_waitcnt lgkmcnt(0)")
            A(f"v_mfma_f32_16x16x32_bf16 {q(YACC+4*cb)}, {q(ob)}, {q(WS(slot))}, {'0' if rg == 0 else q(YACC+4*cb)}")
            if 1 <= k <= 72 - NWS:
                A(f"ds_read_b128 {q(WS(k-1))}, v{vAW} offset:{L_WO + (k-1)*1024}")
            if 1 <= cb <= 4 and rg < 7:
                nrg = rg + 1
                r = cb - 1
                A(f"v_mov_b32_dpp v{(OB1 if nrg & 1 else OB0)+r}, v{vOP1 if nrg >> 2 else vOP0} {ror(r - (nrg & 3))} row_mask:0xf bank_mask:{hex(1 << r)}")
    if cfg.TS2:
        ts(10)
    Y = lambda p: WS(30) + 2 * p
    for p in range(4):
        d = YACC + 4 * (2 * p)
        A(f"v_add_f32_dpp v{Y(p)}, v{d+1}, v{d} row_ror:8 row_mask:0xf bank_mask:0x3")
        A(f"v_add_f32_dpp v{Y(p)+1}, v{d+3}, v{d+2} row_ror:8 row_mask:0xf bank_mask:0x3")
    for p in range(4):
        d = YACC + 4 * (2 * p + 1)
        A(f"v_add_f32_dpp v{Y(p)}, v{d}, v{d+1} row_ror:8 row_mask:0xf bank_mask:0xc")
        A(f"v_add_f32_dpp v{Y(p)+1}, v{d+2}, v{d+3} row_ror:8 row_mask:0xf bank_mask:0xc")
        A(f"ds_write_b64 v{vAY}, v[{Y(p)}:{Y(p)+1}] offset:{512*p}")
    d = YACC + 32
    A(f"v_add_f32_dpp v{Y(4)}, v{d+1}, v{d} row_ror:8 row_mask:0xf bank_mask:0xf")
    A(f"v_add_f32_dpp v{Y(4)+1}, v{d+3}, v{d+2} row_ror:8 row_mask:0xf bank_mask:0xf")
    A(f"ds_write_b64 v{vAY}, v[{Y(4)}:{Y(4)+1}] offset:2048")
    A("s_mov_b32 exec_hi, 0xffff\nv_mov_b32 v15, s60\ns_waitcnt lgkmcnt(0)")
    ts(4)
    A("s_barrier")
    for w in range(4):
        A(f"ds_read_b64 v[{12+4*w}:{13+4*w}], v{vAR} offset:{2560*w}")
        A(f"ds_read_b32 v{14+4*w}, v0 offset:{2560*w}")
    A(f"""s_waitcnt lgkmcnt(4)
    v_pk_add_f32 v[12:13], v[12:13], v[16:17]
    v_add_f32 v14, v14, v18
    s_waitcnt lgkmcnt(0)
    v_pk_add_f32 v[20:21], v[20:21], v[24:25]
    v_add_f32 v22, v22, v26
    v_pk_add_f32 v[12:13], v[12:13], v[20:21]
    v_add_f32 v14, v14, v22
    """)
    if 'h' in cfg.ABL or 'i' in cfg.ABL:
        A(f"s_cmp_ge_u32 s61, {2 if 'h' in cfg.ABL else 1}\ns_cbranch_scc1 L_end")
    if 'y' not in cfg.ABL:
        A(f"buffer_store_dwordx4 v[12:15], v{vS3}, s[40:43], 0 offen {cfg.YST}")
    ts(5)
    ts_store()
    if cfg.SPIN:
        A(f"L_spin:\ns_memrealtime s[92:93]\ns_waitcnt lgkmcnt(0)\ns_sub_u32 s92, s92, s90\ns_cmp_lt_u32 s92, {cfg.SPIN}\ns_cbranch_scc1 L_spin")
    A("L_end:\ns_endpgm")
    return "\n".join(o)

HEADER = open("standalone__gqa_block_cached__sampling.s.ref").read().split("; Override launch")[0]

def full(cfg):
    body = gen(cfg)
    return f"""{HEADER}; @launch grid=(256,1,1) block=(512,1,1) lds={LDS_BYTES}
.amdgcn_target "amdgcn-amd-amdhsa--gfx950"
.text
.globl {cfg.kname}
.p2align 8
.type {cfg.kname},@function
{body}
.section .rodata,"a"
.p2align 6
.amdhsa_kernel {cfg.kname}
  .amdhsa_next_free_vgpr 256
  .amdhsa_next_free_sgpr 96
  .amdhsa_accum_offset 256
  .amdhsa_group_segment_fixed_size 0
  .amdhsa_kernarg_size 64
  .amdhsa_user_sgpr_count 2
  .amdhsa_user_sgpr_kernarg_segment_ptr 1
  .amdhsa_system_sgpr_workgroup_id_x 1
.end_amdhsa_kernel
"""

if __name__ == "__main__":
    cfg = Cfg()
    out = sys.argv[1]
    for kv in sys.argv[2:]:
        k, v = kv.split("=")
        cur = getattr(cfg, k)
        setattr(cfg, k, type(cur)(int(v)) if isinstance(cur, (int, bool)) else v.replace('+', ' '))
    open(out, "w").write(full(cfg))
```

```python
import sys

NAME = "standalone__gqa_block_cached__sampling"

class Cfg:
    N = 5
    P = 56
    LV = 7
    LK = 7
    NP = 6
    NK = 5
    NV = 5
    WO_DEPTH = 2
    WFLAG = "nt"
    TS = False
    MAP = 0
    AMP = 0
    WARM = 2
    WARMF = ''
    WARMS = 0
    WO_MIX = 0
    WARMD = 18
    WB = 0
    FC = 2
    CK0 = 31
    CKIT = 2
    THI = 23
    TLO = 7
    GX = 2
    GMASK = 1
    PAR = 0
    NLO = 4
    NHI = 6
    NH2 = 7
    TH2 = 0
    TS2 = 0
    SM = 1
    ROT = 0
    RSH = 0
    PT = 1
    R = 4
    PW = 1
    YSLEEP = 0
    NSET = 1
    VEND = 6
    NE = 7
    VODD = 0
    ABL = ''
    WQFLAG = ''
    SPIN = 0
    NOK = 0
    QPOLLS = 64
    QSLEEP = 4
    QBAR = 0
    QST = ''
    QLD = 'sc1'
    YST = 'sc1'
    YLD = 'sc1'
    QSLEEP0 = 8
    kname = NAME + "_kernel"

L_WO = 0
L_SC = 98304
L_Y = L_SC + 32768
L_O = L_Y + 10240
L_Q = L_O + 4096
L_ML = L_Q + 512
L_FC = L_ML + 64
L_END = L_FC + 32
LDS_BYTES = L_END

WS_Q = 0x100000
WS_E = 0xF0000
WS_F = 0x1000000
YSLOT = 3072
WS_P = 0xD0000
WS_G = 0xE0000
K_TAG = 0x9e3779b9
C_SCALE = 0x3DB504F3
C_LOG2E = 0x3FB8AA3B

def ror(k):
    k = (4 * k) % 16
    return "quad_perm:[0,1,2,3]" if k == 0 else f"row_ror:{k}"

def q(b):
    return f"v[{b}:{b+3}]"

def gen(cfg):
    o = []
    def A(s):
        for line in s.split("\n"):
            o.append("    " + line.strip() if not line.strip().endswith(":") else line.strip())
    K = cfg.kname
    N, P, LV, LK = cfg.NP, cfg.P, cfg.LV, cfg.LK
    assert cfg.NK <= LK <= 7 and cfg.NV <= LV <= 7 and LV >= LK
    wf = (" " + cfg.WFLAG) if cfg.WFLAG else ""
    nts = [0]
    def ts(idx):
        if cfg.TS:
            A(f"s_memrealtime s[{64+2*idx}:{65+2*idx}]\ns_waitcnt lgkmcnt(0)")
    def ts_store():
        if cfg.TS:
            A(f"""s_mov_b64 exec, 1
            s_lshl_b32 s60, s2, 3
            s_add_u32 s60, s60, s3
            s_lshl_b32 s60, s60, 6
            s_add_u32 s60, s60, 0x400000
            v_mov_b32 v1, s60""")
            for i in range(12):
                A(f"v_mov_b32 v2, s{64+2*i}\nglobal_store_dword v1, v2, s[18:19] offset:{4*i}\ns_nop 1")
            A("s_getreg_b32 s60, hwreg(HW_REG_XCC_ID)\nv_mov_b32 v2, s60\nglobal_store_dword v1, v2, s[18:19] offset:48")

    def build(dst, src, t):
        for r in range(4):
            A(f"v_mov_b32_dpp v{dst+r}, v{src} {ror(r - t)} row_mask:0xf bank_mask:{hex(1 << r)}")

    A(f"{K}:")
    A(f"s_cmp_ge_u32 s2, 256\ns_cbranch_scc1 L_end")
    A("s_load_dwordx16 s[4:19], s[0:1], 0")
    if cfg.TS:
        for i in range(12):
            A(f"s_mov_b64 s[{64+2*i}:{65+2*i}], 0")
        A("s_memrealtime s[64:65]")
    if cfg.SPIN:
        A("s_memrealtime s[90:91]")
    if cfg.AMP:
        A("s_memrealtime s[92:93]")
    A("""v_lshrrev_b32 v2, 6, v0
    v_and_b32 v1, 63, v0
    v_readfirstlane_b32 s3, v2
    """)
    if cfg.MAP == 0:
        A("s_and_b32 s48, s2, 15\ns_lshr_b32 s49, s2, 4")
    elif cfg.MAP == 1:
        A("s_and_b32 s48, s2, 7\ns_lshl_b32 s48, s48, 1\ns_bfe_u32 s49, s2, 0x10003\ns_add_u32 s48, s48, s49\ns_lshr_b32 s49, s2, 4")
    elif cfg.MAP == 2:
        A("s_and_b32 s48, s2, 3\ns_lshl_b32 s48, s48, 2\ns_bfe_u32 s49, s2, 0x20003\ns_add_u32 s48, s48, s49\ns_lshr_b32 s49, s2, 5\ns_lshl_b32 s49, s49, 1\ns_bfe_u32 s50, s2, 0x10002\ns_add_u32 s49, s49, s50")
    elif cfg.MAP == 3:
        A("s_bfe_u32 s48, s2, 0x40003\ns_lshr_b32 s49, s2, 7\ns_lshl_b32 s49, s49, 3\ns_and_b32 s50, s2, 7\ns_add_u32 s49, s49, s50")
    A("""s_lshl_b32 s62, s49, 4
    s_add_u32 s62, s62, s48
    s_cmp_ge_u32 s3, 4
    s_cbranch_scc1 L_aux""")

    SLOT = lambda n: 32 + 4 * n
    vOK, vOV, vSCA, vM, vL, vSA, vSB, vT, vTA, vTB, vSELA, vSELB, vPA, vPB = range(2, 16)
    vQ, vD0, vD1 = 16, 20, 24
    vNM, vTR, vX0, vX1 = 28, 29, 30, 31
    A("s_setprio 3")
    A(f"""v_and_b32 v{vOK}, 3, v1
    v_lshlrev_b32 v{vOK}, 4, v{vOK}
    v_lshrrev_b32 v{vT}, 4, v1
    v_lshl_add_u32 v{vOK}, v{vT}, 6, v{vOK}
    v_bfe_u32 v{vT}, v1, 2, 2
    v_lshl_add_u32 v{vOK}, v{vT}, 8, v{vOK}
    s_lshl_b32 s50, s3, 12
    v_add_u32 v{vOK}, s50, v{vOK}
    s_lshl_b32 s51, s62, 20
    s_mov_b32 s52, 0
    s_mov_b32 s22, 0x100000
    s_mov_b32 s23, 0x20000
    s_lshr_b32 s53, s62, {cfg.RSH}
    s_mul_i32 s53, s53, {cfg.ROT * 16384}
    s_and_b32 s53, s53, 0xfffff
    s_mov_b32 s54, s53
    s_waitcnt lgkmcnt(0)
    s_add_u32 s20, s6, s51
    s_addc_u32 s21, s7, s52
    s_and_b32 s21, s21, 0xffff""")

    def issue(n, slot, wait=True, depth=None):
        if depth is None:
            depth = cfg.NP if n < P else (cfg.NK if n < 256 else cfg.NV)
        if wait:
            A(f"s_waitcnt vmcnt({depth-1})")
        isv = n >= 256
        so = "s54" if isv else "s53"
        A(f"buffer_load_dwordx4 {q(SLOT(slot))}, v{vOV if isv else vOK}, {'s[24:27]' if isv else 's[20:23]'}, {so} offen offset:{(n & 3) * 1024} nt")
        if (n & 3) == 3:
            A(f"s_add_u32 {so}, {so}, 0x4000")
            if cfg.ROT:
                A(f"s_and_b32 {so}, {so}, 0xfffff")

    if cfg.NOK:
        A("s_barrier")
    for n in range(P):
        issue(n, n, wait=(n >= N))
        if cfg.QBAR and n == cfg.QBAR:
            A("s_barrier")
        if n == N:
            ts(8)
        if n == N + 20:
            ts(9)
        if n == N - 1:
            A(f"""s_add_u32 s24, s8, s51
            s_addc_u32 s25, s9, s52
            s_and_b32 s25, s25, 0xffff
            s_mov_b32 s26, 0x100000
            s_mov_b32 s27, 0x20000
            s_lshl_b32 s55, s49, 2
            s_add_u32 s55, s55, {WS_E}
            s_load_dword s59, s[18:19], s55
            v_lshlrev_b32 v{vOV}, 4, v1
            v_add_u32 v{vOV}, s50, v{vOV}
            s_lshl_b32 s55, s3, 13
            s_add_u32 s55, s55, {L_SC}
            v_lshlrev_b32 v{vSCA}, 2, v1
            v_add_u32 v{vSCA}, s55, v{vSCA}
            v_mov_b32 v{vM}, 0xff800000
            s_mov_b32 s56, {hex(C_SCALE)}
            s_mov_b32 s57, {hex(C_LOG2E)}
            v_and_b32 v{vT}, 2, v1
            v_cmp_eq_u32 vcc, 0, v{vT}
            v_mov_b32 v{vTA}, 0x01000c0c
            v_mov_b32 v{vTB}, 0x0c0c0100
            v_cndmask_b32 v{vSELA}, v{vTA}, v{vTB}, vcc
            v_mov_b32 v{vTA}, 0x03020c0c
            v_mov_b32 v{vTB}, 0x0c0c0302
            v_cndmask_b32 v{vSELB}, v{vTA}, v{vTB}, vcc
            v_and_b32 v{vX0}, 1, v1
            v_lshlrev_b32 v{vX0}, 8, v{vX0}
            v_lshrrev_b32 v{vT}, 2, v1
            v_lshl_add_u32 v{vX0}, v{vT}, 4, v{vX0}
            v_add_u32 v{vX0}, {L_Q}, v{vX0}""")
    ts(1)
    if not cfg.NOK:
        A("s_barrier")
    A(f"ds_read_b128 {q(vQ)}, v{vX0}")
    A("s_waitcnt lgkmcnt(0)")
    ts(2)

    def chain_ops(c, D, tmp):
        t = c & 3
        S = vSA if (c & 4) == 0 else vSB
        rs = [r for r in range(4) if r != t]
        return [
            f"v_add_f32_dpp v{tmp}, v{D+rs[0]}, v{D+t} {ror(t - rs[0])} row_mask:0xf bank_mask:0xf",
            f"v_add_f32_dpp v{tmp}, v{D+rs[1]}, v{tmp} {ror(t - rs[1])} row_mask:0xf bank_mask:0xf",
            f"v_add_f32_dpp v{S}, v{D+rs[2]}, v{tmp} {ror(t - rs[2])} row_mask:0xf bank_mask:{hex(1 << t)}",
        ]

    def finalize(off=None):
        A(f"""v_cvt_pk_bf16_f32 v{vT}, v{vSA}, v{vSB}
        v_lshlrev_b32 v{vTA}, 16, v{vT}
        v_and_b32 v{vTB}, 0xffff0000, v{vT}
        v_mul_f32 v{vTA}, s56, v{vTA}
        v_mul_f32 v{vTB}, s56, v{vTB}
        v_max3_f32 v{vM}, v{vM}, v{vTA}, v{vTB}
        v_cvt_pk_bf16_f32 v{vT}, v{vTA}, v{vTB}
        ds_write_b32 v{vSCA}, v{vT}
        v_add_u32 v{vSCA}, 0x100, v{vSCA}""")

    Dof = lambda n: vD0 if n == 0 else (vD1 if n == P - 1 else SLOT(n - 1))
    tmps = [vPA, vPB, vX1]
    ring_at = {}
    for k in range(LK):
        ring_at[(P - 8) * (k + 1) // LK] = k
    for s in range(P + 3):
        if s in ring_at:
            k = ring_at[s]
            assert s >= k + 1 + 4 + 1
            issue(P + k, k)
        if P - 8 <= s < P:
            A(f"s_waitcnt vmcnt({P - 1 - s + LK})")
        if s < P:
            A(f"v_mfma_f32_16x16x32_bf16 {q(Dof(s))}, {q(SLOT(s))}, {q(vQ)}, 0")
        else:
            A("s_nop 0")
        for (lag, opi) in ((4, 2), (3, 1), (2, 0)):
            c = s - lag
            if 0 <= c < P - 1:
                A(chain_ops(c, Dof(c), tmps[c % 3])[opi])
            else:
                A("s_nop 0")
        c = s - 4
        if c >= 0 and (c & 7) == 7 and c < P - 1:
            finalize()
    ts(3)

    def kstep(c, nissue):
        issue(nissue, nissue % 8)
        A(f"v_mfma_f32_16x16x32_bf16 {q(vD1 if c & 1 else vD0)}, {q(SLOT(c % 8))}, {q(vQ)}, 0")
        pc = (c - 1) % 8
        ops = chain_ops(pc, vD1 if pc & 1 else vD0, vX1)
        A("s_nop 1")
        A(ops[0]); A("s_nop 1"); A(ops[1]); A("s_nop 1"); A(ops[2])
        if pc == 7:
            finalize()

    nkit = (256 - P) // 8
    A(f"s_mov_b32 s58, {nkit - 1}")
    A("L_kloop:")
    for c in range(8):
        kstep(c, P + c + LK)
    A("s_sub_u32 s58, s58, 1\ns_cmp_lg_u32 s58, 0\ns_cbranch_scc1 L_kloop")
    for c in range(248, 256):
        kstep(c, c + LK)
    A("s_nop 7")
    ops = chain_ops(7, vD1, vX1)
    A(ops[0]); A("s_nop 1"); A(ops[1]); A("s_nop 1"); A(ops[2])
    finalize()
    ts(4)
    A(f"v_subrev_u32 v{vSCA}, 0x2000, v{vSCA}")
    A(f"ds_read_b32 v{vTR}, v{vSCA}")
    extra = list(range(256 + LK, 256 + LV))
    if extra:
        issue(extra[0], extra[0] % 8)
    def xreduce(v, op, tmp):
        A(f"""s_nop 1
        {op}_dpp v{v}, v{v}, v{v} row_ror:4 row_mask:0xf bank_mask:0xf
        s_nop 1
        {op}_dpp v{v}, v{v}, v{v} row_ror:8 row_mask:0xf bank_mask:0xf
        v_mov_b32 v{tmp}, v{v}
        s_nop 1
        v_permlane16_swap_b32 v{v}, v{tmp}
        {op} v{v}, v{v}, v{tmp}
        v_mov_b32 v{tmp}, v{v}
        s_nop 1
        v_permlane32_swap_b32 v{v}, v{tmp}
        {op} v{v}, v{v}, v{tmp}""")
    xreduce(vM, "v_max_f32", vT)
    A(f"""v_cvt_pk_bf16_f32 v{vM}, v{vM}, v{vM}
    v_lshlrev_b32 v{vM}, 16, v{vM}
    v_mul_f32 v{vM}, s57, v{vM}
    v_sub_f32 v{vNM}, 0, v{vM}
    v_mov_b32 v{vL}, 0""")
    for r in range(16, 28):
        A(f"v_mov_b32 v{r}, 0")
    vO = vQ
    def expblock():
        A(f"""s_waitcnt lgkmcnt(0)
        v_lshlrev_b32 v{vTA}, 16, v{vTR}
        v_and_b32 v{vTB}, 0xffff0000, v{vTR}
        v_fma_f32 v{vTA}, v{vTA}, s57, v{vNM}
        v_fma_f32 v{vTB}, v{vTB}, s57, v{vNM}
        v_exp_f32 v{vTA}, v{vTA}
        v_exp_f32 v{vTB}, v{vTB}
        v_add_f32 v{vL}, v{vL}, v{vTA}
        s_nop 0
        v_add_f32 v{vL}, v{vL}, v{vTB}
        v_cvt_pk_bf16_f32 v{vT}, v{vTA}, v{vTB}""")
    expblock()
    A(f"v_perm_b32 v{vPA}, v{vT}, v{vT}, v{vSELA}\nv_perm_b32 v{vPB}, v{vT}, v{vT}, v{vSELB}")
    for n in extra[1:]:
        issue(n, n % 8)
    A("s_nop 1")

    def vstep(c, missue, waitn=None, depth=None):
        pb = vD1 if c & 1 else vD0
        build(pb, vPA if (c & 4) == 0 else vPB, c & 3)
        if missue is not None:
            issue(256 + missue, missue % 8, depth=depth)
        else:
            A(f"s_waitcnt vmcnt({waitn})\ns_nop 0")
        A(f"v_mfma_f32_16x16x32_bf16 {q(vO)}, {q(SLOT(c % 8))}, {q(pb)}, {q(vO)}")

    vFA, vFM = vSA, vSB
    def vbody(depth, fc):
        for c in range(8):
            vstep(c, c + LV, depth=depth)
            if c == 0:
                A(f"v_add_u32 v{vSCA}, 0x100, v{vSCA}\nds_read_b32 v{vTR}, v{vSCA}")
            if c == 2:
                expblock()
            if c == 4:
                A(f"v_perm_b32 v{vPA}, v{vT}, v{vT}, v{vSELA}")
            if c == 6 and fc:
                A(f"ds_read_b32 v{vFM}, v{vX0}")
            if c == 7:
                A(f"v_perm_b32 v{vPB}, v{vT}, v{vT}, v{vSELB}")
    def vloop(label, depth):
        A(f"{label}:")
        vbody(depth, False)
        A(f"s_sub_u32 s58, s58, 1\ns_cmp_lg_u32 s58, s63\ns_cbranch_scc1 {label}")
    A("s_mov_b32 s58, 31")
    if cfg.VODD:
        A(f"s_getreg_b32 s63, hwreg(HW_REG_XCC_ID, 0, 1)\ns_cmp_eq_u32 s63, 0\ns_cselect_b32 s63, {cfg.VEND + cfg.VODD}, {cfg.VEND}")
    else:
        A(f"s_mov_b32 s63, {cfg.VEND}")
    if cfg.FC:
        A(f"""v_mov_b32 v{vX0}, {L_FC}
        s_lshl_b32 s55, s3, 2
        v_add_u32 v{vFA}, s55, v{vX0}
        v_mov_b32 v{vX1}, s58
        ds_write_b32 v{vFA}, v{vX1} offset:16""")
        for lab, depth in (("L_vmid", cfg.NV), ("L_vlo", cfg.NLO)) + ((("L_vh2", cfg.NH2),) if cfg.TH2 else ()) + (("L_vhi", cfg.NHI),):
            A(f"{lab}:")
            vbody(depth, True)
            if lab != "L_vhi":
                A("s_branch L_vbot")
        A(f"""L_vbot:
        s_sub_u32 s58, s58, 1
        v_mov_b32 v{vX1}, s58
        s_waitcnt lgkmcnt(0)
        v_readfirstlane_b32 s55, v{vFM}
        ds_write_b32 v{vFA}, v{vX1} offset:16
        s_cmp_eq_u32 s58, s63
        s_cbranch_scc1 L_vout
        s_cmp_eq_u32 s55, 1
        s_cbranch_scc1 L_vmid
        s_cmp_eq_u32 s55, 0
        s_cbranch_scc1 L_vlo
        {"s_cmp_eq_u32 s55, 3" if cfg.TH2 else ""}
        {"s_cbranch_scc1 L_vh2" if cfg.TH2 else ""}
        s_branch L_vhi
        L_vout:""")
    else:
        vloop("L_vloop", cfg.NV)
    if cfg.VEND:
        A("s_mov_b32 s63, 0")
        vloop("L_vloop2", cfg.NE)
    c = 248
    while c + LV < 256:
        vstep(c, c + LV, depth=cfg.NE if cfg.VEND else None)
        c += 1
    ts(5)
    xreduce(vL, "v_add_f32", vT)
    A(f"""v_and_b32 v{vX0}, 1, v1
    v_lshlrev_b32 v{vX0}, 5, v{vX0}
    v_add_u32 v{vX0}, {L_ML}, v{vX0}
    s_lshl_b32 s55, s3, 3
    v_add_u32 v{vX1}, s55, v{vX0}
    v_mov_b32 v{vTA}, v{vM}
    v_mov_b32 v{vTB}, v{vL}
    ds_write_b64 v{vX1}, v[{vTA}:{vTB}]
    s_waitcnt lgkmcnt(0)
    s_barrier""")
    m0 = SLOT(9)
    A(f"""ds_read_b128 {q(m0)}, v{vX0}
    ds_read_b128 {q(m0+4)}, v{vX0} offset:16
    s_lshl_b32 s55, s3, 10
    s_add_u32 s55, s55, {L_O}
    v_lshlrev_b32 v{vX1}, 4, v1
    v_add_u32 v{vX1}, s55, v{vX1}
    s_waitcnt lgkmcnt(0)
    v_max3_f32 v{vT}, v{m0}, v{m0+2}, v{m0+4}
    v_max_f32 v{vT}, v{vT}, v{m0+6}
    v_sub_f32 v{m0}, v{m0}, v{vT}
    v_sub_f32 v{m0+2}, v{m0+2}, v{vT}
    v_sub_f32 v{m0+4}, v{m0+4}, v{vT}
    v_sub_f32 v{m0+6}, v{m0+6}, v{vT}
    v_sub_f32 v{vTA}, v{vM}, v{vT}
    v_exp_f32 v{m0}, v{m0}
    v_exp_f32 v{m0+2}, v{m0+2}
    v_exp_f32 v{m0+4}, v{m0+4}
    v_exp_f32 v{m0+6}, v{m0+6}
    v_exp_f32 v{vTA}, v{vTA}
    v_mul_f32 v{vTB}, v{m0}, v{m0+1}
    v_fmac_f32 v{vTB}, v{m0+2}, v{m0+3}
    v_fmac_f32 v{vTB}, v{m0+4}, v{m0+5}
    v_fmac_f32 v{vTB}, v{m0+6}, v{m0+7}
    v_rcp_f32 v{vTB}, v{vTB}
    s_nop 0
    v_mul_f32 v{vTA}, v{vTA}, v{vTB}""")
    while c < 256:
        vstep(c, None, 255 - c)
        c += 1
    A("s_nop 7")
    for r in range(4):
        A(f"v_mul_f32 v{vO+r}, v{vO+r}, v{vTA}")
    A(f"""ds_write_b128 v{vX1}, {q(vO)}
    s_waitcnt lgkmcnt(0)""")
    ts(6)
    A("s_barrier")
    G = 192 // cfg.R
    sh = {4: 2, 8: 1, 16: 0}[cfg.R]
    A(f"""s_sub_u32 s51, s48, s49
    s_and_b32 s51, s51, 15
    s_and_b32 s50, s51, {(1 << sh) - 1}
    s_cbranch_scc1 L_sdone
    s_cmp_ge_u32 s3, {0 if ('y' in cfg.ABL or 'p' in cfg.ABL) else cfg.PW}
    s_cbranch_scc1 L_sdone
    s_lshr_b32 s51, s51, {sh}
    s_cmp_ge_u32 s51, {2 if 'h' in cfg.ABL else (1 if 'i' in cfg.ABL else 16)}
    s_cbranch_scc1 L_sdone
    s_mul_i32 s52, s51, {G}
    v_add_u32 v0, s52, v1
    s_add_u32 s59, s59, {K_TAG}
    s_mul_i32 s50, s49, {16*YSLOT}
    s_add_u32 s40, s18, s50
    s_addc_u32 s41, s19, 0
    s_and_b32 s41, s41, 0xffff
    s_mov_b32 s42, {16*YSLOT}
    s_mov_b32 s43, 0x20000
    s_mul_i32 s50, s49, 1152
    s_add_u32 s44, s14, s50
    s_addc_u32 s45, s15, 0
    s_and_b32 s45, s45, 0xffff
    s_mov_b32 s46, 1152
    s_mov_b32 s47, 0x20000
    v_lshlrev_b32 v10, 4, v0
    v_add_u32 v11, {4*YSLOT}, v10
    v_add_u32 v12, {8*YSLOT}, v10
    v_add_u32 v13, {12*YSLOT}, v10
    s_mov_b32 s89, {YSLOT}
    s_mov_b32 s90, {2*YSLOT}
    s_mov_b32 s91, {3*YSLOT}
    v_lshlrev_b32 v3, 2, v0
    v_lshlrev_b32 v6, 1, v0
    s_mov_b32 s58, 0x100000
    s_mov_b32 exec_lo, {hex(((1 << G) - 1) & 0xffffffff)}
    s_mov_b32 exec_hi, {hex(((1 << G) - 1) >> 32)}
    s_barrier""")
    NS = cfg.NSET
    def pissue(R):
        for k in range(16):
            A(f"buffer_load_dwordx4 {q(R+4*k)}, v{10 + (k >> 2)}, s[40:43], s{88 + (k & 3) if (k & 3) else 0} offen {cfg.YLD}".replace("s0 offen", "0 offen"))
    for st in range(NS):
        pissue(32 + 64 * st)
    A("L_poll:")
    for st in range(NS):
        R = 32 + 64 * st
        for k in range(0, 16, 2):
            A(f"s_waitcnt vmcnt({14 - k + 16 * (NS - 1)})")
            a_, b_ = R + 4 * k, R + 4 * k + 4
            if k == 0:
                A(f"v_min_u32 v4, v{a_+3}, v{b_+3}\nv_max_u32 v5, v{a_+3}, v{b_+3}")
            else:
                A(f"v_min3_u32 v4, v4, v{a_+3}, v{b_+3}\nv_max3_u32 v5, v5, v{a_+3}, v{b_+3}")
            A(f"v_pk_add_f32 v[{a_}:{a_+1}], v[{a_}:{a_+1}], v[{b_}:{b_+1}]\nv_add_f32 v{a_+2}, v{a_+2}, v{b_+2}")
            if k:
                A(f"v_pk_add_f32 v[{R}:{R+1}], v[{R}:{R+1}], v[{a_}:{a_+1}]\nv_add_f32 v{R+2}, v{R+2}, v{a_+2}")
        A(f"""v_xor_b32 v4, s59, v4
        v_xor_b32 v5, s59, v5
        v_or_b32 v4, v4, v5
        v_cmp_ne_u32 vcc, 0, v4
        v_cvt_pk_bf16_f32 v4, v{R}, v{R+1}
        v_cvt_pk_bf16_f32 v5, v{R+2}, v{R+2}
        s_nop 2
        s_cbranch_vccz L_pollout""")
        pissue(R)
    A(f"""s_sub_u32 s58, s58, 1
    s_cbranch_scc0 L_poll
    L_pollout:
    buffer_store_dword v4, v3, s[44:47], 0 offen
    buffer_store_short v5, v6, s[44:47], 0 offen offset:768""")
    ts(7)
    A(f"""s_cmp_lg_u32 s51, 0
    s_cbranch_scc1 L_sdone
    s_lshl_b32 s50, s49, 2
    s_add_u32 s50, s50, {WS_E}
    v_mov_b32 v7, s50
    v_mov_b32 v8, s59
    s_mov_b64 exec, 1
    global_store_dword v7, v8, s[18:19] sc1""")
    A("L_sdone:")
    if cfg.AMP:
        A(f"""s_memrealtime s[94:95]
        s_waitcnt lgkmcnt(0)
        s_sub_u32 s94, s94, s92
        s_max_u32 s94, s94, 7000
        s_min_u32 s94, s94, 12000
        s_sub_u32 s50, s94, 7000
        s_mul_i32 s50, s50, {cfg.AMP}
        s_add_u32 s50, s50, s94
        s_cmp_eq_u32 s58, 0
        s_cbranch_scc1 L_noamp
        L_amp:
        s_sleep 2
        s_memrealtime s[94:95]
        s_waitcnt lgkmcnt(0)
        s_sub_u32 s94, s94, s92
        s_cmp_lt_u32 s94, s50
        s_cbranch_scc1 L_amp
        L_noamp:""")
    ts_store()
    A("s_endpgm")

    A("L_aux:")
    A("s_sub_u32 s61, s3, 4")
    vOW, vA, vB, vC = 2, 3, 8, 9
    vSELA2, vSELB2, vST = 45, 46, 47
    A(f"s_cmp_eq_u32 s61, {7 if 'q' in cfg.ABL else 0}\ns_cbranch_scc1 L_qwave\ns_waitcnt lgkmcnt(0)")
    if cfg.WARM == 1:
        A(f"""s_mul_i32 s50, s48, {256*1152}
        s_add_u32 s32, s12, s50
        s_addc_u32 s33, s13, 0
        s_and_b32 s33, s33, 0xffff
        s_mov_b32 s34, {256*1152}
        s_mov_b32 s35, 0x20000
        s_mul_i32 s50, s49, 3
        s_add_u32 s50, s50, s61
        s_sub_u32 s50, s50, 1
        s_mul_i32 s50, s50, 6144
        v_lshlrev_b32 v2, 4, v1
        s_add_u32 s51, s50, 3072""")
        if cfg.WARMS:
            A(f"s_sleep {cfg.WARMS}")
        for i in range(6):
            A(f"buffer_load_dwordx4 {q(64+4*i)}, v2, s[32:35], {'s50' if i < 3 else 's51'} offen offset:{1024*(i % 3)} {cfg.WARMF}")
        A("s_waitcnt vmcnt(0)")
    A(("s_barrier\n" if cfg.QBAR else "") + "s_branch L_qdone")
    XR, WR, WP, QA = 48, 72, 148, 224
    vXO, vWO, vPO = 10, 11, 12
    A(f"""L_qwave:
    s_setprio 2
    v_and_b32 v{vA}, 15, v1
    v_lshrrev_b32 v{vB}, 4, v1
    v_mul_u32_u24 v{vXO}, 1152, v{vA}
    v_mad_u32_u24 v{vXO}, v{vB}, 36, v{vXO}
    v_mad_u32_u24 v{vXO}, v{vB}, 36, v{vXO}
    v_mul_u32_u24 v{vWO}, {36*8192}, v{vB}
    v_lshl_add_u32 v{vWO}, v{vA}, 3, v{vWO}
    v_lshlrev_b32 v{vPO}, 14, v{vB}
    v_lshl_add_u32 v{vPO}, v{vA}, 4, v{vPO}
    s_lshl_b32 s51, s48, 9
    s_mov_b32 s38, {16*1152}
    s_mov_b32 s39, 0x20000
    s_sub_u32 s30, {576*8192}, s51
    s_mov_b32 s31, 0x20000
    s_lshl_b32 s52, s48, 16
    s_add_u32 s52, s52, {WS_Q}
    s_mov_b32 s46, 0x10000
    s_mov_b32 s47, 0x20000
    s_mov_b32 s53, s49
    s_mov_b32 s54, 0
    s_mov_b32 s56, 0x05040100
    s_mov_b32 s57, 0x07060302
    s_waitcnt lgkmcnt(0)
    s_mov_b32 s36, s4
    s_and_b32 s37, s5, 0xffff
    s_add_u32 s28, s10, s51
    s_addc_u32 s29, s11, 0
    s_and_b32 s29, s29, 0xffff
    s_add_u32 s44, s18, s52
    s_addc_u32 s45, s19, 0
    s_and_b32 s45, s45, 0xffff
    s_lshl_b32 s50, s49, 2
    s_add_u32 s50, s50, {WS_E}
    s_load_dword s60, s[18:19], s50
    v_mov_b32 v15, 0xff
    L_produce:
    s_lshr_b32 s58, s53, 2
    s_and_b32 s59, s53, 3
    s_mul_i32 s50, s59, {144*8192}
    s_lshl_b32 s55, s58, 7
    s_add_u32 s50, s50, s55
    s_mul_i32 s55, s59, 288""")
    for n in range(36):
        A(f"buffer_load_dwordx2 v[{WR+2*n}:{WR+2*n+1}], v{vWO}, s[28:31], s50 offen {cfg.WQFLAG}")
        if n < 35:
            A("s_add_u32 s50, s50, 0x2000")
        if n == 7:
            for i in range(4):
                A(f"buffer_load_dwordx4 {q(XR+4*i)}, v{vXO}, s[36:39], s55 offen offset:{16*i} {cfg.WQFLAG}")
            A(f"buffer_load_dwordx2 v[{XR+16}:{XR+17}], v{vXO}, s[36:39], s55 offen offset:64 {cfg.WQFLAG}")
    ts(6)
    A(f"v_and_b32 v13, 0x30, v1\nv_add_u32 v13, {WS_E}, v13\nglobal_load_dwordx4 v[16:19], v13, s[18:19] {cfg.WQFLAG}")
    A("s_lshl_b32 s50, s59, 10\ns_lshl_b32 s55, s58, 8\ns_add_u32 s50, s50, s55")
    for st in range(5):
        rows = 8 if st < 4 else 4
        last = 8 * st + rows - 1
        A(f"s_waitcnt vmcnt({36 - last if st < 4 else 0})")
        for c in range(4):
            for m in range(rows // 2):
                r0 = 8 * st + 2 * m
                A(f"v_perm_b32 v{WP + 18*c + 4*st + m}, v{WR + 2*(r0+1) + (c >> 1)}, v{WR + 2*r0 + (c >> 1)}, {'s57' if c & 1 else 's56'}")
        A("s_nop 1")
        for c in range(4):
            w = WP + 18 * c + 4 * st
            cin = "0" if st == 0 else q(QA + 4 * c)
            if st < 4:
                A(f"v_mfma_f32_16x16x32_bf16 {q(QA+4*c)}, {q(XR+4*st)}, {q(w)}, {cin}")
            else:
                A(f"v_mfma_f32_16x16x16_bf16 {q(QA+4*c)}, v[{XR+16}:{XR+17}], v[{w}:{w+1}], {cin}")
    A(f"""s_waitcnt lgkmcnt(0)
    s_add_u32 s27, s60, {K_TAG}
    s_lshr_b32 s24, s27, 8
    s_lshr_b32 s25, s27, 16
    s_lshr_b32 s26, s27, 24
    s_nop 3""")
    if 's' in cfg.ABL:
        A("s_branch L_qdone")
    tagr = ["s27", "s24", "s25", "s26"]
    for r in range(4):
        for c in range(4):
            A(f"v_bfi_b32 v{QA+16+4*r+c}, v15, {tagr[c]}, v{QA+4*c+r}")
        A(f"buffer_store_dwordx4 {q(QA+16+4*r)}, v{vPO}, s[44:47], s50 offen {cfg.QST}")
        if r < 3:
            A("s_add_u32 s50, s50, 0x1000")
    ts(7)
    A(f"""s_cmp_eq_u32 s54, 0
    s_cbranch_scc1 L_first
    s_waitcnt vmcnt(0)
    s_add_u32 s53, s53, 1
    s_cmp_lt_u32 s53, 16
    s_cbranch_scc1 L_produce
    s_branch L_consume
    L_first:
    """)
    def warm():
        A(f"""s_mul_i32 s50, s48, {256*1152}
        s_add_u32 s32, s12, s50
        s_addc_u32 s33, s13, 0
        s_and_b32 s33, s33, 0xffff
        s_mov_b32 s34, {256*1152}
        s_mov_b32 s35, 0x20000
        s_mul_i32 s50, s49, 18432
        v_lshlrev_b32 v2, 4, v1""")
        for i in range(18):
            if i >= cfg.WARMD:
                A(f"s_waitcnt vmcnt({cfg.WARMD - 1})")
            A(f"buffer_load_dwordx4 {q(WP+4*i)}, v2, s[32:35], s50 offen offset:{1024*(i % 4)} {cfg.WARMF}")
            if i % 4 == 3:
                A("s_add_u32 s50, s50, 0x1000")
    if cfg.WARM == 2:
        warm()
    for rb in range(4):
        A(f"v_add_u32 v{20+4*rb}, {K_TAG}, v{16+rb}")
        for c in range(1, 4):
            A(f"v_lshrrev_b32 v{20+4*rb+c}, {8*c}, v{20+4*rb}")
    A(f"""
    {"s_barrier" if cfg.QBAR else ("s_waitcnt vmcnt(0)" if cfg.WARM == 2 else f"s_sleep {cfg.QSLEEP0}")}
    L_consume:
    v_lshlrev_b32 v{vA}, 4, v1
    s_lshl_b32 s50, s49, 12
    s_mov_b32 s58, {cfg.QPOLLS}
    L_qpoll:""")
    for rb in range(4):
        A(f"buffer_load_dwordx4 {q(XR+4*rb)}, v{vA}, s[44:47], s50 offen offset:{1024*rb} {cfg.QLD}")
    A("s_waitcnt vmcnt(0)")
    for i in range(16):
        A(f"v_xor_b32 v{WR+i}, v{20+i}, v{XR+i}")
    A(f"v_or3_b32 v{WR}, v{WR}, v{WR+1}, v{WR+2}")
    for i in range(3, 15, 2):
        A(f"v_or3_b32 v{WR}, v{WR}, v{WR+i}, v{WR+i+1}")
    A(f"""v_or_b32 v{WR}, v{WR}, v{WR+15}
    v_and_b32 v{WR}, 0xff, v{WR}
    v_cmp_ne_u32 vcc, 0, v{WR}
    s_mov_b32 s55, 0x80
    s_nop 4
    s_cbranch_vccz L_qready
    s_cmp_lg_u32 s54, 0
    s_cbranch_scc1 L_qready
    s_sleep {cfg.QSLEEP}
    s_sub_u32 s58, s58, 1
    s_cbranch_scc0 L_qpoll
    s_mov_b32 s54, 1
    s_mov_b32 s53, 0
    s_lshl_b32 s52, s62, 16
    s_add_u32 s52, s52, {WS_F}
    s_add_u32 s44, s18, s52
    s_addc_u32 s45, s19, 0
    s_and_b32 s45, s45, 0xffff
    s_branch L_produce
    L_qready:""")
    ts(9)
    for i in range(16):
        A(f"v_bfi_b32 v{XR+i}, v15, s55, v{XR+i}")
    A(f"""v_lshlrev_b32 v{vB}, 3, v1
    v_add_u32 v{vB}, {L_Q}, v{vB}
    v_pk_add_f32 v[{XR}:{XR+1}], v[{XR}:{XR+1}], v[{XR+4}:{XR+5}]
    v_pk_add_f32 v[{XR+2}:{XR+3}], v[{XR+2}:{XR+3}], v[{XR+6}:{XR+7}]
    v_pk_add_f32 v[{XR+8}:{XR+9}], v[{XR+8}:{XR+9}], v[{XR+12}:{XR+13}]
    v_pk_add_f32 v[{XR+10}:{XR+11}], v[{XR+10}:{XR+11}], v[{XR+14}:{XR+15}]
    v_pk_add_f32 v[{XR}:{XR+1}], v[{XR}:{XR+1}], v[{XR+8}:{XR+9}]
    v_pk_add_f32 v[{XR+2}:{XR+3}], v[{XR+2}:{XR+3}], v[{XR+10}:{XR+11}]
    v_cvt_pk_bf16_f32 v{XR}, v{XR}, v{XR+1}
    v_cvt_pk_bf16_f32 v{XR+1}, v{XR+2}, v{XR+3}
    ds_write_b64 v{vB}, v[{XR}:{XR+1}]
    s_setprio 0""")
    if cfg.WARM == 3:
        warm()
    A("L_qdone:")
    A(f"""s_lshl_b32 s50, s49, 2
    s_add_u32 s50, s50, {WS_E}
    s_load_dword s60, s[18:19], s50
    s_mul_i32 s50, s62, {YSLOT}
    s_add_u32 s40, s18, s50
    s_addc_u32 s41, s19, 0
    s_and_b32 s41, s41, 0xffff
    s_mov_b32 s42, {YSLOT}
    s_mov_b32 s43, 0x20000
    s_mul_i32 s50, s61, 48
    v_add_u32 v{vST}, s50, v1
    v_and_b32 v{vA}, 2, v1
    v_cmp_eq_u32 vcc, 0, v{vA}
    v_mov_b32 v{vB}, 0x01000c0c
    v_mov_b32 v{vC}, 0x0c0c0100
    v_cndmask_b32 v{vSELA2}, v{vB}, v{vC}, vcc
    v_mov_b32 v{vB}, 0x03020c0c
    v_mov_b32 v{vC}, 0x0c0c0302
    v_cndmask_b32 v{vSELB2}, v{vB}, v{vC}, vcc""")
    if cfg.FC:
        A(f"""s_mov_b32 s50, {WS_E}
        s_load_dword s63, s[18:19], s50
        v_mov_b32 v{vA}, {L_FC}
        v_mov_b32 v{vB}, 1
        v_mov_b32 v{vC}, 99
        ds_write2_b32 v{vA}, v{vB}, v{vC} offset0:0 offset1:4""")
    A("s_waitcnt lgkmcnt(0)")
    ts(1)
    A("s_barrier")
    WS = lambda n: 64 + 4 * n
    NWS = 48
    YACC = 12
    OB0, OB1 = 4, 8
    vOP0, vOP1 = 56, 57
    vAO, vAW, vAY, vAR = 58, 59, 60, 61
    vS1, vS2, vS3 = 62, 63, 3
    A(f"""v_mov_b32 v{vS1}, v{vSELA2}
    v_mov_b32 v{vS2}, v{vSELB2}
    v_lshlrev_b32 v{vS3}, 4, v{vST}
    s_add_u32 s60, s60, {K_TAG}
    s_mul_i32 s50, s48, {256*1152}
    s_add_u32 s32, s12, s50
    s_addc_u32 s33, s13, 0
    s_and_b32 s33, s33, 0xffff
    s_mov_b32 s34, {256*1152}
    s_mov_b32 s35, 0x20000
    v_bfe_u32 v8, v1, {5 if cfg.SM else 4}, 1
    v_lshlrev_b32 v8, 7, v8
    v_bfe_u32 v9, v1, {4 if cfg.SM else 5}, 1
    v_lshlrev_b32 v9, {3 if cfg.SM else 0}, v9
    v_add_u32 v8, v8, v9
    v_bfe_u32 v9, v1, 3, 1
    v_lshl_add_u32 v8, v9, 4, v8
    s_lshl_b32 s50, s61, 5
    v_add_u32 v8, s50, v8
    v_mul_u32_u24 v{vOW}, 1152, v8
    v_and_b32 v9, 7, v1
    v_lshl_add_u32 v{vOW}, v9, 4, v{vOW}
    s_mul_i32 s52, s61, {24*1024}""")
    if cfg.WO_MIX:
        A("s_cmp_eq_u32 s61, 3\ns_cselect_b64 vcc, -1, 0")
    if 'z' in cfg.ABL:
        A(f"v_lshlrev_b32 v{vOW}, 4, v1")
    if 'r' in cfg.ABL:
        A(f"v_lshrrev_b32 v8, 3, v1\ns_lshl_b32 s50, s61, 6\nv_add_u32 v8, s50, v8\nv_mul_u32_u24 v{vOW}, 1152, v8\nv_lshl_add_u32 v{vOW}, v9, 4, v{vOW}")
    if 'l' in cfg.ABL:
        A(f"v_lshlrev_b32 v{vOW}, 4, v1\ns_mul_i32 s50, s61, 1024\nv_add_u32 v{vOW}, s50, v{vOW}")
    if cfg.PT:
        A("s_lshl_b32 s50, s62, 20\nv_mov_b32 v8, s50\ns_mul_i32 s50, s49, 1152\nv_mov_b32 v9, s50\ns_mov_b64 exec, 1")
        if cfg.PT & 1:
            A("global_load_dword v10, v8, s[8:9] nt")
        if cfg.PT & 2:
            A("global_load_dword v11, v9, s[14:15] nt")
        A("s_mov_b64 exec, -1\ns_waitcnt vmcnt(0)")
    for k in range(0 if 'w' in cfg.ABL else 72):
        rg, cb = divmod(k, 9)
        u, t = rg >> 2, rg & 3
        if k >= cfg.WO_DEPTH:
            A(f"s_waitcnt vmcnt({cfg.WO_DEPTH - 1})")
        if cfg.WO_MIX and k:
            A(f"s_cbranch_vccnz L_wo{k}\ns_waitcnt vmcnt(0)\nL_wo{k}:")
        if 'z' in cfg.ABL:
            A("s_mov_b32 s50, 0")
        elif 'r' in cfg.ABL:
            A(f"s_mov_b32 s50, {(k // 9) * 8 * 1152 + (k % 9) * 128}")
        elif 'l' in cfg.ABL:
            A(f"s_mov_b32 s50, {k * 4096}")
        elif cfg.SM:
            t, cb = divmod(k >> 1, 9)
            A(f"s_mov_b32 s50, {(2*t + (k & 1)) * 1152 + cb * 128}")
        else:
            A(f"s_mov_b32 s50, {(8*u + 2*t) * 1152 + cb * 128}")
        if k < NWS:
            A(f"buffer_load_dwordx4 {q(WS(k))}, v{vOW}, s[32:35], s50 offen{wf}")
        else:
            A(f"s_add_u32 m0, s52, {L_WO + (k - NWS) * 1024}\ns_nop 0\nbuffer_load_dwordx4 v{vOW}, s[32:35], s50 offen{wf} lds")
    A(f"""v_bfe_u32 v8, v1, 2, 2
    v_lshlrev_b32 v{vAO}, 6, v8
    v_lshrrev_b32 v8, 4, v1
    v_lshl_add_u32 v{vAO}, v8, 4, v{vAO}
    v_and_b32 v9, 1, v1
    v_lshl_add_u32 v{vAO}, v9, 3, v{vAO}
    s_lshl_b32 s50, s61, 8
    s_add_u32 s50, s50, {L_O}
    v_add_u32 v{vAO}, s50, v{vAO}
    v_lshlrev_b32 v{vAW}, 4, v1
    v_add_u32 v{vAW}, s52, v{vAW}
    v_and_b32 v9, 15, v1
    v_lshlrev_b32 v{vAY}, 5, v9
    v_lshl_add_u32 v{vAY}, v8, 3, v{vAY}
    s_mul_i32 s50, s61, 2560
    s_add_u32 s50, s50, {L_Y}
    v_add_u32 v{vAY}, s50, v{vAY}
    v_lshrrev_b32 v{vAR}, 1, v{vS3}
    v_add_u32 v{vAR}, {L_Y}, v{vAR}
    v_lshrrev_b32 v0, 2, v{vS3}
    v_add_u32 v0, {L_Y + 1536}, v0""")
    for r in range(OB0, OB0 + 8 + (36 if cfg.SM else 0)):
        A(f"v_mov_b32 v{r}, 0")
    if cfg.SM:
        A(f"v_bfe_u32 v{vS1}, v1, 1, 2\nv_xor_b32 v{vS2}, 1, v{vS1}\nv_lshl_add_u32 v{vS1}, v{vS2}, 2, v{vS1}\nv_mul_u32_u24 v{vS1}, 0x1111, v{vS1}")
    A("s_waitcnt vmcnt(0) lgkmcnt(0)")
    ts(2)
    if cfg.WB:
        A(f"s_lshr_b32 s50, s2, 3\ns_or_b32 s50, s50, s61\ns_cbranch_scc1 L_nowb\nbuffer_wbl2 sc1\ns_waitcnt vmcnt(0)\nL_nowb:")
    if cfg.FC:
        gx = cfg.GX if cfg.FC == 2 else 0
        A(f"""s_cmp_lg_u32 s61, 3
        s_cbranch_scc1 L_noctl
        s_add_u32 s63, s63, {K_TAG}
        s_and_b32 s24, s2, 7
        s_lshr_b32 s25, s2, 3
        s_mul_i32 s26, s24, 4352
        s_add_u32 s26, s26, {WS_P}
        v_min_u32 v48, 32, v1
        v_lshlrev_b32 v48, 2, v48
        v_add_u32 v48, s26, v48
        s_lshl_b32 s50, s25, 2
        s_add_u32 s50, s50, s26
        v_mov_b32 v49, s50
        v_mov_b32 v50, {L_FC}
        s_mov_b32 s27, {cfg.CK0}
        s_mov_b32 s28, 0""")
        if cfg.PAR:
            A(f"s_getreg_b32 s29, hwreg(HW_REG_XCC_ID, 0, 1)\ns_cmp_eq_u32 s29, 0\ns_cselect_b32 s29, {4*cfg.PAR}, 0")
        if gx:
            A(f"""s_add_u32 s50, s26, 128
            v_mov_b32 v54, s50
            s_mul_i32 s50, s24, 4224
            s_add_u32 s50, s50, {WS_G}
            v_mov_b32 v55, s50
            v_and_b32 v56, 7, v1
            v_mul_u32_u24 v56, 4224, v56
            v_add_u32 v56, {WS_G}, v56""")
        A(f"""L_ctl:
        s_sleep 1
        ds_read_b32 v51, v50 offset:16
        s_waitcnt lgkmcnt(0)
        v_readfirstlane_b32 s50, v51
        s_cmp_gt_u32 s50, s27
        s_cbranch_scc1 L_ctl
        s_sub_u32 s30, s63, s27
        v_mov_b32 v52, s30
        s_mov_b64 exec, 1
        global_store_dword v49, v52, s[18:19]
        s_mov_b64 exec, -1
        global_load_dword v53, v48, s[18:19] sc1
        s_waitcnt vmcnt(0)""")
        if gx:
            A("v_readlane_b32 s36, v53, 32")
        A(f"""v_subrev_u32 v53, s30, v53
        v_cmp_gt_u32 vcc, 32, v53
        s_nop 3
        s_bcnt1_i32_b32 s31, vcc_lo
        s_lshl_b32 s37, s31, 1""")
        if gx:
            A(f"""s_sub_u32 s36, s36, s63
            s_cmp_lt_u32 s36, 17
            s_cselect_b32 s36, s36, 9
            s_mul_i32 s36, s36, {gx}
            s_add_u32 s37, s37, s36""")
        if cfg.PAR:
            A("s_add_u32 s37, s37, s29")
        off = 9 * gx + 2 * cfg.PAR
        A(f"""s_mov_b32 s38, 1
        s_cmp_ge_u32 s37, {2*cfg.THI + off}
        s_cselect_b32 s38, 2, s38
        s_cmp_ge_u32 s37, {2*cfg.TH2 + off if cfg.TH2 else 9999}
        s_cselect_b32 s38, 3, s38
        s_cmp_lt_u32 s37, {2*cfg.TLO + off}
        s_cselect_b32 s38, 0, s38
        v_mov_b32 v51, s38
        ds_write_b32 v50, v51""")
        if gx:
            A(f"""s_add_u32 s28, s28, 1
            s_and_b32 s50, s28, {cfg.GMASK}
            s_cbranch_scc1 L_ctlnext
            s_sub_u32 s50, s31, 15
            s_cmp_ge_u32 s50, 2
            s_cbranch_scc1 L_ctlnext
            s_mov_b64 exec, 1
            global_store_dword v55, v52, s[18:19] sc1
            s_mov_b64 exec, -1
            global_load_dword v53, v56, s[18:19] sc1
            s_waitcnt vmcnt(0)
            v_subrev_u32 v53, s30, v53
            v_cmp_gt_u32 vcc, 32, v53
            s_lshl_b32 s50, 1, s24
            s_nop 3
            s_or_b32 s50, s50, vcc_lo
            s_and_b32 s50, s50, 0xff
            s_bcnt1_i32_b32 s50, s50
            s_lshl_b32 s50, s50, 1
            s_add_u32 s50, s50, s63
            v_mov_b32 v52, s50
            s_mov_b64 exec, 1
            global_store_dword v54, v52, s[18:19]
            s_mov_b64 exec, -1
            L_ctlnext:""")
        A(f"""s_sub_u32 s27, s27, {cfg.CKIT}
        s_cmp_gt_i32 s27, {cfg.VEND}
        s_cbranch_scc1 L_ctl
        s_waitcnt vmcnt(0) lgkmcnt(0)
        L_noctl:""")
    A("s_setprio 3\ns_barrier\ns_barrier")
    ts(3)
    for w in range(4):
        A(f"ds_read_b64 v[{48+2*w}:{49+2*w}], v{vAO} offset:{1024*w}")
    A(f"""s_waitcnt lgkmcnt(2)
    v_pk_add_f32 v[48:49], v[48:49], v[50:51]
    s_waitcnt lgkmcnt(0)
    v_pk_add_f32 v[52:53], v[52:53], v[54:55]
    v_pk_add_f32 v[48:49], v[48:49], v[52:53]
    """)
    if cfg.SM:
        A(f"v_cvt_pk_bf16_f32 v{vOP0}, v48, 0\nv_cvt_pk_bf16_f32 v{vOP1}, v49, 0\ns_nop 0")
        def sbuild(t):
            ob = OB1 if t & 1 else OB0
            r = []
            for odd in range(2):
                for a_ in range(4):
                    bank = 2 * (a_ & 1) + odd
                    r.append(f"v_mov_b32_dpp v{ob+a_}, v{vOP1 if a_ >> 1 else vOP0} {ror(bank - t)} row_mask:0xf bank_mask:{hex(1 << bank)}")
            return r
        if cfg.TS2:
            ts(8)
        for l in sbuild(0):
            A(l)
        A("s_nop 1")
        nov = (72 - NWS) // 2
        for m in range(36):
            t, cb = divmod(m, 9)
            ob = OB1 if t & 1 else OB0
            slot = 2 * m if 2 * m < NWS else 2 * m - NWS
            if 2 * m >= NWS:
                issued = min(72 - NWS, m - 1)
                A(f"s_waitcnt lgkmcnt({min(14, issued - (2 * m - NWS + 2))})")
            A(f"v_smfmac_f32_16x16x64_bf16 {q(YACC+4*cb)}, {q(ob)}, v[{WS(slot)}:{WS(slot)+7}], v{vS1}")
            if 1 <= m <= 72 - NWS:
                A(f"ds_read_b128 {q(WS(m-1))}, v{vAW} offset:{L_WO + (m-1)*1024}")
            if t < 3 and 1 <= cb <= 6:
                bl = sbuild(t + 1)
                for l in {1: bl[0:2], 2: bl[2:4], 3: bl[4:5], 4: bl[5:6], 5: bl[6:7], 6: bl[7:8]}[cb]:
                    A(l)
    else:
        A(f"""v_cvt_pk_bf16_f32 v48, v48, v49
        v_perm_b32 v{vOP0}, v48, v48, v{vS1}
        v_perm_b32 v{vOP1}, v48, v48, v{vS2}
        s_nop 0""")
        build(OB0, vOP0, 0)
        A("s_nop 1")
        for k in range(72):
            rg, cb = divmod(k, 9)
            ob = OB1 if rg & 1 else OB0
            slot = k if k < NWS else k - NWS
            if k == NWS:
                A("s_waitcnt lgkmcnt(0)")
            A(f"v_mfma_f32_16x16x32_bf16 {q(YACC+4*cb)}, {q(ob)}, {q(WS(slot))}, {'0' if rg == 0 else q(YACC+4*cb)}")
            if 1 <= k <= 72 - NWS:
                A(f"ds_read_b128 {q(WS(k-1))}, v{vAW} offset:{L_WO + (k-1)*1024}")
            if 1 <= cb <= 4 and rg < 7:
                nrg = rg + 1
                r = cb - 1
                A(f"v_mov_b32_dpp v{(OB1 if nrg & 1 else OB0)+r}, v{vOP1 if nrg >> 2 else vOP0} {ror(r - (nrg & 3))} row_mask:0xf bank_mask:{hex(1 << r)}")
    if cfg.TS2:
        ts(10)
    Y = lambda p: WS(30) + 2 * p
    for p in range(4):
        d = YACC + 4 * (2 * p)
        A(f"v_add_f32_dpp v{Y(p)}, v{d+1}, v{d} row_ror:8 row_mask:0xf bank_mask:0x3")
        A(f"v_add_f32_dpp v{Y(p)+1}, v{d+3}, v{d+2} row_ror:8 row_mask:0xf bank_mask:0x3")
    for p in range(4):
        d = YACC + 4 * (2 * p + 1)
        A(f"v_add_f32_dpp v{Y(p)}, v{d}, v{d+1} row_ror:8 row_mask:0xf bank_mask:0xc")
        A(f"v_add_f32_dpp v{Y(p)+1}, v{d+2}, v{d+3} row_ror:8 row_mask:0xf bank_mask:0xc")
        A(f"ds_write_b64 v{vAY}, v[{Y(p)}:{Y(p)+1}] offset:{512*p}")
    d = YACC + 32
    A(f"v_add_f32_dpp v{Y(4)}, v{d+1}, v{d} row_ror:8 row_mask:0xf bank_mask:0xf")
    A(f"v_add_f32_dpp v{Y(4)+1}, v{d+3}, v{d+2} row_ror:8 row_mask:0xf bank_mask:0xf")
    A(f"ds_write_b64 v{vAY}, v[{Y(4)}:{Y(4)+1}] offset:2048")
    A("s_mov_b32 exec_hi, 0xffff\nv_mov_b32 v15, s60\ns_waitcnt lgkmcnt(0)")
    ts(4)
    A("s_barrier")
    for w in range(4):
        A(f"ds_read_b64 v[{12+4*w}:{13+4*w}], v{vAR} offset:{2560*w}")
        A(f"ds_read_b32 v{14+4*w}, v0 offset:{2560*w}")
    A(f"""s_waitcnt lgkmcnt(4)
    v_pk_add_f32 v[12:13], v[12:13], v[16:17]
    v_add_f32 v14, v14, v18
    s_waitcnt lgkmcnt(0)
    v_pk_add_f32 v[20:21], v[20:21], v[24:25]
    v_add_f32 v22, v22, v26
    v_pk_add_f32 v[12:13], v[12:13], v[20:21]
    v_add_f32 v14, v14, v22
    """)
    if 'h' in cfg.ABL or 'i' in cfg.ABL:
        A(f"s_cmp_ge_u32 s61, {2 if 'h' in cfg.ABL else 1}\ns_cbranch_scc1 L_end")
    if 'y' not in cfg.ABL:
        A(f"buffer_store_dwordx4 v[12:15], v{vS3}, s[40:43], 0 offen {cfg.YST}")
    ts(5)
    ts_store()
    if cfg.SPIN:
        A(f"L_spin:\ns_memrealtime s[92:93]\ns_waitcnt lgkmcnt(0)\ns_sub_u32 s92, s92, s90\ns_cmp_lt_u32 s92, {cfg.SPIN}\ns_cbranch_scc1 L_spin")
    A("L_end:\ns_endpgm")
    return "\n".join(o)

HEADER = open("standalone__gqa_block_cached__sampling.s.ref").read().split("; Override launch")[0]

def full(cfg):
    body = gen(cfg)
    return f"""{HEADER}; @launch grid=(256,1,1) block=(512,1,1) lds={LDS_BYTES}
.amdgcn_target "amdgcn-amd-amdhsa--gfx950"
.text
.globl {cfg.kname}
.p2align 8
.type {cfg.kname},@function
{body}
.section .rodata,"a"
.p2align 6
.amdhsa_kernel {cfg.kname}
  .amdhsa_next_free_vgpr 256
  .amdhsa_next_free_sgpr 96
  .amdhsa_accum_offset 256
  .amdhsa_group_segment_fixed_size 0
  .amdhsa_kernarg_size 64
  .amdhsa_user_sgpr_count 2
  .amdhsa_user_sgpr_kernarg_segment_ptr 1
  .amdhsa_system_sgpr_workgroup_id_x 1
.end_amdhsa_kernel
"""

if __name__ == "__main__":
    cfg = Cfg()
    out = sys.argv[1]
    for kv in sys.argv[2:]:
        k, v = kv.split("=")
        cur = getattr(cfg, k)
        setattr(cfg, k, type(cur)(int(v)) if isinstance(cur, (int, bool)) else v.replace('+', ' '))
    open(out, "w").write(full(cfg))
```

```python
import sys

NAME = "standalone__gqa_block_cached__sampling"

class Cfg:
    N = 5
    P = 56
    LV = 7
    LK = 7
    NP = 6
    NK = 5
    NV = 5
    WO_DEPTH = 2
    WFLAG = "nt"
    TS = False
    MAP = 0
    AMP = 0
    WARM = 2
    WARMF = ''
    WARMS = 0
    WO_MIX = 0
    WARMD = 18
    WB = 0
    FC = 2
    CK0 = 30
    CKIT = 2
    THI = 26
    TLO = 7
    GX = 2
    GMASK = 1
    G0 = 1
    GS = 1
    GW = 2
    PM = 1
    WB_STEP = 6
    CMAX = 1
    GR = 7
    GEND = 0
    OST = ''
    EST = 'sc1'
    WBE = 0
    RETOUCH = 0
    CSLEEP = 1
    PAR = 0
    NLO = 4
    NHI = 6
    NH2 = 7
    LEV = ''
    TH2 = 0
    TS2 = 0
    TSL = 0
    SM = 1
    ROT = 0
    RSH = 0
    PT = 0
    R = 4
    PW = 1
    YSLEEP = 0
    NSET = 1
    VEND = 2
    NE = 7
    VODD = 0
    ABL = ''
    WQFLAG = ''
    SPIN = 0
    NOK = 0
    QPOLLS = 200
    QSLEEP = 0
    QBAR = 0
    QST = ''
    QLD = 'sc1'
    YST = 'sc1'
    YLD = 'sc1'
    QSLEEP0 = 8
    kname = NAME + "_kernel"

L_WO = 0
L_SC = 98304
L_Y = L_SC + 32768
L_O = L_Y + 10240
L_Q = L_O + 4096
L_ML = L_Q + 512
L_FC = L_ML + 64
L_END = L_FC + 32
LDS_BYTES = L_END

WS_Q = 0x100000
WS_E = 0xF0000
WS_F = 0x1000000
YSLOT = 3072
WS_P = 0xD0000
WS_G = 0xE0000
K_TAG = 0x9e3779b9
C_SCALE = 0x3DB504F3
C_LOG2E = 0x3FB8AA3B

def ror(k):
    k = (4 * k) % 16
    return "quad_perm:[0,1,2,3]" if k == 0 else f"row_ror:{k}"

def q(b):
    return f"v[{b}:{b+3}]"

def gen(cfg):
    o = []
    def A(s):
        for line in s.split("\n"):
            o.append("    " + line.strip() if not line.strip().endswith(":") else line.strip())
    K = cfg.kname
    N, P, LV, LK = cfg.NP, cfg.P, cfg.LV, cfg.LK
    assert cfg.NK <= LK <= 7 and cfg.NV <= LV <= 7 and LV >= LK
    lev = cfg.LEV or f"0:{cfg.NLO},{cfg.TLO}:{cfg.NV},{cfg.THI}:{cfg.NHI}" + (f",{cfg.TH2}:{cfg.NH2}" if cfg.TH2 else "")
    LEV = [(int(x.split(":")[0]), x.split(":")[1]) for x in lev.split(",")]
    if cfg.WB_STEP:
        LEV.append((999, str(min(7, int(LEV[-1][1][-1]) + 1))))
    MID = max(i for i, (t_, _) in enumerate(LEV) if t_ <= 16)
    wf = (" " + cfg.WFLAG) if cfg.WFLAG else ""
    in_aux = [False]
    def ts(idx):
        if cfg.TS and not (cfg.TSL and (idx != 7 or in_aux[0])):
            A(f"s_memrealtime s[{64+2*idx}:{65+2*idx}]\ns_waitcnt lgkmcnt(0)")
    def ts_store():
        if cfg.TS and not (cfg.TSL and in_aux[0]):
            A(f"""s_mov_b64 exec, 1
            s_lshl_b32 s60, s2, 3
            s_add_u32 s60, s60, s3
            s_lshl_b32 s60, s60, 6
            s_add_u32 s60, s60, 0x400000
            v_mov_b32 v1, s60""")
            for i in ((0, 7) if cfg.TSL else range(12)):
                A(f"v_mov_b32 v2, s{64+2*i}\nglobal_store_dword v1, v2, s[18:19] offset:{4*i}\ns_nop 1")
            A("s_getreg_b32 s60, hwreg(HW_REG_XCC_ID)\nv_mov_b32 v2, s60\nglobal_store_dword v1, v2, s[18:19] offset:48")

    def build(dst, src, t):
        for r in range(4):
            A(f"v_mov_b32_dpp v{dst+r}, v{src} {ror(r - t)} row_mask:0xf bank_mask:{hex(1 << r)}")

    A(f"{K}:")
    A(f"s_cmp_ge_u32 s2, 256\ns_cbranch_scc1 L_end")
    A("s_load_dwordx16 s[4:19], s[0:1], 0")
    if cfg.TS:
        for i in range(12):
            A(f"s_mov_b64 s[{64+2*i}:{65+2*i}], 0")
        A("s_memrealtime s[64:65]")
    if cfg.SPIN:
        A("s_memrealtime s[90:91]")
    if cfg.AMP:
        A("s_memrealtime s[92:93]")
    A("""v_lshrrev_b32 v2, 6, v0
    v_and_b32 v1, 63, v0
    v_readfirstlane_b32 s3, v2
    """)
    if cfg.MAP == 0:
        A("s_and_b32 s48, s2, 15\ns_lshr_b32 s49, s2, 4")
    elif cfg.MAP == 1:
        A("s_and_b32 s48, s2, 7\ns_lshl_b32 s48, s48, 1\ns_bfe_u32 s49, s2, 0x10003\ns_add_u32 s48, s48, s49\ns_lshr_b32 s49, s2, 4")
    elif cfg.MAP == 2:
        A("s_and_b32 s48, s2, 3\ns_lshl_b32 s48, s48, 2\ns_bfe_u32 s49, s2, 0x20003\ns_add_u32 s48, s48, s49\ns_lshr_b32 s49, s2, 5\ns_lshl_b32 s49, s49, 1\ns_bfe_u32 s50, s2, 0x10002\ns_add_u32 s49, s49, s50")
    elif cfg.MAP == 3:
        A("s_bfe_u32 s48, s2, 0x40003\ns_lshr_b32 s49, s2, 7\ns_lshl_b32 s49, s49, 3\ns_and_b32 s50, s2, 7\ns_add_u32 s49, s49, s50")
    A("""s_lshl_b32 s62, s49, 4
    s_add_u32 s62, s62, s48
    s_cmp_ge_u32 s3, 4
    s_cbranch_scc1 L_aux""")

    SLOT = lambda n: 32 + 4 * n
    vOK, vOV, vSCA, vM, vL, vSA, vSB, vT, vTA, vTB, vSELA, vSELB, vPA, vPB = range(2, 16)
    vQ, vD0, vD1 = 16, 20, 24
    vNM, vTR, vX0, vX1 = 28, 29, 30, 31
    A("s_setprio 3")
    A(f"""v_and_b32 v{vOK}, 3, v1
    v_lshlrev_b32 v{vOK}, 4, v{vOK}
    v_lshrrev_b32 v{vT}, 4, v1
    v_lshl_add_u32 v{vOK}, v{vT}, 6, v{vOK}
    v_bfe_u32 v{vT}, v1, 2, 2
    v_lshl_add_u32 v{vOK}, v{vT}, 8, v{vOK}
    s_lshl_b32 s50, s3, 12
    v_add_u32 v{vOK}, s50, v{vOK}
    s_lshl_b32 s51, s62, 20
    s_mov_b32 s52, 0
    s_mov_b32 s22, 0x100000
    s_mov_b32 s23, 0x20000
    s_lshr_b32 s53, s62, {cfg.RSH}
    s_mul_i32 s53, s53, {cfg.ROT * 16384}
    s_and_b32 s53, s53, 0xfffff
    s_mov_b32 s54, s53
    s_waitcnt lgkmcnt(0)
    s_add_u32 s20, s6, s51
    s_addc_u32 s21, s7, s52
    s_and_b32 s21, s21, 0xffff""")

    def issue(n, slot, wait=True, depth=None):
        if depth is None:
            depth = cfg.NP if n < P else (cfg.NK if n < 256 else cfg.NV)
        if wait:
            A(f"s_waitcnt vmcnt({depth-1})")
        isv = n >= 256
        so = "s54" if isv else "s53"
        A(f"buffer_load_dwordx4 {q(SLOT(slot))}, v{vOV if isv else vOK}, {'s[24:27]' if isv else 's[20:23]'}, {so} offen offset:{(n & 3) * 1024} nt")
        if (n & 3) == 3:
            A(f"s_add_u32 {so}, {so}, 0x4000")
            if cfg.ROT:
                A(f"s_and_b32 {so}, {so}, 0xfffff")

    if cfg.NOK:
        A("s_barrier")
    for n in range(P):
        issue(n, n, wait=(n >= N))
        if cfg.QBAR and n == cfg.QBAR:
            A("s_barrier")
        if n == N:
            ts(8)
        if n == N + 20:
            ts(9)
        if n == N - 1:
            A(f"""s_add_u32 s24, s8, s51
            s_addc_u32 s25, s9, s52
            s_and_b32 s25, s25, 0xffff
            s_mov_b32 s26, 0x100000
            s_mov_b32 s27, 0x20000
            s_lshl_b32 s55, s49, 2
            s_add_u32 s55, s55, {WS_E}
            s_load_dword s59, s[18:19], s55
            v_lshlrev_b32 v{vOV}, 4, v1
            v_add_u32 v{vOV}, s50, v{vOV}
            s_lshl_b32 s55, s3, 13
            s_add_u32 s55, s55, {L_SC}
            v_lshlrev_b32 v{vSCA}, 2, v1
            v_add_u32 v{vSCA}, s55, v{vSCA}
            v_mov_b32 v{vM}, 0xff800000
            s_mov_b32 s56, {hex(C_SCALE)}
            s_mov_b32 s57, {hex(C_LOG2E)}
            v_and_b32 v{vT}, 2, v1
            v_cmp_eq_u32 vcc, 0, v{vT}
            v_mov_b32 v{vTA}, 0x01000c0c
            v_mov_b32 v{vTB}, 0x0c0c0100
            v_cndmask_b32 v{vSELA}, v{vTA}, v{vTB}, vcc
            v_mov_b32 v{vTA}, 0x03020c0c
            v_mov_b32 v{vTB}, 0x0c0c0302
            v_cndmask_b32 v{vSELB}, v{vTA}, v{vTB}, vcc
            v_and_b32 v{vX0}, 1, v1
            v_lshlrev_b32 v{vX0}, 8, v{vX0}
            v_lshrrev_b32 v{vT}, 2, v1
            v_lshl_add_u32 v{vX0}, v{vT}, 4, v{vX0}
            v_add_u32 v{vX0}, {L_Q}, v{vX0}""")
    ts(1)
    if not cfg.NOK:
        A("s_barrier")
    A(f"ds_read_b128 {q(vQ)}, v{vX0}")
    A("s_waitcnt lgkmcnt(0)")
    ts(2)

    def chain_ops(c, D, tmp):
        t = c & 3
        S = vSA if (c & 4) == 0 else vSB
        rs = [r for r in range(4) if r != t]
        return [
            f"v_add_f32_dpp v{tmp}, v{D+rs[0]}, v{D+t} {ror(t - rs[0])} row_mask:0xf bank_mask:0xf",
            f"v_add_f32_dpp v{tmp}, v{D+rs[1]}, v{tmp} {ror(t - rs[1])} row_mask:0xf bank_mask:0xf",
            f"v_add_f32_dpp v{S}, v{D+rs[2]}, v{tmp} {ror(t - rs[2])} row_mask:0xf bank_mask:{hex(1 << t)}",
        ]

    def finalize(off=None):
        A(f"""v_cvt_pk_bf16_f32 v{vT}, v{vSA}, v{vSB}
        v_lshlrev_b32 v{vTA}, 16, v{vT}
        v_and_b32 v{vTB}, 0xffff0000, v{vT}
        v_mul_f32 v{vTA}, s56, v{vTA}
        v_mul_f32 v{vTB}, s56, v{vTB}
        v_max3_f32 v{vM}, v{vM}, v{vTA}, v{vTB}
        v_cvt_pk_bf16_f32 v{vT}, v{vTA}, v{vTB}
        ds_write_b32 v{vSCA}, v{vT}
        v_add_u32 v{vSCA}, 0x100, v{vSCA}""")

    Dof = lambda n: vD0 if n == 0 else (vD1 if n == P - 1 else SLOT(n - 1))
    tmps = [vPA, vPB, vX1]
    ring_at = {}
    for k in range(LK):
        ring_at[(P - 8) * (k + 1) // LK] = k
    for s in range(P + 3):
        if s in ring_at:
            k = ring_at[s]
            assert s >= k + 1 + 4 + 1
            issue(P + k, k)
        if P - 8 <= s < P:
            A(f"s_waitcnt vmcnt({P - 1 - s + LK})")
        if s < P:
            A(f"v_mfma_f32_16x16x32_bf16 {q(Dof(s))}, {q(SLOT(s))}, {q(vQ)}, 0")
        else:
            A("s_nop 0")
        for (lag, opi) in ((4, 2), (3, 1), (2, 0)):
            c = s - lag
            if 0 <= c < P - 1:
                A(chain_ops(c, Dof(c), tmps[c % 3])[opi])
            else:
                A("s_nop 0")
        c = s - 4
        if c >= 0 and (c & 7) == 7 and c < P - 1:
            finalize()
    ts(3)

    def kstep(c, nissue):
        issue(nissue, nissue % 8)
        A(f"v_mfma_f32_16x16x32_bf16 {q(vD1 if c & 1 else vD0)}, {q(SLOT(c % 8))}, {q(vQ)}, 0")
        pc = (c - 1) % 8
        ops = chain_ops(pc, vD1 if pc & 1 else vD0, vX1)
        A("s_nop 1")
        A(ops[0]); A("s_nop 1"); A(ops[1]); A("s_nop 1"); A(ops[2])
        if pc == 7:
            finalize()

    nkit = (256 - P) // 8
    A(f"s_mov_b32 s58, {nkit - 1}")
    A("L_kloop:")
    for c in range(8):
        kstep(c, P + c + LK)
    A("s_sub_u32 s58, s58, 1\ns_cmp_lg_u32 s58, 0\ns_cbranch_scc1 L_kloop")
    for c in range(248, 256):
        kstep(c, c + LK)
    A("s_nop 7")
    ops = chain_ops(7, vD1, vX1)
    A(ops[0]); A("s_nop 1"); A(ops[1]); A("s_nop 1"); A(ops[2])
    finalize()
    ts(4)
    A(f"v_subrev_u32 v{vSCA}, 0x2000, v{vSCA}")
    A(f"ds_read_b32 v{vTR}, v{vSCA}")
    extra = list(range(256 + LK, 256 + LV))
    if extra:
        issue(extra[0], extra[0] % 8)
    def xreduce(v, op, tmp):
        A(f"""s_nop 1
        {op}_dpp v{v}, v{v}, v{v} row_ror:4 row_mask:0xf bank_mask:0xf
        s_nop 1
        {op}_dpp v{v}, v{v}, v{v} row_ror:8 row_mask:0xf bank_mask:0xf
        v_mov_b32 v{tmp}, v{v}
        s_nop 1
        v_permlane16_swap_b32 v{v}, v{tmp}
        {op} v{v}, v{v}, v{tmp}
        v_mov_b32 v{tmp}, v{v}
        s_nop 1
        v_permlane32_swap_b32 v{v}, v{tmp}
        {op} v{v}, v{v}, v{tmp}""")
    xreduce(vM, "v_max_f32", vT)
    A(f"""v_cvt_pk_bf16_f32 v{vM}, v{vM}, v{vM}
    v_lshlrev_b32 v{vM}, 16, v{vM}
    v_mul_f32 v{vM}, s57, v{vM}
    v_sub_f32 v{vNM}, 0, v{vM}
    v_mov_b32 v{vL}, 0""")
    for r in range(16, 28):
        A(f"v_mov_b32 v{r}, 0")
    vO = vQ
    def expblock():
        A(f"""s_waitcnt lgkmcnt(0)
        v_lshlrev_b32 v{vTA}, 16, v{vTR}
        v_and_b32 v{vTB}, 0xffff0000, v{vTR}
        v_fma_f32 v{vTA}, v{vTA}, s57, v{vNM}
        v_fma_f32 v{vTB}, v{vTB}, s57, v{vNM}
        v_exp_f32 v{vTA}, v{vTA}
        v_exp_f32 v{vTB}, v{vTB}
        v_add_f32 v{vL}, v{vL}, v{vTA}
        s_nop 0
        v_add_f32 v{vL}, v{vL}, v{vTB}
        v_cvt_pk_bf16_f32 v{vT}, v{vTA}, v{vTB}""")
    expblock()
    A(f"v_perm_b32 v{vPA}, v{vT}, v{vT}, v{vSELA}\nv_perm_b32 v{vPB}, v{vT}, v{vT}, v{vSELB}")
    for n in extra[1:]:
        issue(n, n % 8)
    A("s_nop 1")

    def vstep(c, missue, waitn=None, depth=None):
        pb = vD1 if c & 1 else vD0
        build(pb, vPA if (c & 4) == 0 else vPB, c & 3)
        if missue is not None:
            issue(256 + missue, missue % 8, depth=depth)
        else:
            A(f"s_waitcnt vmcnt({waitn})\ns_nop 0")
        A(f"v_mfma_f32_16x16x32_bf16 {q(vO)}, {q(SLOT(c % 8))}, {q(pb)}, {q(vO)}")

    vFA, vFM = vSA, vSB
    def vbody(depth, fc):
        for c in range(8):
            vstep(c, c + LV, depth=int(str(depth)[c % len(str(depth))]))
            if c == 0:
                A(f"v_add_u32 v{vSCA}, 0x100, v{vSCA}\nds_read_b32 v{vTR}, v{vSCA}")
            if c == 2:
                expblock()
            if c == 4:
                A(f"v_perm_b32 v{vPA}, v{vT}, v{vT}, v{vSELA}")
            if c == 6 and fc:
                A(f"ds_read_b32 v{vFM}, v{vX0}")
            if c == cfg.WB_STEP and fc and cfg.WB_STEP:
                A(f"ds_read_b128 {q(SLOT(9))}, v{vX0} offset:16")
            if c == 7:
                A(f"v_perm_b32 v{vPB}, v{vT}, v{vT}, v{vSELB}")
    def vloop(label, depth):
        A(f"{label}:")
        vbody(depth, False)
        A(f"s_sub_u32 s58, s58, 1\ns_cmp_lg_u32 s58, s63\ns_cbranch_scc1 {label}")
    A("s_mov_b32 s58, 31")
    if cfg.VODD:
        A(f"s_getreg_b32 s63, hwreg(HW_REG_XCC_ID, 0, 1)\ns_cmp_eq_u32 s63, 0\ns_cselect_b32 s63, {cfg.VEND + cfg.VODD}, {cfg.VEND}")
    else:
        A(f"s_mov_b32 s63, {cfg.VEND}")
    if cfg.FC:
        A(f"""v_mov_b32 v{vX0}, {L_FC}
        s_lshl_b32 s55, s3, 2
        v_add_u32 v{vFA}, s55, v{vX0}
        v_mov_b32 v{vX1}, s58
        ds_write_b32 v{vFA}, v{vX1} offset:16""")
        order = [MID] + [i for i in range(len(LEV)) if i != MID]
        for n_, i in enumerate(order):
            A(f"L_v{i}:")
            vbody(LEV[i][1], True)
            if n_ != len(order) - 1:
                A("s_branch L_vbot")
        A(f"""L_vbot:
        s_sub_u32 s58, s58, 1
        v_mov_b32 v{vX1}, s58
        s_waitcnt lgkmcnt(0)
        v_readfirstlane_b32 s55, v{vFM}
        ds_write_b32 v{vFA}, v{vX1} offset:16
        """)
        if cfg.WB_STEP:
            p = SLOT(9)
            A(f"""v_min3_u32 v{p}, v{p}, v{p+1}, v{p+2}
            v_min_u32 v{p}, v{p}, v{p+3}
            s_nop 0
            v_readfirstlane_b32 s50, v{p}
            s_cmp_le_u32 s50, s58
            s_addc_u32 s55, s55, 0""")
        A(f"""
        """)
        if cfg.TS2 == 2:
            for val, idx in ((22, 8), (14, 9), (8, 10), (2, 11)):
                A(f"s_cmp_lg_u32 s58, {val}\ns_cbranch_scc1 L_ts{idx}")
                ts(idx)
                A(f"L_ts{idx}:")
        A(f"""s_cmp_eq_u32 s58, s63
        s_cbranch_scc1 L_vout""")
        for i in order[:-1]:
            A(f"s_cmp_eq_u32 s55, {i}\ns_cbranch_scc1 L_v{i}")
        A(f"""s_branch L_v{order[-1]}
        L_vout:""")
    else:
        vloop("L_vloop", cfg.NV)
    if cfg.VEND:
        A("s_mov_b32 s63, 0")
        vloop("L_vloop2", cfg.NE)
    c = 248
    while c + LV < 256:
        vstep(c, c + LV, depth=cfg.NE if cfg.VEND else None)
        c += 1
    ts(5)
    xreduce(vL, "v_add_f32", vT)
    A(f"""v_and_b32 v{vX0}, 1, v1
    v_lshlrev_b32 v{vX0}, 5, v{vX0}
    v_add_u32 v{vX0}, {L_ML}, v{vX0}
    s_lshl_b32 s55, s3, 3
    v_add_u32 v{vX1}, s55, v{vX0}
    v_mov_b32 v{vTA}, v{vM}
    v_mov_b32 v{vTB}, v{vL}
    ds_write_b64 v{vX1}, v[{vTA}:{vTB}]
    s_waitcnt lgkmcnt(0)
    s_barrier""")
    m0 = SLOT(9)
    A(f"""ds_read_b128 {q(m0)}, v{vX0}
    ds_read_b128 {q(m0+4)}, v{vX0} offset:16
    s_lshl_b32 s55, s3, 10
    s_add_u32 s55, s55, {L_O}
    v_lshlrev_b32 v{vX1}, 4, v1
    v_add_u32 v{vX1}, s55, v{vX1}
    s_waitcnt lgkmcnt(0)
    v_max3_f32 v{vT}, v{m0}, v{m0+2}, v{m0+4}
    v_max_f32 v{vT}, v{vT}, v{m0+6}
    v_sub_f32 v{m0}, v{m0}, v{vT}
    v_sub_f32 v{m0+2}, v{m0+2}, v{vT}
    v_sub_f32 v{m0+4}, v{m0+4}, v{vT}
    v_sub_f32 v{m0+6}, v{m0+6}, v{vT}
    v_sub_f32 v{vTA}, v{vM}, v{vT}
    v_exp_f32 v{m0}, v{m0}
    v_exp_f32 v{m0+2}, v{m0+2}
    v_exp_f32 v{m0+4}, v{m0+4}
    v_exp_f32 v{m0+6}, v{m0+6}
    v_exp_f32 v{vTA}, v{vTA}
    v_mul_f32 v{vTB}, v{m0}, v{m0+1}
    v_fmac_f32 v{vTB}, v{m0+2}, v{m0+3}
    v_fmac_f32 v{vTB}, v{m0+4}, v{m0+5}
    v_fmac_f32 v{vTB}, v{m0+6}, v{m0+7}
    v_rcp_f32 v{vTB}, v{vTB}
    s_nop 0
    v_mul_f32 v{vTA}, v{vTA}, v{vTB}""")
    while c < 256:
        vstep(c, None, 255 - c)
        c += 1
    A("s_nop 7")
    for r in range(4):
        A(f"v_mul_f32 v{vO+r}, v{vO+r}, v{vTA}")
    A(f"""ds_write_b128 v{vX1}, {q(vO)}
    s_waitcnt lgkmcnt(0)""")
    ts(6)
    A("s_barrier")
    G = 192 // cfg.R
    sh = {4: 2, 8: 1, 16: 0}[cfg.R]
    A(f"""s_sub_u32 s51, s48, s49
    s_and_b32 s51, s51, 15
    s_and_b32 s50, s51, {(1 << sh) - 1}
    s_cbranch_scc1 L_sdone
    s_cmp_ge_u32 s3, {0 if ('y' in cfg.ABL or 'p' in cfg.ABL) else (3 if cfg.PM else cfg.PW)}
    s_cbranch_scc1 L_sdone
    s_lshr_b32 s51, s51, {sh}
    s_cmp_ge_u32 s51, {2 if 'h' in cfg.ABL else (1 if 'i' in cfg.ABL else 16)}
    s_cbranch_scc1 L_sdone
    s_mul_i32 s52, s51, {G}
    """)
    if cfg.PM:
        assert cfg.R == 4
        A(f"""s_lshl_b32 s53, s3, 4
        s_add_u32 s52, s52, s53
        v_and_b32 v0, 15, v1
        v_add_u32 v0, s52, v0
        v_lshrrev_b32 v9, 4, v1
        v_mul_u32_u24 v9, {YSLOT}, v9""")
    else:
        A("v_add_u32 v0, s52, v1")
    A(f"""
    s_add_u32 s59, s59, {K_TAG}
    s_mul_i32 s50, s49, {16*YSLOT}
    s_add_u32 s40, s18, s50
    s_addc_u32 s41, s19, 0
    s_and_b32 s41, s41, 0xffff
    s_mov_b32 s42, {16*YSLOT}
    s_mov_b32 s43, 0x20000
    s_mul_i32 s50, s49, 1152
    s_add_u32 s44, s14, s50
    s_addc_u32 s45, s15, 0
    s_and_b32 s45, s45, 0xffff
    s_mov_b32 s46, 1152
    s_mov_b32 s47, 0x20000
    v_lshlrev_b32 v10, 4, v0
    v_add_u32 v11, {4*YSLOT}, v10
    v_add_u32 v12, {8*YSLOT}, v10
    v_add_u32 v13, {12*YSLOT}, v10
    s_mov_b32 s89, {YSLOT}
    s_mov_b32 s90, {2*YSLOT}
    s_mov_b32 s91, {3*YSLOT}
    v_lshlrev_b32 v3, 2, v0
    v_lshlrev_b32 v6, 1, v0
    s_mov_b32 s58, 0x800000
    """)
    if cfg.PM:
        A(f"""v_add_u32 v10, v10, v9
        s_mov_b32 s89, {4*YSLOT}
        s_mov_b32 s90, {8*YSLOT}
        s_mov_b32 s91, {12*YSLOT}
        s_barrier
        L_poll:
        buffer_load_dwordx4 v[32:35], v10, s[40:43], 0 offen {cfg.YLD}
        buffer_load_dwordx4 v[36:39], v10, s[40:43], s89 offen {cfg.YLD}
        buffer_load_dwordx4 v[40:43], v10, s[40:43], s90 offen {cfg.YLD}
        buffer_load_dwordx4 v[44:47], v10, s[40:43], s91 offen {cfg.YLD}
        s_sub_u32 s58, s58, 1
        s_waitcnt vmcnt(2)
        v_xor_b32 v35, s59, v35
        v_xor_b32 v39, s59, v39
        v_pk_add_f32 v[32:33], v[32:33], v[36:37]
        v_add_f32 v34, v34, v38
        s_waitcnt vmcnt(0)
        v_xor_b32 v43, s59, v43
        v_xor_b32 v47, s59, v47
        v_or3_b32 v35, v35, v39, v43
        v_or_b32 v35, v35, v47
        v_cmp_ne_u32 vcc, 0, v35
        v_pk_add_f32 v[40:41], v[40:41], v[44:45]
        v_add_f32 v42, v42, v46
        v_pk_add_f32 v[32:33], v[32:33], v[40:41]
        v_add_f32 v34, v34, v42
        s_cbranch_scc1 L_pollsum
        s_cbranch_vccnz L_poll
        L_pollsum:""")
        for sw in ("v_permlane16_swap_b32", "v_permlane32_swap_b32"):
            A(f"""v_mov_b32 v36, v32
            v_mov_b32 v37, v33
            v_mov_b32 v38, v34
            {sw} v32, v36
            {sw} v33, v37
            {sw} v34, v38
            v_pk_add_f32 v[32:33], v[32:33], v[36:37]
            v_add_f32 v34, v34, v38""")
        A(f"""s_mov_b64 exec, 0xffff
        v_cvt_pk_bf16_f32 v4, v32, v33
        v_cvt_pk_bf16_f32 v5, v34, v34""")
    else:
        A(f"""s_mov_b32 exec_lo, {hex(((1 << G) - 1) & 0xffffffff)}
        s_mov_b32 exec_hi, {hex(((1 << G) - 1) >> 32)}
        s_barrier""")
    NS = 0 if cfg.PM else cfg.NSET
    def pissue(R):
        for k in range(16):
            A(f"buffer_load_dwordx4 {q(R+4*k)}, v{10 + (k >> 2)}, s[40:43], s{88 + (k & 3) if (k & 3) else 0} offen {cfg.YLD}".replace("s0 offen", "0 offen"))
    for st in range(NS):
        pissue(32 + 64 * st)
    if NS:
        A("L_poll:")
    for st in range(NS):
        R = 32 + 64 * st
        for k in range(0, 16, 2):
            A(f"s_waitcnt vmcnt({14 - k + 16 * (NS - 1)})")
            a_, b_ = R + 4 * k, R + 4 * k + 4
            if k == 0:
                A(f"v_min_u32 v4, v{a_+3}, v{b_+3}\nv_max_u32 v5, v{a_+3}, v{b_+3}")
            else:
                A(f"v_min3_u32 v4, v4, v{a_+3}, v{b_+3}\nv_max3_u32 v5, v5, v{a_+3}, v{b_+3}")
            A(f"v_pk_add_f32 v[{a_}:{a_+1}], v[{a_}:{a_+1}], v[{b_}:{b_+1}]\nv_add_f32 v{a_+2}, v{a_+2}, v{b_+2}")
            if k:
                A(f"v_pk_add_f32 v[{R}:{R+1}], v[{R}:{R+1}], v[{a_}:{a_+1}]\nv_add_f32 v{R+2}, v{R+2}, v{a_+2}")
        A(f"""v_xor_b32 v4, s59, v4
        v_xor_b32 v5, s59, v5
        v_or_b32 v4, v4, v5
        v_cmp_ne_u32 vcc, 0, v4
        v_cvt_pk_bf16_f32 v4, v{R}, v{R+1}
        v_cvt_pk_bf16_f32 v5, v{R+2}, v{R+2}
        s_nop 2
        s_cbranch_vccz L_pollout""")
        pissue(R)
    if NS:
        A("s_sub_u32 s58, s58, 1\ns_cbranch_scc0 L_poll\nL_pollout:")
    A(f"""
    buffer_store_dword v4, v3, s[44:47], 0 offen {cfg.OST}
    buffer_store_short v5, v6, s[44:47], 0 offen offset:768 {cfg.OST}""")
    ts(7)
    A(f"""s_or_b32 s51, s51, s3
    s_cbranch_scc1 L_sdone
    s_lshl_b32 s50, s49, 2
    s_add_u32 s50, s50, {WS_E}
    v_mov_b32 v7, s50
    v_mov_b32 v8, s59
    s_mov_b64 exec, 1
    global_store_dword v7, v8, s[18:19] {cfg.EST}""")
    A("L_sdone:")
    if cfg.WBE:
        A(f"s_cmp_lg_u32 s3, 3\ns_cbranch_scc1 L_nowbe\ns_cmp_ge_u32 s2, {cfg.WBE}\ns_cbranch_scc1 L_nowbe\nbuffer_wbl2 sc1\nL_nowbe:")
    if cfg.AMP:
        A(f"""s_memrealtime s[94:95]
        s_waitcnt lgkmcnt(0)
        s_sub_u32 s94, s94, s92
        s_max_u32 s94, s94, 7000
        s_min_u32 s94, s94, 12000
        s_sub_u32 s50, s94, 7000
        s_mul_i32 s50, s50, {cfg.AMP}
        s_add_u32 s50, s50, s94
        s_cmp_eq_u32 s58, 0
        s_cbranch_scc1 L_noamp
        L_amp:
        s_sleep 2
        s_memrealtime s[94:95]
        s_waitcnt lgkmcnt(0)
        s_sub_u32 s94, s94, s92
        s_cmp_lt_u32 s94, s50
        s_cbranch_scc1 L_amp
        L_noamp:""")
    ts_store()
    A("s_endpgm")

    in_aux[0] = True
    A("L_aux:")
    A("s_sub_u32 s61, s3, 4")
    vOW, vA, vB, vC = 2, 3, 8, 9
    vSELA2, vSELB2, vST = 45, 46, 47
    A(f"s_cmp_eq_u32 s61, {7 if 'q' in cfg.ABL else 0}\ns_cbranch_scc1 L_qwave\ns_waitcnt lgkmcnt(0)")
    if cfg.WARM in (4, 5):
        st = 128 if cfg.WARM == 4 else 64
        A(f"""s_mul_i32 s50, s48, {256*1152}
        s_mul_i32 s51, s49, 3
        s_add_u32 s51, s51, s61
        s_sub_u32 s51, s51, 1
        s_mul_i32 s51, s51, 6144
        s_add_u32 s50, s50, s51
        s_add_u32 s32, s12, s50
        s_addc_u32 s33, s13, 0""")
        if cfg.WARMS:
            A(f"s_sleep {cfg.WARMS}")
        for i in range(6144 // st):
            A(f"s_load_dword s{64 + i % cfg.WARMD}, s[32:33], {i * st}")
            if i % cfg.WARMD == cfg.WARMD - 1:
                A("s_waitcnt lgkmcnt(0)")
        A("s_waitcnt lgkmcnt(0)")
    if cfg.WARM == 1:
        A(f"""s_mul_i32 s50, s48, {256*1152}
        s_add_u32 s32, s12, s50
        s_addc_u32 s33, s13, 0
        s_and_b32 s33, s33, 0xffff
        s_mov_b32 s34, {256*1152}
        s_mov_b32 s35, 0x20000
        s_mul_i32 s50, s49, 3
        s_add_u32 s50, s50, s61
        s_sub_u32 s50, s50, 1
        s_mul_i32 s50, s50, 6144
        v_lshlrev_b32 v2, 4, v1
        s_add_u32 s51, s50, 3072""")
        if cfg.WARMS:
            A(f"s_sleep {cfg.WARMS}")
        for i in range(6):
            A(f"buffer_load_dwordx4 {q(64+4*i)}, v2, s[32:35], {'s50' if i < 3 else 's51'} offen offset:{1024*(i % 3)} {cfg.WARMF}")
        A("s_waitcnt vmcnt(0)")
    A(("s_barrier\n" if cfg.QBAR else "") + "s_branch L_qdone")
    XR, WR, WP, QA = 48, 72, 148, 224
    vXO, vWO, vPO = 10, 11, 12
    A(f"""L_qwave:
    s_setprio 2
    v_and_b32 v{vA}, 15, v1
    v_lshrrev_b32 v{vB}, 4, v1
    v_mul_u32_u24 v{vXO}, 1152, v{vA}
    v_mad_u32_u24 v{vXO}, v{vB}, 36, v{vXO}
    v_mad_u32_u24 v{vXO}, v{vB}, 36, v{vXO}
    v_mul_u32_u24 v{vWO}, {36*8192}, v{vB}
    v_lshl_add_u32 v{vWO}, v{vA}, 3, v{vWO}
    v_lshlrev_b32 v{vPO}, 14, v{vB}
    v_lshl_add_u32 v{vPO}, v{vA}, 4, v{vPO}
    s_lshl_b32 s51, s48, 9
    s_mov_b32 s38, {16*1152}
    s_mov_b32 s39, 0x20000
    s_sub_u32 s30, {576*8192}, s51
    s_mov_b32 s31, 0x20000
    s_lshl_b32 s52, s48, 16
    s_add_u32 s52, s52, {WS_Q}
    s_mov_b32 s46, 0x10000
    s_mov_b32 s47, 0x20000
    s_mov_b32 s53, s49
    s_mov_b32 s54, 0
    s_mov_b32 s56, 0x05040100
    s_mov_b32 s57, 0x07060302
    s_waitcnt lgkmcnt(0)
    s_mov_b32 s36, s4
    s_and_b32 s37, s5, 0xffff
    s_add_u32 s28, s10, s51
    s_addc_u32 s29, s11, 0
    s_and_b32 s29, s29, 0xffff
    s_add_u32 s44, s18, s52
    s_addc_u32 s45, s19, 0
    s_and_b32 s45, s45, 0xffff
    s_lshl_b32 s50, s49, 2
    s_add_u32 s50, s50, {WS_E}
    s_load_dword s60, s[18:19], s50
    v_add_u32 v15, {K_TAG}, v{vA}
    L_produce:
    s_lshr_b32 s58, s53, 2
    s_and_b32 s59, s53, 3
    s_mul_i32 s50, s59, {144*8192}
    s_lshl_b32 s55, s58, 7
    s_add_u32 s50, s50, s55
    s_mul_i32 s55, s59, 288""")
    for n in range(36):
        A(f"buffer_load_dwordx2 v[{WR+2*n}:{WR+2*n+1}], v{vWO}, s[28:31], s50 offen {cfg.WQFLAG}")
        if n < 35:
            A("s_add_u32 s50, s50, 0x2000")
        if n == 7:
            for i in range(4):
                A(f"buffer_load_dwordx4 {q(XR+4*i)}, v{vXO}, s[36:39], s55 offen offset:{16*i} {cfg.WQFLAG}")
            A(f"buffer_load_dwordx2 v[{XR+16}:{XR+17}], v{vXO}, s[36:39], s55 offen offset:64 {cfg.WQFLAG}")
    ts(6)
    A(f"v_and_b32 v13, 0x30, v1\nv_add_u32 v13, {WS_E}, v13\nglobal_load_dwordx4 v[16:19], v13, s[18:19] {cfg.WQFLAG}")
    A("s_lshl_b32 s50, s59, 10\ns_lshl_b32 s55, s58, 8\ns_add_u32 s50, s50, s55")
    for st in range(5):
        rows = 8 if st < 4 else 4
        last = 8 * st + rows - 1
        A(f"s_waitcnt vmcnt({36 - last if st < 4 else 0})")
        for c in range(4):
            for m in range(rows // 2):
                r0 = 8 * st + 2 * m
                A(f"v_perm_b32 v{WP + 18*c + 4*st + m}, v{WR + 2*(r0+1) + (c >> 1)}, v{WR + 2*r0 + (c >> 1)}, {'s57' if c & 1 else 's56'}")
        A("s_nop 1")
        for c in range(4):
            w = WP + 18 * c + 4 * st
            cin = "0" if st == 0 else q(QA + 4 * c)
            if st < 4:
                A(f"v_mfma_f32_16x16x32_bf16 {q(QA+4*c)}, {q(XR+4*st)}, {q(w)}, {cin}")
            else:
                A(f"v_mfma_f32_16x16x16_bf16 {q(QA+4*c)}, v[{XR+16}:{XR+17}], v[{w}:{w+1}], {cin}")
    A(f"""s_waitcnt lgkmcnt(0)
    v_add_u32 v36, s60, v15
    v_lshrrev_b32 v37, 4, v36
    v_lshrrev_b32 v38, 8, v36
    v_lshrrev_b32 v39, 12, v36
    s_nop 3""")
    if 's' in cfg.ABL:
        A("s_branch L_first")
    tagr = ["v36", "v37", "v38", "v39"]
    for r in range(4):
        for c in range(4):
            A(f"v_bfi_b32 v{QA+16+4*r+c}, 15, {tagr[c]}, v{QA+4*c+r}")
        if not ('f' in cfg.ABL and r >= 1):
            A(f"buffer_store_dwordx4 {q(QA+16+4*r)}, v{vPO}, s[44:47], s50 offen {cfg.QST}")
        if r < 3:
            A("s_add_u32 s50, s50, 0x1000")
    ts(7)
    A(f"""s_cmp_eq_u32 s54, 0
    s_cbranch_scc1 L_first
    s_waitcnt vmcnt(0)
    s_add_u32 s53, s53, 1
    s_cmp_lt_u32 s53, 16
    s_cbranch_scc1 L_produce
    s_branch L_consume
    L_first:
    """)
    def warm():
        A(f"""s_mul_i32 s50, s48, {256*1152}
        s_add_u32 s32, s12, s50
        s_addc_u32 s33, s13, 0
        s_and_b32 s33, s33, 0xffff
        s_mov_b32 s34, {256*1152}
        s_mov_b32 s35, 0x20000
        s_mul_i32 s50, s49, 18432
        v_lshlrev_b32 v2, 4, v1""")
        for i in range(18):
            if i >= cfg.WARMD:
                A(f"s_waitcnt vmcnt({cfg.WARMD - 1})")
            A(f"buffer_load_dwordx4 {q(WP+4*i)}, v2, s[32:35], s50 offen offset:{1024*(i % 4)} {cfg.WARMF}")
            if i % 4 == 3:
                A("s_add_u32 s50, s50, 0x1000")
    if cfg.WARM == 2:
        warm()
    for rb in range(4):
        A(f"v_add_u32 v{20+4*rb}, v15, v{16+rb}")
        for c in range(1, 4):
            A(f"v_lshrrev_b32 v{20+4*rb+c}, {4*c}, v{20+4*rb}")
    A(f"""
    {"s_barrier" if cfg.QBAR else ("s_waitcnt vmcnt(0)" if cfg.WARM == 2 else f"s_sleep {cfg.QSLEEP0}")}
    {"s_branch L_qdone" if ('s' in cfg.ABL or 'e' in cfg.ABL) else ""}
    L_consume:
    v_lshlrev_b32 v{vA}, 4, v1
    s_lshl_b32 s50, s49, 12
    s_mov_b32 s58, {cfg.QPOLLS}
    L_qpoll:""")
    for rb in range(4):
        A(f"buffer_load_dwordx4 {q(XR+4*rb)}, v{vA}, s[44:47], s50 offen offset:{1024*rb} {cfg.QLD}")
    A("s_waitcnt vmcnt(0)")
    for i in range(16):
        A(f"v_xor_b32 v{WR+i}, v{20+i}, v{XR+i}")
    A(f"v_or3_b32 v{WR}, v{WR}, v{WR+1}, v{WR+2}")
    for i in range(3, 15, 2):
        A(f"v_or3_b32 v{WR}, v{WR}, v{WR+i}, v{WR+i+1}")
    A(f"""v_or_b32 v{WR}, v{WR}, v{WR+15}
    v_and_b32 v{WR}, 15, v{WR}
    v_cmp_ne_u32 vcc, 0, v{WR}
    s_nop 4
    s_cbranch_vccz L_qready
    s_cmp_lg_u32 s54, 0
    s_cbranch_scc1 L_qready
    {f's_sleep {cfg.QSLEEP}' if cfg.QSLEEP else ''}
    s_sub_u32 s58, s58, 1
    s_cbranch_scc0 L_qpoll
    s_mov_b32 s54, 1
    s_mov_b32 s53, 0
    s_lshl_b32 s52, s62, 16
    s_add_u32 s52, s52, {WS_F}
    s_add_u32 s44, s18, s52
    s_addc_u32 s45, s19, 0
    s_and_b32 s45, s45, 0xffff
    s_branch L_produce
    L_qready:""")
    ts(9)
    for i in range(16):
        A(f"v_bfi_b32 v{XR+i}, 15, 8, v{XR+i}")
    A(f"""v_lshlrev_b32 v{vB}, 3, v1
    v_add_u32 v{vB}, {L_Q}, v{vB}
    v_pk_add_f32 v[{XR}:{XR+1}], v[{XR}:{XR+1}], v[{XR+4}:{XR+5}]
    v_pk_add_f32 v[{XR+2}:{XR+3}], v[{XR+2}:{XR+3}], v[{XR+6}:{XR+7}]
    v_pk_add_f32 v[{XR+8}:{XR+9}], v[{XR+8}:{XR+9}], v[{XR+12}:{XR+13}]
    v_pk_add_f32 v[{XR+10}:{XR+11}], v[{XR+10}:{XR+11}], v[{XR+14}:{XR+15}]
    v_pk_add_f32 v[{XR}:{XR+1}], v[{XR}:{XR+1}], v[{XR+8}:{XR+9}]
    v_pk_add_f32 v[{XR+2}:{XR+3}], v[{XR+2}:{XR+3}], v[{XR+10}:{XR+11}]
    v_cvt_pk_bf16_f32 v{XR}, v{XR}, v{XR+1}
    v_cvt_pk_bf16_f32 v{XR+1}, v{XR+2}, v{XR+3}
    ds_write_b64 v{vB}, v[{XR}:{XR+1}]
    s_setprio 0""")
    if cfg.WARM == 3:
        warm()
    A("L_qdone:")
    A(f"""s_lshl_b32 s50, s49, 2
    s_add_u32 s50, s50, {WS_E}
    s_load_dword s60, s[18:19], s50
    s_mul_i32 s50, s62, {YSLOT}
    s_add_u32 s40, s18, s50
    s_addc_u32 s41, s19, 0
    s_and_b32 s41, s41, 0xffff
    s_mov_b32 s42, {YSLOT}
    s_mov_b32 s43, 0x20000
    s_mul_i32 s50, s61, 48
    v_add_u32 v{vST}, s50, v1
    v_and_b32 v{vA}, 2, v1
    v_cmp_eq_u32 vcc, 0, v{vA}
    v_mov_b32 v{vB}, 0x01000c0c
    v_mov_b32 v{vC}, 0x0c0c0100
    v_cndmask_b32 v{vSELA2}, v{vB}, v{vC}, vcc
    v_mov_b32 v{vB}, 0x03020c0c
    v_mov_b32 v{vC}, 0x0c0c0302
    v_cndmask_b32 v{vSELB2}, v{vB}, v{vC}, vcc""")
    if cfg.FC:
        A(f"""s_mov_b32 s50, {WS_E}
        s_load_dword s63, s[18:19], s50
        v_mov_b32 v{vA}, {L_FC}
        v_mov_b32 v{vB}, {MID}
        v_mov_b32 v{vC}, 99
        ds_write2_b32 v{vA}, v{vB}, v{vC} offset0:0 offset1:4
        ds_write2_b32 v{vA}, v{vC}, v{vC} offset0:5 offset1:6
        ds_write_b32 v{vA}, v{vC} offset:28""")
    A("s_waitcnt lgkmcnt(0)")
    ts(1)
    A("s_barrier")
    WS = lambda n: 64 + 4 * n
    NWS = 48
    YACC = 12
    OB0, OB1 = 4, 8
    vOP0, vOP1 = 56, 57
    vAO, vAW, vAY, vAR = 58, 59, 60, 61
    vS1, vS2, vS3 = 62, 63, 3
    A(f"""v_mov_b32 v{vS1}, v{vSELA2}
    v_mov_b32 v{vS2}, v{vSELB2}
    v_lshlrev_b32 v{vS3}, 4, v{vST}
    s_add_u32 s60, s60, {K_TAG}
    s_mul_i32 s50, s48, {256*1152}
    s_add_u32 s32, s12, s50
    s_addc_u32 s33, s13, 0
    s_and_b32 s33, s33, 0xffff
    s_mov_b32 s34, {256*1152}
    s_mov_b32 s35, 0x20000
    v_bfe_u32 v8, v1, {5 if cfg.SM else 4}, 1
    v_lshlrev_b32 v8, 7, v8
    v_bfe_u32 v9, v1, {4 if cfg.SM else 5}, 1
    v_lshlrev_b32 v9, {3 if cfg.SM else 0}, v9
    v_add_u32 v8, v8, v9
    v_bfe_u32 v9, v1, 3, 1
    v_lshl_add_u32 v8, v9, 4, v8
    s_lshl_b32 s50, s61, 5
    v_add_u32 v8, s50, v8
    v_mul_u32_u24 v{vOW}, 1152, v8
    v_and_b32 v9, 7, v1
    v_lshl_add_u32 v{vOW}, v9, 4, v{vOW}
    s_mul_i32 s52, s61, {24*1024}""")
    if cfg.RETOUCH:
        A(f"s_lshl_b32 s50, s48, 4\ns_add_u32 s50, s50, s49\ns_lshl_b32 s50, s50, 2\ns_add_u32 s50, s50, s61\ns_lshl_b32 s50, s50, 10\ns_add_u32 s50, s50, {WS_Q}\nv_lshlrev_b32 v52, 4, v1\nv_add_u32 v52, s50, v52")
    if cfg.WO_MIX:
        A("s_cmp_eq_u32 s61, 3\ns_cselect_b64 vcc, -1, 0")
    if 'z' in cfg.ABL:
        A(f"v_lshlrev_b32 v{vOW}, 4, v1")
    if 'r' in cfg.ABL:
        A(f"v_lshrrev_b32 v8, 3, v1\ns_lshl_b32 s50, s61, 6\nv_add_u32 v8, s50, v8\nv_mul_u32_u24 v{vOW}, 1152, v8\nv_lshl_add_u32 v{vOW}, v9, 4, v{vOW}")
    if 'l' in cfg.ABL:
        A(f"v_lshlrev_b32 v{vOW}, 4, v1\ns_mul_i32 s50, s61, 1024\nv_add_u32 v{vOW}, s50, v{vOW}")
    if cfg.PT:
        A("s_lshl_b32 s50, s62, 20\nv_mov_b32 v8, s50\ns_mul_i32 s50, s49, 1152\nv_mov_b32 v9, s50\ns_mov_b64 exec, 1")
        if cfg.PT & 1:
            A("global_load_dword v10, v8, s[8:9] nt")
        if cfg.PT & 2:
            A("global_load_dword v11, v9, s[14:15] nt")
        A("s_mov_b64 exec, -1\ns_waitcnt vmcnt(0)")
    for k in range(0 if 'w' in cfg.ABL else 72):
        rg, cb = divmod(k, 9)
        u, t = rg >> 2, rg & 3
        if k >= cfg.WO_DEPTH:
            A(f"s_waitcnt vmcnt({cfg.WO_DEPTH - 1})")
        if cfg.RETOUCH and k % cfg.RETOUCH == cfg.RETOUCH - 1:
            A(f"global_load_dwordx4 v[48:51], v52, s[18:19] sc1")
        if cfg.WO_MIX and k:
            A(f"s_cbranch_vccnz L_wo{k}\ns_waitcnt vmcnt(0)\nL_wo{k}:")
        if 'z' in cfg.ABL:
            A("s_mov_b32 s50, 0")
        elif 'r' in cfg.ABL:
            A(f"s_mov_b32 s50, {(k // 9) * 8 * 1152 + (k % 9) * 128}")
        elif 'l' in cfg.ABL:
            A(f"s_mov_b32 s50, {k * 4096}")
        elif cfg.SM:
            t, cb = divmod(k >> 1, 9)
            A(f"s_mov_b32 s50, {(2*t + (k & 1)) * 1152 + cb * 128}")
        else:
            A(f"s_mov_b32 s50, {(8*u + 2*t) * 1152 + cb * 128}")
        if k < NWS:
            A(f"buffer_load_dwordx4 {q(WS(k))}, v{vOW}, s[32:35], s50 offen{wf}")
        else:
            A(f"s_add_u32 m0, s52, {L_WO + (k - NWS) * 1024}\ns_nop 0\nbuffer_load_dwordx4 v{vOW}, s[32:35], s50 offen{wf} lds")
    A(f"""v_bfe_u32 v8, v1, 2, 2
    v_lshlrev_b32 v{vAO}, 6, v8
    v_lshrrev_b32 v8, 4, v1
    v_lshl_add_u32 v{vAO}, v8, 4, v{vAO}
    v_and_b32 v9, 1, v1
    v_lshl_add_u32 v{vAO}, v9, 3, v{vAO}
    s_lshl_b32 s50, s61, 8
    s_add_u32 s50, s50, {L_O}
    v_add_u32 v{vAO}, s50, v{vAO}
    v_lshlrev_b32 v{vAW}, 4, v1
    v_add_u32 v{vAW}, s52, v{vAW}
    v_and_b32 v9, 15, v1
    v_lshlrev_b32 v{vAY}, 5, v9
    v_lshl_add_u32 v{vAY}, v8, 3, v{vAY}
    s_mul_i32 s50, s61, 2560
    s_add_u32 s50, s50, {L_Y}
    v_add_u32 v{vAY}, s50, v{vAY}
    v_lshrrev_b32 v{vAR}, 1, v{vS3}
    v_add_u32 v{vAR}, {L_Y}, v{vAR}
    v_lshrrev_b32 v0, 2, v{vS3}
    v_add_u32 v0, {L_Y + 1536}, v0""")
    for r in range(OB0, OB0 + 8 + (36 if cfg.SM else 0)):
        A(f"v_mov_b32 v{r}, 0")
    if cfg.SM:
        A(f"v_bfe_u32 v{vS1}, v1, 1, 2\nv_xor_b32 v{vS2}, 1, v{vS1}\nv_lshl_add_u32 v{vS1}, v{vS2}, 2, v{vS1}\nv_mul_u32_u24 v{vS1}, 0x1111, v{vS1}")
    A("s_waitcnt vmcnt(0) lgkmcnt(0)")
    ts(2)
    if cfg.WB:
        A(f"s_lshr_b32 s50, s2, 3\ns_or_b32 s50, s50, s61\ns_cbranch_scc1 L_nowb\nbuffer_wbl2 sc1\ns_waitcnt vmcnt(0)\nL_nowb:")
    if cfg.FC:
        gx = cfg.GX if cfg.FC == 2 else 0
        A(f"""s_cmp_lg_u32 s61, 3
        s_cbranch_scc1 L_noctl
        s_add_u32 s63, s63, {K_TAG}
        s_and_b32 s24, s2, 7
        s_lshr_b32 s25, s2, 3
        s_mul_i32 s26, s24, 4352
        s_add_u32 s26, s26, {WS_P}
        v_min_u32 v48, 32, v1
        v_lshlrev_b32 v48, 2, v48
        v_add_u32 v48, s26, v48
        s_lshl_b32 s50, s25, 2
        s_add_u32 s50, s50, s26
        v_mov_b32 v49, s50
        v_mov_b32 v50, {L_FC}
        s_mov_b32 s27, {cfg.CK0}
        s_mov_b32 s28, {cfg.G0}""")
        if cfg.PAR:
            A(f"s_getreg_b32 s29, hwreg(HW_REG_XCC_ID, 0, 1)\ns_cmp_eq_u32 s29, 0\ns_cselect_b32 s29, {4*cfg.PAR}, 0")
        if gx:
            A(f"""s_add_u32 s50, s26, 128
            v_mov_b32 v54, s50
            s_mul_i32 s50, s24, 4224
            s_add_u32 s50, s50, {WS_G}
            v_mov_b32 v55, s50
            v_and_b32 v56, 7, v1
            v_mul_u32_u24 v56, 4224, v56
            v_add_u32 v56, {WS_G}, v56""")
        A(f"""L_ctl:
        {f's_sleep {cfg.CSLEEP}' if cfg.CSLEEP else ''}
        """)
        if cfg.CMAX:
            A(f"""ds_read_b128 v[4:7], v50 offset:16
            s_waitcnt lgkmcnt(0)
            v_max3_u32 v51, v4, v5, v6
            v_max_u32 v51, v51, v7
            s_nop 0""")
        else:
            A("ds_read_b32 v51, v50 offset:16\ns_waitcnt lgkmcnt(0)")
        A(f"""v_readfirstlane_b32 s50, v51
        s_cmp_gt_u32 s50, s27
        s_cbranch_scc1 L_ctl
        s_sub_u32 s30, s63, s27
        v_mov_b32 v52, s30
        s_mov_b64 exec, 1
        global_store_dword v49, v52, s[18:19]
        s_mov_b64 exec, -1
        global_load_dword v53, v48, s[18:19] sc1
        s_waitcnt vmcnt(0)""")
        if gx:
            A("v_readlane_b32 s36, v53, 32")
        A(f"""v_subrev_u32 v53, s30, v53
        v_cmp_gt_u32 vcc, 32, v53
        s_nop 3
        s_bcnt1_i32_b32 s31, vcc_lo
        s_lshl_b32 s37, s31, 1""")
        if gx:
            A(f"""s_sub_u32 s36, s36, s63
            s_cmp_lt_u32 s36, 17
            s_cselect_b32 s36, s36, 9
            s_mul_i32 s36, s36, {gx}
            s_add_u32 s37, s37, s36""")
        if cfg.PAR:
            A("s_add_u32 s37, s37, s29")
        off = 9 * gx + 2 * cfg.PAR
        A("s_mov_b32 s38, 0")
        for i in range(1, len(LEV)):
            A(f"s_cmp_ge_u32 s37, {2*LEV[i][0] + off}\ns_cselect_b32 s38, {i}, s38")
        A(f"""
        v_mov_b32 v51, s38
        ds_write_b32 v50, v51""")
        if gx:
            A(f"""s_add_u32 s28, s28, 1
            s_and_b32 s50, s28, {cfg.GMASK}
            s_cbranch_scc1 L_ctlnext
            s_cmp_lt_u32 s27, {cfg.GEND}
            s_cbranch_scc1 L_ctlnext
            s_sub_u32 s50, s31, {cfg.GR}
            s_cmp_ge_u32 s50, {cfg.GW}
            s_cbranch_scc1 L_ctlnext
            s_mov_b64 exec, 1
            global_store_dword v55, v52, s[18:19] sc1
            s_mov_b64 exec, -1
            """)
            if cfg.GS:
                gr = [32, 33, 34, 35, 44, 45, 46, 47]
                for i in range(8):
                    A(f"s_load_dword s{gr[i]}, s[18:19], {WS_G + 4224*i} glc")
                A("s_lshl_b32 s50, 1, s24\ns_waitcnt lgkmcnt(0)")
                for i in range(8):
                    A(f"s_sub_u32 s{gr[i]}, s{gr[i]}, s30\ns_cmp_lt_u32 s{gr[i]}, 32\ns_cselect_b32 s{gr[i]}, {1 << i}, 0\ns_or_b32 s50, s50, s{gr[i]}")
                A("s_bcnt1_i32_b32 s50, s50")
            else:
                A(f"""            global_load_dword v53, v56, s[18:19] sc1
            s_waitcnt vmcnt(0)
            v_subrev_u32 v53, s30, v53
            v_cmp_gt_u32 vcc, 32, v53
            s_lshl_b32 s50, 1, s24
            s_nop 3
            s_or_b32 s50, s50, vcc_lo
            s_and_b32 s50, s50, 0xff
            s_bcnt1_i32_b32 s50, s50
""")
            A(f"""
            s_lshl_b32 s50, s50, 1
            s_add_u32 s50, s50, s63
            v_mov_b32 v52, s50
            s_mov_b64 exec, 1
            global_store_dword v54, v52, s[18:19]
            s_mov_b64 exec, -1
            L_ctlnext:""")
        A(f"""s_sub_u32 s27, s27, {cfg.CKIT}
        s_cmp_gt_i32 s27, {cfg.VEND}
        s_cbranch_scc1 L_ctl
        s_waitcnt vmcnt(0) lgkmcnt(0)
        v_mov_b32 v4, 0
        v_mov_b32 v5, 0
        v_mov_b32 v6, 0
        v_mov_b32 v7, 0
        L_noctl:""")
    A("s_setprio 3\ns_barrier\ns_barrier")
    ts(3)
    for w in range(4):
        A(f"ds_read_b64 v[{48+2*w}:{49+2*w}], v{vAO} offset:{1024*w}")
    A(f"""s_waitcnt lgkmcnt(2)
    v_pk_add_f32 v[48:49], v[48:49], v[50:51]
    s_waitcnt lgkmcnt(0)
    v_pk_add_f32 v[52:53], v[52:53], v[54:55]
    v_pk_add_f32 v[48:49], v[48:49], v[52:53]
    """)
    if cfg.SM:
        A(f"v_cvt_pk_bf16_f32 v{vOP0}, v48, 0\nv_cvt_pk_bf16_f32 v{vOP1}, v49, 0\ns_nop 0")
        def sbuild(t):
            ob = OB1 if t & 1 else OB0
            r = []
            for odd in range(2):
                for a_ in range(4):
                    bank = 2 * (a_ & 1) + odd
                    r.append(f"v_mov_b32_dpp v{ob+a_}, v{vOP1 if a_ >> 1 else vOP0} {ror(bank - t)} row_mask:0xf bank_mask:{hex(1 << bank)}")
            return r
        if cfg.TS2 == 1:
            ts(8)
        for l in sbuild(0):
            A(l)
        A("s_nop 1")
        nov = (72 - NWS) // 2
        for m in range(36):
            t, cb = divmod(m, 9)
            ob = OB1 if t & 1 else OB0
            slot = 2 * m if 2 * m < NWS else 2 * m - NWS
            if 2 * m >= NWS:
                issued = min(72 - NWS, m - 1)
                A(f"s_waitcnt lgkmcnt({min(14, issued - (2 * m - NWS + 2))})")
            A(f"v_smfmac_f32_16x16x64_bf16 {q(YACC+4*cb)}, {q(ob)}, v[{WS(slot)}:{WS(slot)+7}], v{vS1}")
            if 1 <= m <= 72 - NWS:
                A(f"ds_read_b128 {q(WS(m-1))}, v{vAW} offset:{L_WO + (m-1)*1024}")
            if t < 3 and 1 <= cb <= 6:
                bl = sbuild(t + 1)
                for l in {1: bl[0:2], 2: bl[2:4], 3: bl[4:5], 4: bl[5:6], 5: bl[6:7], 6: bl[7:8]}[cb]:
                    A(l)
    else:
        A(f"""v_cvt_pk_bf16_f32 v48, v48, v49
        v_perm_b32 v{vOP0}, v48, v48, v{vS1}
        v_perm_b32 v{vOP1}, v48, v48, v{vS2}
        s_nop 0""")
        build(OB0, vOP0, 0)
        A("s_nop 1")
        for k in range(72):
            rg, cb = divmod(k, 9)
            ob = OB1 if rg & 1 else OB0
            slot = k if k < NWS else k - NWS
            if k == NWS:
                A("s_waitcnt lgkmcnt(0)")
            A(f"v_mfma_f32_16x16x32_bf16 {q(YACC+4*cb)}, {q(ob)}, {q(WS(slot))}, {'0' if rg == 0 else q(YACC+4*cb)}")
            if 1 <= k <= 72 - NWS:
                A(f"ds_read_b128 {q(WS(k-1))}, v{vAW} offset:{L_WO + (k-1)*1024}")
            if 1 <= cb <= 4 and rg < 7:
                nrg = rg + 1
                r = cb - 1
                A(f"v_mov_b32_dpp v{(OB1 if nrg & 1 else OB0)+r}, v{vOP1 if nrg >> 2 else vOP0} {ror(r - (nrg & 3))} row_mask:0xf bank_mask:{hex(1 << r)}")
    if cfg.TS2 == 1:
        ts(10)
    Y = lambda p: WS(30) + 2 * p
    for p in range(4):
        d = YACC + 4 * (2 * p)
        A(f"v_add_f32_dpp v{Y(p)}, v{d+1}, v{d} row_ror:8 row_mask:0xf bank_mask:0x3")
        A(f"v_add_f32_dpp v{Y(p)+1}, v{d+3}, v{d+2} row_ror:8 row_mask:0xf bank_mask:0x3")
    for p in range(4):
        d = YACC + 4 * (2 * p + 1)
        A(f"v_add_f32_dpp v{Y(p)}, v{d}, v{d+1} row_ror:8 row_mask:0xf bank_mask:0xc")
        A(f"v_add_f32_dpp v{Y(p)+1}, v{d+2}, v{d+3} row_ror:8 row_mask:0xf bank_mask:0xc")
        A(f"ds_write_b64 v{vAY}, v[{Y(p)}:{Y(p)+1}] offset:{512*p}")
    d = YACC + 32
    A(f"v_add_f32_dpp v{Y(4)}, v{d+1}, v{d} row_ror:8 row_mask:0xf bank_mask:0xf")
    A(f"v_add_f32_dpp v{Y(4)+1}, v{d+3}, v{d+2} row_ror:8 row_mask:0xf bank_mask:0xf")
    A(f"ds_write_b64 v{vAY}, v[{Y(4)}:{Y(4)+1}] offset:2048")
    A("s_mov_b32 exec_hi, 0xffff\nv_mov_b32 v15, s60\ns_waitcnt lgkmcnt(0)")
    ts(4)
    A("s_barrier")
    for w in range(4):
        A(f"ds_read_b64 v[{12+4*w}:{13+4*w}], v{vAR} offset:{2560*w}")
        A(f"ds_read_b32 v{14+4*w}, v0 offset:{2560*w}")
    A(f"""s_waitcnt lgkmcnt(4)
    v_pk_add_f32 v[12:13], v[12:13], v[16:17]
    v_add_f32 v14, v14, v18
    s_waitcnt lgkmcnt(0)
    v_pk_add_f32 v[20:21], v[20:21], v[24:25]
    v_add_f32 v22, v22, v26
    v_pk_add_f32 v[12:13], v[12:13], v[20:21]
    v_add_f32 v14, v14, v22
    """)
    if 'h' in cfg.ABL or 'i' in cfg.ABL:
        A(f"s_cmp_ge_u32 s61, {2 if 'h' in cfg.ABL else 1}\ns_cbranch_scc1 L_end")
    if 'y' not in cfg.ABL:
        A(f"buffer_store_dwordx4 v[12:15], v{vS3}, s[40:43], 0 offen {cfg.YST}")
    ts(5)
    ts_store()
    if cfg.SPIN:
        A(f"L_spin:\ns_memrealtime s[92:93]\ns_waitcnt lgkmcnt(0)\ns_sub_u32 s92, s92, s90\ns_cmp_lt_u32 s92, {cfg.SPIN}\ns_cbranch_scc1 L_spin")
    A("L_end:\ns_endpgm")
    return "\n".join(o)

HEADER = open("standalone__gqa_block_cached__sampling.s.ref").read().split("; Override launch")[0]

def full(cfg):
    body = gen(cfg)
    return f"""{HEADER}; @launch grid=(256,1,1) block=(512,1,1) lds={LDS_BYTES}
.amdgcn_target "amdgcn-amd-amdhsa--gfx950"
.text
.globl {cfg.kname}
.p2align 8
.type {cfg.kname},@function
{body}
.section .rodata,"a"
.p2align 6
.amdhsa_kernel {cfg.kname}
  .amdhsa_next_free_vgpr 256
  .amdhsa_next_free_sgpr 96
  .amdhsa_accum_offset 256
  .amdhsa_group_segment_fixed_size 0
  .amdhsa_kernarg_size 64
  .amdhsa_user_sgpr_count 2
  .amdhsa_user_sgpr_kernarg_segment_ptr 1
  .amdhsa_system_sgpr_workgroup_id_x 1
.end_amdhsa_kernel
"""

if __name__ == "__main__":
    cfg = Cfg()
    out = sys.argv[1]
    for kv in sys.argv[2:]:
        k, v = kv.split("=")
        cur = getattr(cfg, k)
        setattr(cfg, k, type(cur)(int(v)) if isinstance(cur, (int, bool)) else v.replace('+', ' '))
    open(out, "w").write(full(cfg))
```

```python
import sys

NAME = "standalone__gqa_block_cached__sampling"

class Cfg:
    P = 56
    LAG = 7
    NP = 5
    NK = 5
    LEV = "0:4,7:5,26:6"
    NE = 7
    VEND = 2
    CK0 = 30
    CKIT = 2
    GX = 2
    GR = 7
    WB_STEP = 6
    WO_DEPTH = 2
    QPOLLS = 200
    WPOS = 3
    KDEL = 1
    RAMP = ''
    AUXF = 1
    MI = 1
    TS = 0
    AMP = 0

L_WO = 0
L_SC = 98304
YP = 2560
L_Y = L_SC + 32768
L_O = L_Y + 4 * YP
L_Q = L_O + 4096
L_ML = L_Q + 512
L_FC = L_ML + 64
LDS_BYTES = L_FC + 32
YSLOT = 3072
WS_P = 0xD0000
WS_G = 0xE0000
WS_E = 0xF0000
WS_Q = 0x100000
WS_F = 0x1000000
K_TAG = 0x9e3779b9
C_SCALE = 0x3DB504F3
C_LOG2E = 0x3FB8AA3B

DOC = """;
;       workgroups.
"""

def ror(k):
    k = (4 * k) % 16
    return "quad_perm:[0,1,2,3]" if k == 0 else f"row_ror:{k}"

def q(b):
    return f"v[{b}:{b+3}]"

def gen(cfg):
    o = []
    def A(s):
        for line in s.split("\n"):
            line = line.strip()
            if line:
                o.append(line if line.endswith(":") else "    " + line)
    def C(s):
        o.append("    ; ---- " + s)
    P, LAG = cfg.P, cfg.LAG
    LEV = [(int(x.split(":")[0]), int(x.split(":")[1])) for x in cfg.LEV.split(",")]
    LEV.append((None, LEV[-1][1] + 1))
    MID = max(i for i, (t_, _) in enumerate(LEV[:-1]) if t_ <= 16)
    NV = LEV[MID][1]
    assert max(cfg.NK, cfg.NE, LEV[-1][1]) <= LAG <= 7 and cfg.NP <= 8
    in_aux = [False]
    def ts(idx):
        if cfg.TS == 1 or (cfg.TS == 2 and idx == 7 and not in_aux[0]):
            A(f"s_memrealtime s[{64+2*idx}:{65+2*idx}]\ns_waitcnt lgkmcnt(0)")
    def ts_store():
        if cfg.TS == 1 or (cfg.TS == 2 and not in_aux[0]):
            A("""s_mov_b64 exec, 1
            s_lshl_b32 s60, s2, 3
            s_add_u32 s60, s60, s3
            s_lshl_b32 s60, s60, 6
            s_add_u32 s60, s60, 0x400000
            v_mov_b32 v1, s60""")
            for i in ((0, 7) if cfg.TS == 2 else range(12)):
                A(f"v_mov_b32 v2, s{64+2*i}\nglobal_store_dword v1, v2, s[18:19] offset:{4*i}\ns_nop 1")
            A("s_getreg_b32 s60, hwreg(HW_REG_XCC_ID)\nv_mov_b32 v2, s60\nglobal_store_dword v1, v2, s[18:19] offset:48")
    def srd(d, lo, off, size):
        if off:
            A(f"s_add_u32 s{d}, s{lo}, {off}\ns_addc_u32 s{d+1}, s{lo+1}, 0\ns_and_b32 s{d+1}, s{d+1}, 0xffff")
        else:
            A(f"s_mov_b32 s{d}, s{lo}\ns_and_b32 s{d+1}, s{lo+1}, 0xffff")
        if size is not None:
            A(f"s_mov_b32 s{d+2}, {size}\ns_mov_b32 s{d+3}, 0x20000")

    A(f"{NAME}_kernel:")
    A("s_cmp_ge_u32 s2, 256\ns_cbranch_scc1 L_end")
    A("s_load_dwordx16 s[4:19], s[0:1], 0")
    if cfg.TS:
        for i in range(12):
            A(f"s_mov_b64 s[{64+2*i}:{65+2*i}], 0")
        A("s_memrealtime s[64:65]")
    if cfg.AMP:
        A("s_memrealtime s[92:93]")
    A("""v_lshrrev_b32 v2, 6, v0
    v_and_b32 v1, 63, v0
    v_readfirstlane_b32 s3, v2
    s_and_b32 s48, s2, 15
    s_lshr_b32 s49, s2, 4
    s_cmp_ge_u32 s3, 4""")
    A("s_cbranch_scc0 L_stream" if cfg.AUXF else "s_cbranch_scc1 L_aux")
    i_stream = len(o)
    A("L_stream:")

    SLOT = lambda n: 32 + 4 * n
    vOK, vOV, vSCA, vM, vL, vSA, vSB, vT, vTA, vTB, vSELA, vSELB, vPA, vPB = range(2, 16)
    vQ, vD0, vD1 = 16, 20, 24
    vNM, vTR, vX0, vX1 = 28, 29, 30, 31
    C("stream waves: s3 = wave, s48 = hkv, s49 = b.  K tile: lane (i, g) takes key i>>2, 16-B chunk 4g + (i&3)")
    A(f"""s_setprio 3
    v_and_b32 v{vOK}, 3, v1
    v_lshlrev_b32 v{vOK}, 4, v{vOK}
    v_lshrrev_b32 v{vT}, 4, v1
    v_lshl_add_u32 v{vOK}, v{vT}, 6, v{vOK}
    v_bfe_u32 v{vT}, v1, 2, 2
    v_lshl_add_u32 v{vOK}, v{vT}, 8, v{vOK}
    s_lshl_b32 s50, s3, 12
    v_add_u32 v{vOK}, s50, v{vOK}
    s_lshl_b32 s51, s2, 20
    s_mov_b32 s22, 0x100000
    s_mov_b32 s23, 0x20000
    s_mov_b32 s53, 0
    s_waitcnt lgkmcnt(0)""")
    srd(20, 6, "s51", None)

    def issue(n, slot, depth):
        if depth:
            A(f"s_waitcnt vmcnt({depth-1})")
        isv = n >= 256
        so = "s54" if isv else "s53"
        A(f"buffer_load_dwordx4 {q(SLOT(slot))}, v{vOV if isv else vOK}, {'s[24:27]' if isv else 's[20:23]'}, {so} offen offset:{(n & 3) * 1024} nt")
        if (n & 3) == 3:
            A(f"s_add_u32 {so}, {so}, 0x4000")

    C(f"the first {P} K tiles wait in registers until q is there (the weight loads go first)")
    for n in range(P):
        if n < len(cfg.RAMP):
            issue(n, n, int(cfg.RAMP[n]))
        else:
            issue(n, n, cfg.NP if n >= cfg.NP else (1 if n == cfg.KDEL and n else 0))
        if n == cfg.NP:
            ts(8)
        if n == cfg.NP + 20:
            ts(9)
        if n == cfg.NP - 1:
            srd(24, 8, "s51", "0x100000")
            A(f"""s_mov_b32 s54, 0
            s_lshl_b32 s55, s49, 2
            s_add_u32 s55, s55, {WS_E}
            s_load_dword s59, s[18:19], s55
            v_lshlrev_b32 v{vOV}, 4, v1
            v_add_u32 v{vOV}, s50, v{vOV}
            s_lshl_b32 s52, s3, 13
            s_add_u32 s52, s52, {L_SC}
            v_lshlrev_b32 v{vSCA}, 2, v1
            v_add_u32 v{vSCA}, s52, v{vSCA}
            v_mov_b32 v{vM}, 0xff800000
            s_mov_b32 s56, {hex(C_SCALE)}
            s_mov_b32 s57, {hex(C_LOG2E)}
            v_and_b32 v{vT}, 2, v1
            v_cmp_eq_u32 vcc, 0, v{vT}
            v_mov_b32 v{vTA}, 0x01000c0c
            v_mov_b32 v{vTB}, 0x0c0c0100
            v_cndmask_b32 v{vSELA}, v{vTA}, v{vTB}, vcc
            v_mov_b32 v{vTA}, 0x03020c0c
            v_mov_b32 v{vTB}, 0x0c0c0302
            v_cndmask_b32 v{vSELB}, v{vTA}, v{vTB}, vcc
            v_and_b32 v{vX0}, 1, v1
            v_lshlrev_b32 v{vX0}, 8, v{vX0}
            v_lshrrev_b32 v{vT}, 2, v1
            v_lshl_add_u32 v{vX0}, v{vT}, 4, v{vX0}
            v_add_u32 v{vX0}, {L_Q}, v{vX0}""")
    ts(1)
    C("barrier Q; q operand: column j = (chunk class j>>2, copy, head j&1)")
    A(f"s_barrier\nds_read_b128 {q(vQ)}, v{vX0}\ns_waitcnt lgkmcnt(0)")
    ts(2)

    def chain_ops(c, D, tmp):
        t = c & 3
        S = vSA if (c & 4) == 0 else vSB
        rs = [r for r in range(4) if r != t]
        return [
            f"v_add_f32_dpp v{tmp}, v{D+rs[0]}, v{D+t} {ror(t - rs[0])} row_mask:0xf bank_mask:0xf",
            f"v_add_f32_dpp v{tmp}, v{D+rs[1]}, v{tmp} {ror(t - rs[1])} row_mask:0xf bank_mask:0xf",
            f"v_add_f32_dpp v{S}, v{D+rs[2]}, v{tmp} {ror(t - rs[2])} row_mask:0xf bank_mask:{hex(1 << t)}",
        ]

    def finalize():
        A(f"""v_cvt_pk_bf16_f32 v{vT}, v{vSA}, v{vSB}
        v_lshlrev_b32 v{vTA}, 16, v{vT}
        v_and_b32 v{vTB}, 0xffff0000, v{vT}
        v_mul_f32 v{vTA}, s56, v{vTA}
        v_mul_f32 v{vTB}, s56, v{vTB}
        v_max3_f32 v{vM}, v{vM}, v{vTA}, v{vTB}
        v_cvt_pk_bf16_f32 v{vT}, v{vTA}, v{vTB}
        ds_write_b32 v{vSCA}, v{vT}
        v_add_u32 v{vSCA}, 0x100, v{vSCA}""")

    C("catch up: consume the buffered tiles (product n lands in the registers of tile n-1), keep loading")
    Dof = lambda n: vD0 if n == 0 else (vD1 if n == P - 1 else SLOT(n - 1))
    tmps = [vPA, vPB, vX1]
    ring_at = {(P - 8) * (k + 1) // LAG: k for k in range(LAG)}
    for s in range(P + 3):
        if s in ring_at:
            k = ring_at[s]
            assert s >= k + 6
            issue(P + k, k, cfg.NK)
        if P - 8 <= s < P:
            A(f"s_waitcnt vmcnt({P - 1 - s + LAG})")
        A(f"v_mfma_f32_16x16x32_bf16 {q(Dof(s))}, {q(SLOT(s))}, {q(vQ)}, 0" if s < P else "s_nop 0")
        for (lag, opi) in ((4, 2), (3, 1), (2, 0)):
            c = s - lag
            A(chain_ops(c, Dof(c), tmps[c % 3])[opi] if 0 <= c < P - 1 else "s_nop 0")
        c = s - 4
        if c >= 0 and (c & 7) == 7 and c < P - 1:
            finalize()
    ts(3)

    def kstep(c, nissue):
        issue(nissue, nissue % 8, cfg.NK if nissue < 256 else NV)
        A(f"v_mfma_f32_16x16x32_bf16 {q(vD1 if c & 1 else vD0)}, {q(SLOT(c % 8))}, {q(vQ)}, 0")
        pc = (c - 1) % 8
        A("\ns_nop 1\n".join(chain_ops(pc, vD1 if pc & 1 else vD0, vX1)))
        if pc == 7:
            finalize()

    C("K loop")
    A(f"s_mov_b32 s58, {(256 - P) // 8 - 1}\nL_kloop:")
    for c in range(8):
        kstep(c, P + c + LAG)
    A("s_sub_u32 s58, s58, 1\ns_cmp_lg_u32 s58, 0\ns_cbranch_scc1 L_kloop")
    for c in range(248, 256):
        kstep(c, c + LAG)
    A("s_nop 1")
    A("\ns_nop 1\n".join(chain_ops(7, vD1, vX1)))
    finalize()
    ts(4)

    def xreduce(v, op, tmp):
        A(f"""s_nop 1
        {op}_dpp v{v}, v{v}, v{v} row_ror:4 row_mask:0xf bank_mask:0xf
        s_nop 1
        {op}_dpp v{v}, v{v}, v{v} row_ror:8 row_mask:0xf bank_mask:0xf
        v_mov_b32 v{tmp}, v{v}
        s_nop 1
        v_permlane16_swap_b32 v{v}, v{tmp}
        {op} v{v}, v{v}, v{tmp}
        v_mov_b32 v{tmp}, v{v}
        s_nop 1
        v_permlane32_swap_b32 v{v}, v{tmp}
        {op} v{v}, v{v}, v{tmp}""")
    def expblock():
        A(f"""s_waitcnt lgkmcnt(0)
        v_lshlrev_b32 v{vTA}, 16, v{vTR}
        v_and_b32 v{vTB}, 0xffff0000, v{vTR}
        v_fma_f32 v{vTA}, v{vTA}, s57, v{vNM}
        v_fma_f32 v{vTB}, v{vTB}, s57, v{vNM}
        v_exp_f32 v{vTA}, v{vTA}
        v_exp_f32 v{vTB}, v{vTB}
        v_add_f32 v{vL}, v{vL}, v{vTA}
        v_add_f32 v{vL}, v{vL}, v{vTB}
        v_cvt_pk_bf16_f32 v{vT}, v{vTA}, v{vTB}""")
    C("maximum of this wave's scores per head, first probabilities")
    vO, vFA, vFM = vQ, vSA, vSB
    A(f"v_subrev_u32 v{vSCA}, 0x2000, v{vSCA}\nds_read_b32 v{vTR}, v{vSCA}")
    xreduce(vM, "v_max_f32", vT)
    A(f"""v_cvt_pk_bf16_f32 v{vM}, v{vM}, v{vM}
    v_lshlrev_b32 v{vM}, 16, v{vM}
    v_mul_f32 v{vM}, s57, v{vM}
    v_sub_f32 v{vNM}, 0, v{vM}
    v_mov_b32 v{vL}, 0""")
    for r in range(16, 28):
        A(f"v_mov_b32 v{r}, 0")
    expblock()
    A(f"""v_perm_b32 v{vPA}, v{vT}, v{vT}, v{vSELA}
    v_perm_b32 v{vPB}, v{vT}, v{vT}, v{vSELB}
    s_mov_b32 s58, 31
    v_mov_b32 v{vX0}, {L_FC}
    s_lshl_b32 s55, s3, 2
    v_add_u32 v{vFA}, s55, v{vX0}""")

    def vstep(c, missue, depth, waitn=None):
        pb = vD1 if c & 1 else vD0
        src = vPA if (c & 4) == 0 else vPB
        for r in range(4):
            A(f"v_mov_b32_dpp v{pb+r}, v{src} {ror(r - (c & 3))} row_mask:0xf bank_mask:{hex(1 << r)}")
        if missue is not None:
            issue(256 + missue, missue % 8, depth)
        else:
            A(f"s_waitcnt vmcnt({waitn})\ns_nop 0")
        A(f"v_mfma_f32_16x16x32_bf16 {q(vO)}, {q(SLOT(c % 8))}, {q(pb)}, {q(vO)}")
    vSIB = SLOT(9)
    def vbody(depth, fc):
        for c in range(8):
            vstep(c, c + LAG, depth)
            if c == 0:
                A(f"v_add_u32 v{vSCA}, 0x100, v{vSCA}\nds_read_b32 v{vTR}, v{vSCA}")
            if c == 2:
                expblock()
            if c == 4:
                A(f"v_perm_b32 v{vPA}, v{vT}, v{vT}, v{vSELA}")
            if c == 6 and fc:
                A(f"ds_read_b32 v{vFM}, v{vX0}")
            if c == cfg.WB_STEP and fc:
                A(f"ds_read_b128 {q(vSIB)}, v{vX0} offset:16")
            if c == 7:
                A(f"v_perm_b32 v{vPB}, v{vT}, v{vT}, v{vSELB}")
    order = [MID] + [i for i in range(len(LEV)) if i != MID]
    for n_, i in enumerate(order):
        C(f"V loop body with {LEV[i][1]} loads in flight")
        A(f"L_v{i}:")
        vbody(LEV[i][1], True)
        if n_ != len(order) - 1:
            A("s_branch L_vbot")
    C("publish progress; level from wave 7, one deeper for a wave behind its siblings")
    A(f"""L_vbot:
    s_sub_u32 s58, s58, 1
    v_mov_b32 v{vX1}, s58
    s_waitcnt lgkmcnt(0)
    v_readfirstlane_b32 s55, v{vFM}
    ds_write_b32 v{vFA}, v{vX1} offset:16
    v_min3_u32 v{vSIB}, v{vSIB}, v{vSIB+1}, v{vSIB+2}
    v_min_u32 v{vSIB}, v{vSIB}, v{vSIB+3}
    s_cmp_eq_u32 s58, {cfg.VEND}
    v_readfirstlane_b32 s50, v{vSIB}
    s_cbranch_scc1 L_vlast
    s_cmp_le_u32 s50, s58
    s_addc_u32 s55, s55, 0""")
    for i in order[:-1]:
        A(f"s_cmp_eq_u32 s55, {i}\ns_cbranch_scc1 L_v{i}")
    A(f"s_branch L_v{order[-1]}")
    C("last iterations")
    A("L_vlast:")
    vbody(cfg.NE, False)
    A("s_sub_u32 s58, s58, 1\ns_cmp_lg_u32 s58, 0\ns_cbranch_scc1 L_vlast")
    c = 248
    while c + LAG < 256:
        vstep(c, c + LAG, cfg.NE)
        c += 1
    ts(5)
    C("all loads are issued: exchange (max, sum) between the waves (barrier A), scale = exp2(m_w - m) / l")
    xreduce(vL, "v_add_f32", vT)
    m0 = SLOT(9)
    A(f"""v_and_b32 v{vX0}, 1, v1
    v_lshlrev_b32 v{vX0}, 5, v{vX0}
    v_add_u32 v{vX0}, {L_ML}, v{vX0}
    s_lshl_b32 s55, s3, 3
    v_add_u32 v{vX1}, s55, v{vX0}
    v_mov_b32 v{vTA}, v{vM}
    v_mov_b32 v{vTB}, v{vL}
    ds_write_b64 v{vX1}, v[{vTA}:{vTB}]
    s_waitcnt lgkmcnt(0)
    s_barrier
    ds_read_b128 {q(m0)}, v{vX0}
    ds_read_b128 {q(m0+4)}, v{vX0} offset:16
    s_lshl_b32 s55, s3, 10
    s_add_u32 s55, s55, {L_O}
    v_lshlrev_b32 v{vX1}, 4, v1
    v_add_u32 v{vX1}, s55, v{vX1}
    s_waitcnt lgkmcnt(0)
    v_max3_f32 v{vT}, v{m0}, v{m0+2}, v{m0+4}
    v_max_f32 v{vT}, v{vT}, v{m0+6}
    v_sub_f32 v{m0}, v{m0}, v{vT}
    v_sub_f32 v{m0+2}, v{m0+2}, v{vT}
    v_sub_f32 v{m0+4}, v{m0+4}, v{vT}
    v_sub_f32 v{m0+6}, v{m0+6}, v{vT}
    v_sub_f32 v{vTA}, v{vM}, v{vT}
    v_exp_f32 v{m0}, v{m0}
    v_exp_f32 v{m0+2}, v{m0+2}
    v_exp_f32 v{m0+4}, v{m0+4}
    v_exp_f32 v{m0+6}, v{m0+6}
    v_exp_f32 v{vTA}, v{vTA}
    v_mul_f32 v{vTB}, v{m0}, v{m0+1}
    v_fmac_f32 v{vTB}, v{m0+2}, v{m0+3}
    v_fmac_f32 v{vTB}, v{m0+4}, v{m0+5}
    v_fmac_f32 v{vTB}, v{m0+6}, v{m0+7}
    v_rcp_f32 v{vTB}, v{vTB}
    s_nop 0
    v_mul_f32 v{vTA}, v{vTA}, v{vTB}
    v_mov_b32 v{vTB}, v{vTA}""")
    while c < 256:
        vstep(c, None, None, 255 - c)
        c += 1
    A(f"""s_nop 7
    v_pk_mul_f32 v[{vO}:{vO+1}], v[{vO}:{vO+1}], v[{vTA}:{vTB}]
    v_pk_mul_f32 v[{vO+2}:{vO+3}], v[{vO+2}:{vO+3}], v[{vTA}:{vTB}]
    ds_write_b128 v{vX1}, {q(vO)}
    s_waitcnt lgkmcnt(0)""")
    ts(6)
    C("barrier B; waves 0-2 of the workgroups with hkv - b = 0, 4, 8, 12 (mod 16) sum a quarter of the batch's row")
    A(f"""s_barrier
    s_setprio 0
    s_sub_u32 s51, s48, s49
    s_and_b32 s50, s51, 3
    s_cbranch_scc1 L_sdone
    s_cmp_eq_u32 s3, 3
    s_cbranch_scc1 L_sdone
    s_bfe_u32 s51, s51, 0x20002
    s_mul_i32 s52, s51, 3
    s_add_u32 s52, s52, s3
    s_lshl_b32 s53, s52, 4
    v_and_b32 v0, 15, v1
    v_add_u32 v0, s53, v0
    v_lshrrev_b32 v9, 4, v1
    v_mul_u32_u24 v9, {YSLOT}, v9
    v_lshl_add_u32 v10, v0, 4, v9
    v_lshlrev_b32 v3, 2, v0
    v_lshlrev_b32 v6, 1, v0
    s_add_u32 s59, s59, {hex(K_TAG)}
    s_mul_i32 s50, s49, {16*YSLOT}""")
    srd(40, 18, "s50", 16 * YSLOT)
    A("s_mul_i32 s50, s49, 1152")
    srd(44, 14, "s50", 1152)
    A(f"""s_lshl_b32 s50, s49, 2
    s_add_u32 s50, s50, {WS_E}
    v_mov_b32 v7, s50
    v_mov_b32 v8, s59
    s_mov_b32 s53, {4*YSLOT}
    s_mov_b32 s54, {8*YSLOT}
    s_mov_b32 s55, {12*YSLOT}
    s_mov_b32 s58, 0x800000
    s_barrier
    L_poll:
    buffer_load_dwordx4 v[32:35], v10, s[40:43], 0 offen sc1
    buffer_load_dwordx4 v[36:39], v10, s[40:43], s53 offen sc1
    buffer_load_dwordx4 v[40:43], v10, s[40:43], s54 offen sc1
    buffer_load_dwordx4 v[44:47], v10, s[40:43], s55 offen sc1
    s_sub_u32 s58, s58, 1
    s_waitcnt vmcnt(2)
    v_xor_b32 v35, s59, v35
    v_xor_b32 v39, s59, v39
    v_pk_add_f32 v[32:33], v[32:33], v[36:37]
    v_add_f32 v34, v34, v38
    s_waitcnt vmcnt(0)
    v_xor_b32 v43, s59, v43
    v_xor_b32 v47, s59, v47
    v_or3_b32 v35, v35, v39, v43
    v_or_b32 v35, v35, v47
    v_cmp_ne_u32 vcc, 0, v35
    v_pk_add_f32 v[40:41], v[40:41], v[44:45]
    v_add_f32 v42, v42, v46
    v_pk_add_f32 v[32:33], v[32:33], v[40:41]
    v_add_f32 v34, v34, v42
    s_cbranch_scc1 L_pollsum
    s_cbranch_vccnz L_poll
    L_pollsum:""")
    for sw in ("v_permlane16_swap_b32", "v_permlane32_swap_b32"):
        A(f"""v_mov_b32 v36, v32
        v_mov_b32 v37, v33
        v_mov_b32 v38, v34
        {sw} v32, v36
        {sw} v33, v37
        {sw} v34, v38
        v_pk_add_f32 v[32:33], v[32:33], v[36:37]
        v_add_f32 v34, v34, v38""")
    A(f"""s_mov_b64 exec, 0xffff
    v_cvt_pk_bf16_f32 v4, v32, v33
    v_cvt_pk_bf16_f32 v5, v34, v34
    buffer_store_dword v4, v3, s[44:47], 0 offen
    buffer_store_short v5, v6, s[44:47], 0 offen offset:768""")
    ts(7)
    C("every workgroup of the batch is done with the epoch word: leave the tag there")
    A("""s_cmp_lg_u32 s52, 0
    s_cbranch_scc1 L_sdone
    s_mov_b64 exec, 1
    global_store_dword v7, v8, s[18:19] sc1
    L_sdone:""")
    if cfg.AMP:
        A(f"""s_memrealtime s[94:95]
        s_waitcnt lgkmcnt(0)
        s_sub_u32 s94, s94, s92
        s_max_u32 s94, s94, 7000
        s_min_u32 s94, s94, 12000
        s_sub_u32 s50, s94, 7000
        s_mul_i32 s50, s50, {cfg.AMP}
        s_add_u32 s50, s50, s94
        s_cmp_eq_u32 s58, 0
        s_cbranch_scc1 L_noamp
        L_amp:
        s_sleep 2
        s_memrealtime s[94:95]
        s_waitcnt lgkmcnt(0)
        s_sub_u32 s94, s94, s92
        s_cmp_lt_u32 s94, s50
        s_cbranch_scc1 L_amp
        L_noamp:""")
    ts_store()
    A("s_endpgm")

    in_aux[0] = True
    i_aux = len(o)
    vOW, vA, vB, vC = 2, 3, 8, 9
    XR, WR, WP, QA = 48, 72, 148, 224
    vXO, vWO, vPO, vTG = 10, 11, 12, 15
    A(f"""L_aux:
    s_sub_u32 s61, s3, 4
    s_mul_i32 s62, s48, {256*1152}
    s_mov_b32 s34, {256*1152}
    s_mov_b32 s35, 0x20000
    s_lshl_b32 s63, s49, 2
    s_add_u32 s63, s63, {WS_E}
    s_cmp_eq_u32 s61, 0
    s_cbranch_scc1 L_qwave
    s_waitcnt lgkmcnt(0)
    s_load_dword s60, s[18:19], s63""")
    srd(32, 12, "s62", None)
    if cfg.WPOS == 3:
        C("wave 5: pull this workgroup's 1/16 of the wo slice into L2 in one burst; the slow copy to registers then hits L2")
        A(f"s_cmp_lg_u32 s61, 1\ns_cbranch_scc1 L_qdone\ns_mul_i32 s55, s49, 18432\nv_lshlrev_b32 v{vA}, 4, v1")
        for i in range(18):
            A(f"buffer_load_dwordx4 v[40:43], v{vA}, s[32:35], s55 offen offset:{1024*(i % 4)}")
            if i % 4 == 3:
                A("s_add_u32 s55, s55, 0x1000")
        A("s_waitcnt vmcnt(0)")
    A("s_branch L_qdone")
    C("wave 4: part p = b of q: columns 64 (p>>2).., rows 144 (p&3).. of this kv head's slice of wq, all batches")
    A(f"""L_qwave:
    s_setprio 2
    v_and_b32 v{vA}, 15, v1
    v_lshrrev_b32 v{vB}, 4, v1
    v_mul_u32_u24 v{vXO}, 1152, v{vA}
    v_mad_u32_u24 v{vXO}, v{vB}, 36, v{vXO}
    v_mad_u32_u24 v{vXO}, v{vB}, 36, v{vXO}
    v_mul_u32_u24 v{vWO}, {36*8192}, v{vB}
    v_lshl_add_u32 v{vWO}, v{vA}, 3, v{vWO}
    v_lshlrev_b32 v{vPO}, 14, v{vB}
    v_lshl_add_u32 v{vPO}, v{vA}, 4, v{vPO}
    v_add_u32 v{vTG}, {hex(K_TAG)}, v{vA}
    s_lshl_b32 s51, s48, 9
    s_mov_b32 s38, {16*1152}
    s_mov_b32 s39, 0x20000
    s_sub_u32 s30, {576*8192}, s51
    s_mov_b32 s31, 0x20000
    s_lshl_b32 s52, s48, 16
    s_add_u32 s52, s52, {WS_Q}
    s_mov_b32 s46, 0x10000
    s_mov_b32 s47, 0x20000
    s_mov_b32 s53, s49
    s_mov_b32 s54, 0
    s_mov_b32 s56, 0x05040100
    s_mov_b32 s57, 0x07060302
    s_waitcnt lgkmcnt(0)""")
    srd(28, 10, "s51", None)
    srd(36, 4, None, None)
    srd(44, 18, "s52", None)
    srd(32, 12, "s62", None)
    A(f"""s_load_dword s60, s[18:19], s63
    L_produce:
    s_lshr_b32 s58, s53, 2
    s_and_b32 s59, s53, 3
    s_mul_i32 s50, s59, {144*8192}
    s_lshl_b32 s55, s58, 7
    s_add_u32 s50, s50, s55
    s_mul_i32 s55, s59, 288""")
    for n in range(36):
        A(f"buffer_load_dwordx2 v[{WR+2*n}:{WR+2*n+1}], v{vWO}, s[28:31], s50 offen")
        if n < 35:
            A("s_add_u32 s50, s50, 0x2000")
        if n == 7:
            for i in range(4):
                A(f"buffer_load_dwordx4 {q(XR+4*i)}, v{vXO}, s[36:39], s55 offen offset:{16*i}")
            A(f"buffer_load_dwordx2 v[{XR+16}:{XR+17}], v{vXO}, s[36:39], s55 offen offset:64")
    ts(6)
    A(f"""v_and_b32 v13, 0x30, v1
    v_add_u32 v13, {WS_E}, v13
    global_load_dwordx4 v[16:19], v13, s[18:19]
    s_lshl_b32 s50, s59, 10
    s_lshl_b32 s55, s58, 8
    s_add_u32 s50, s50, s55""")
    ex = 0
    if cfg.WPOS == 0:
        ex = 18
        A(f"s_mul_i32 s55, s49, 18432\nv_lshlrev_b32 v{vA}, 4, v1")
        for i in range(18):
            A(f"buffer_load_dwordx4 v[40:43], v{vA}, s[32:35], s55 offen offset:{1024*(i % 4)}")
            if i % 4 == 3:
                A("s_add_u32 s55, s55, 0x1000")
    for st in range(5):
        rows = 8 if st < 4 else 4
        last = 8 * st + rows - 1
        A(f"s_waitcnt vmcnt({ex + (36 - last if st < 4 else 0)})")
        for c in range(4):
            for m in range(rows // 2):
                r0 = 8 * st + 2 * m
                A(f"v_perm_b32 v{WP + 18*c + 4*st + m}, v{WR + 2*(r0+1) + (c >> 1)}, v{WR + 2*r0 + (c >> 1)}, {'s57' if c & 1 else 's56'}")
        A("s_nop 1")
        for c in range(4):
            w = WP + 18 * c + 4 * st
            cin = "0" if st == 0 else q(QA + 4 * c)
            if st < 4:
                A(f"v_mfma_f32_16x16x32_bf16 {q(QA+4*c)}, {q(XR+4*st)}, {q(w)}, {cin}")
            else:
                A(f"v_mfma_f32_16x16x16_bf16 {q(QA+4*c)}, v[{XR+16}:{XR+17}], v[{w}:{w+1}], {cin}")
    C("the low 4 bits of every partial sum carry the tag")
    A(f"""s_waitcnt lgkmcnt(0)
    v_add_u32 v36, s60, v{vTG}
    v_lshrrev_b32 v37, 4, v36
    v_lshrrev_b32 v38, 8, v36
    v_lshrrev_b32 v39, 12, v36
    s_nop 3""")
    for r in range(4):
        for c in range(4):
            A(f"v_bfi_b32 v{QA+16+4*r+c}, 15, v{36+c}, v{QA+4*c+r}")
        A(f"buffer_store_dwordx4 {q(QA+16+4*r)}, v{vPO}, s[44:47], s50 offen")
        if r < 3:
            A("s_add_u32 s50, s50, 0x1000")
    ts(7)
    A(f"""s_cmp_eq_u32 s54, 0
    s_cbranch_scc1 L_first
    s_waitcnt vmcnt(0)
    s_add_u32 s53, s53, 1
    s_cmp_lt_u32 s53, 16
    s_cbranch_scc1 L_produce
    s_branch L_consume""")
    C("expected tags of the 16 parts; gather them")
    A(f"L_first:\nv_lshlrev_b32 v{vA}, 4, v1")
    if cfg.WPOS == 1:
        A("s_mul_i32 s50, s49, 18432")
    for i in range(18 if cfg.WPOS == 1 else 0):
        A(f"buffer_load_dwordx4 {q(WP+4*i)}, v{vA}, s[32:35], s50 offen offset:{1024*(i % 4)}")
        if i % 4 == 3:
            A("s_add_u32 s50, s50, 0x1000")
    for rb in range(4):
        A(f"v_add_u32 v{20+4*rb}, v{vTG}, v{16+rb}")
        for c in range(1, 4):
            A(f"v_lshrrev_b32 v{20+4*rb+c}, {4*c}, v{20+4*rb}")
    A(f"""s_waitcnt vmcnt(0)
    L_consume:
    s_lshl_b32 s50, s49, 12
    s_mov_b32 s58, {cfg.QPOLLS}
    L_qpoll:""")
    for rb in range(4):
        A(f"buffer_load_dwordx4 {q(XR+4*rb)}, v{vA}, s[44:47], s50 offen offset:{1024*rb} sc1")
    A("s_waitcnt vmcnt(0)")
    for i in range(16):
        A(f"v_xor_b32 v{WR+i}, v{20+i}, v{XR+i}")
    A(f"v_or3_b32 v{WR}, v{WR}, v{WR+1}, v{WR+2}")
    for i in range(3, 15, 2):
        A(f"v_or3_b32 v{WR}, v{WR}, v{WR+i}, v{WR+i+1}")
    A(f"""v_or_b32 v{WR}, v{WR}, v{WR+15}
    v_and_b32 v{WR}, 15, v{WR}
    v_cmp_ne_u32 vcc, 0, v{WR}
    s_nop 4
    s_cbranch_vccz L_qready
    s_cmp_lg_u32 s54, 0
    s_cbranch_scc1 L_qready
    s_sub_u32 s58, s58, 1
    s_cbranch_scc0 L_qpoll""")
    C("parts are missing: compute all 16 into a private area")
    A(f"""s_mov_b32 s54, 1
    s_mov_b32 s53, 0
    s_lshl_b32 s52, s2, 16
    s_add_u32 s52, s52, {WS_F}""")
    srd(44, 18, "s52", None)
    A("s_branch L_produce\nL_qready:")
    ts(9)
    for i in range(16):
        A(f"v_bfi_b32 v{XR+i}, 15, 8, v{XR+i}")
    A(f"""v_lshlrev_b32 v{vB}, 3, v1
    v_add_u32 v{vB}, {L_Q}, v{vB}
    v_pk_add_f32 v[{XR}:{XR+1}], v[{XR}:{XR+1}], v[{XR+4}:{XR+5}]
    v_pk_add_f32 v[{XR+2}:{XR+3}], v[{XR+2}:{XR+3}], v[{XR+6}:{XR+7}]
    v_pk_add_f32 v[{XR+8}:{XR+9}], v[{XR+8}:{XR+9}], v[{XR+12}:{XR+13}]
    v_pk_add_f32 v[{XR+10}:{XR+11}], v[{XR+10}:{XR+11}], v[{XR+14}:{XR+15}]
    v_pk_add_f32 v[{XR}:{XR+1}], v[{XR}:{XR+1}], v[{XR+8}:{XR+9}]
    v_pk_add_f32 v[{XR+2}:{XR+3}], v[{XR+2}:{XR+3}], v[{XR+10}:{XR+11}]
    v_cvt_pk_bf16_f32 v{XR}, v{XR}, v{XR+1}
    v_cvt_pk_bf16_f32 v{XR+1}, v{XR+2}, v{XR+3}
    ds_write_b64 v{vB}, v[{XR}:{XR+1}]
    s_setprio 0
    s_branch L_qdone""")
    i_aux2 = len(o)
    A(f"""L_qdone:
    s_load_dword s63, s[18:19], {WS_E}
    v_mov_b32 v{vA}, {L_FC}
    v_mov_b32 v{vB}, {MID}
    v_mov_b32 v{vC}, 99
    ds_write2_b32 v{vA}, v{vB}, v{vC} offset0:0 offset1:4
    ds_write2_b32 v{vA}, v{vC}, v{vC} offset0:5 offset1:6
    ds_write_b32 v{vA}, v{vC} offset:28
    s_waitcnt lgkmcnt(0)""")
    ts(1)
    WS = lambda n: 64 + 4 * n
    NWS, YACC, OB0, OB1 = 48, 12, 4, 8
    vOP0, vOP1, vAO, vAW, vAY, vAR, vIX, vAR2, vST = 56, 57, 58, 59, 60, 61, 62, 63, 3
    C("barrier Q; wo tiles (8 rows x 64 columns): lane (j, g) takes row 128 (g>>1) + 8 (g&1) + 16 (j>>3) + 32 wave + k")
    A(f"""s_barrier
    v_bfe_u32 v8, v1, 5, 1
    v_lshlrev_b32 v8, 7, v8
    v_bfe_u32 v9, v1, 4, 1
    v_lshl_add_u32 v8, v9, 3, v8
    v_bfe_u32 v9, v1, 3, 1
    v_lshl_add_u32 v8, v9, 4, v8
    s_lshl_b32 s50, s61, 5
    v_add_u32 v8, s50, v8
    v_mul_u32_u24 v{vOW}, 1152, v8
    v_and_b32 v9, 7, v1
    v_lshl_add_u32 v{vOW}, v9, 4, v{vOW}
    s_mul_i32 s52, s61, {24*1024}""")
    for k in range(72):
        t, cb = divmod(k >> 1, 9)
        if k >= cfg.WO_DEPTH:
            A(f"s_waitcnt vmcnt({cfg.WO_DEPTH - 1})")
        A(f"s_movk_i32 s50, {(2*t + (k & 1)) * 1152 + cb * 128}")
        if k < NWS:
            A(f"buffer_load_dwordx4 {q(WS(k))}, v{vOW}, s[32:35], s50 offen nt")
        else:
            A(f"s_add_u32 m0, s52, {L_WO + (k - NWS) * 1024}\ns_nop 0\nbuffer_load_dwordx4 v{vOW}, s[32:35], s50 offen nt lds")
    A(f"s_add_u32 s60, s60, {hex(K_TAG)}\ns_mul_i32 s50, s2, {YSLOT}")
    srd(40, 18, "s50", YSLOT)
    A(f"""v_bfe_u32 v8, v1, 2, 2
    v_lshlrev_b32 v{vAO}, 6, v8
    v_lshrrev_b32 v8, 4, v1
    v_lshl_add_u32 v{vAO}, v8, 4, v{vAO}
    v_and_b32 v9, 1, v1
    v_lshl_add_u32 v{vAO}, v9, 3, v{vAO}
    s_lshl_b32 s50, s61, 8
    s_add_u32 s50, s50, {L_O}
    v_add_u32 v{vAO}, s50, v{vAO}
    v_lshlrev_b32 v{vAW}, 4, v1
    v_add_u32 v{vAW}, s52, v{vAW}
    v_and_b32 v9, 15, v1
    v_lshlrev_b32 v{vAY}, 5, v9
    v_lshl_add_u32 v{vAY}, v8, 3, v{vAY}
    s_mul_i32 s50, s61, {YP}
    s_add_u32 s50, s50, {L_Y}
    v_add_u32 v{vAY}, s50, v{vAY}
    s_mul_i32 s50, s61, 48
    v_add_u32 v9, s50, v1
    v_lshlrev_b32 v{vST}, 4, v9
    v_lshlrev_b32 v{vAR}, 3, v9
    v_add_u32 v{vAR}, {L_Y}, v{vAR}
    v_lshlrev_b32 v{vAR2}, 2, v9
    v_add_u32 v{vAR2}, {L_Y + 1536}, v{vAR2}
    v_bfe_u32 v{vIX}, v1, 1, 2
    v_xor_b32 v9, 1, v{vIX}
    v_lshl_add_u32 v{vIX}, v9, 2, v{vIX}
    v_mul_u32_u24 v{vIX}, 0x1111, v{vIX}
    s_waitcnt vmcnt(0)""")
    ts(2)
    C("wave 7: at every second V iteration, rank this workgroup among those with the same wg & 7 ...")
    gx, off = cfg.GX, 9 * cfg.GX
    A(f"""s_cmp_lg_u32 s61, 3
    s_cbranch_scc1 L_noctl
    s_add_u32 s63, s63, {hex(K_TAG)}
    s_and_b32 s24, s2, 7
    s_lshr_b32 s25, s2, 3
    s_mul_i32 s26, s24, 4352
    s_add_u32 s26, s26, {WS_P}
    v_min_u32 v48, 32, v1
    v_lshlrev_b32 v48, 2, v48
    v_add_u32 v48, s26, v48
    s_lshl_b32 s50, s25, 2
    s_add_u32 s50, s50, s26
    v_mov_b32 v49, s50
    v_mov_b32 v50, {L_FC}
    s_add_u32 s50, s26, 128
    v_mov_b32 v54, s50
    s_mul_i32 s50, s24, 4224
    s_add_u32 s50, s50, {WS_G}
    v_mov_b32 v55, s50
    s_mov_b32 s27, {cfg.CK0}
    s_mov_b32 s28, 1
    L_ctl:
    s_sleep 1
    ds_read_b128 v[4:7], v50 offset:16
    s_waitcnt lgkmcnt(0)
    v_max3_u32 v51, v4, v5, v6
    v_max_u32 v51, v51, v7
    s_sub_u32 s30, s63, s27
    v_readfirstlane_b32 s50, v51
    s_cmp_gt_u32 s50, s27
    s_cbranch_scc1 L_ctl
    v_mov_b32 v52, s30
    s_mov_b64 exec, 1
    global_store_dword v49, v52, s[18:19]
    s_mov_b64 exec, -1
    global_load_dword v53, v48, s[18:19] sc1
    s_waitcnt vmcnt(0)
    v_readlane_b32 s36, v53, 32
    v_subrev_u32 v53, s30, v53
    v_cmp_gt_u32 vcc, 32, v53
    s_sub_u32 s36, s36, s63
    s_cmp_lt_u32 s36, 17
    s_cselect_b32 s36, s36, 9
    s_mul_i32 s36, s36, {gx}
    s_bcnt1_i32_b32 s31, vcc_lo
    s_lshl_b32 s37, s31, 1
    s_add_u32 s37, s37, s36
    s_mov_b32 s38, 0""")
    for i in range(1, len(LEV) - 1):
        A(f"s_cmp_ge_u32 s37, {2*LEV[i][0] + off}\ns_cselect_b32 s38, {i}, s38")
    A("v_mov_b32 v51, s38\nds_write_b32 v50, v51")
    C("... and at every fourth, one or two of them rank their group among the eight groups")
    A(f"""s_xor_b32 s28, s28, 1
    s_cbranch_scc1 L_ctlnext
    s_sub_u32 s50, s31, {cfg.GR}
    s_cmp_ge_u32 s50, 2
    s_cbranch_scc1 L_ctlnext
    s_mov_b64 exec, 1
    global_store_dword v55, v52, s[18:19] sc1""")
    gr = [20, 21, 22, 23, 44, 45, 46, 47]
    for i in range(8):
        A(f"s_load_dword s{gr[i]}, s[18:19], {WS_G + 4224*i} glc")
    A("s_lshl_b32 s50, 1, s24\ns_waitcnt lgkmcnt(0)")
    for i in range(8):
        A(f"s_sub_u32 s{gr[i]}, s{gr[i]}, s30\ns_cmp_lt_u32 s{gr[i]}, 32\ns_cselect_b32 s{gr[i]}, {1 << i}, 0\ns_or_b32 s50, s50, s{gr[i]}")
    A(f"""s_bcnt1_i32_b32 s50, s50
    s_lshl_b32 s50, s50, 1
    s_add_u32 s50, s50, s63
    v_mov_b32 v53, s50
    global_store_dword v54, v53, s[18:19]
    s_mov_b64 exec, -1
    L_ctlnext:
    s_sub_u32 s27, s27, {cfg.CKIT}
    s_cmp_gt_i32 s27, {cfg.VEND}
    s_cbranch_scc1 L_ctl
    s_waitcnt vmcnt(0) lgkmcnt(0)
    L_noctl:""")
    for r in range(OB0, YACC + 36):
        A(f"v_mov_b32 v{r}, 0")
    C("barriers A and B; o = bf16(sum of the four scaled partials); y = o @ wo rows of this wave")
    A("s_setprio 3\ns_barrier\ns_barrier")
    ts(3)
    for w in range(4):
        A(f"ds_read_b64 v[{48+2*w}:{49+2*w}], v{vAO} offset:{1024*w}")
    A(f"""s_waitcnt lgkmcnt(2)
    v_pk_add_f32 v[48:49], v[48:49], v[50:51]
    s_waitcnt lgkmcnt(0)
    v_pk_add_f32 v[52:53], v[52:53], v[54:55]
    v_pk_add_f32 v[48:49], v[48:49], v[52:53]
    v_cvt_pk_bf16_f32 v{vOP0}, v48, 0
    v_cvt_pk_bf16_f32 v{vOP1}, v49, 0
    s_nop 0""")
    def sbuild(t):
        ob = OB1 if t & 1 else OB0
        return [f"v_mov_b32_dpp v{ob+a_}, v{vOP1 if a_ >> 1 else vOP0} {ror(2*(a_ & 1) + odd - t)} row_mask:0xf bank_mask:{hex(1 << (2*(a_ & 1) + odd))}"
                for odd in range(2) for a_ in range(4)]
    A("\n".join(sbuild(0)) + "\ns_nop 1")
    Y = lambda p: WS(30) + 2 * p
    def merge(cb):
        d, p = YACC + 4 * cb, cb >> 1
        if cb & 1:
            r = [f"v_add_f32_dpp v{Y(p)}, v{d}, v{d+1} row_ror:8 row_mask:0xf bank_mask:0xc",
                 f"v_add_f32_dpp v{Y(p)+1}, v{d+2}, v{d+3} row_ror:8 row_mask:0xf bank_mask:0xc"]
        else:
            r = [f"v_add_f32_dpp v{Y(p)}, v{d+1}, v{d} row_ror:8 row_mask:0xf bank_mask:0x3",
                 f"v_add_f32_dpp v{Y(p)+1}, v{d+3}, v{d+2} row_ror:8 row_mask:0xf bank_mask:0x3"]
        if cb & 1 or cb == 8:
            r.append(f"ds_write_b64 v{vAY}, v[{Y(p)}:{Y(p)+1}] offset:{512*p}")
        return r
    pos = {}
    done = 0
    def states_since(i):
        n = 0
        for l in o[i + 1:]:
            l = l.strip()
            n += int(l.split()[1]) + 1 if l.startswith("s_nop") else 1
        return n
    for m in range(36):
        t, cb = divmod(m, 9)
        slot = 2 * m if 2 * m < NWS else 2 * m - NWS
        if NWS <= 2 * m < 2 * 31:
            A(f"s_waitcnt lgkmcnt({min(14, min(72 - NWS, m - 1) - (2 * m - NWS + 2))})")
        if m == 31:
            A("s_waitcnt lgkmcnt(0)")
        A(f"v_smfmac_f32_16x16x64_bf16 {q(YACC+4*cb)}, {q(OB1 if t & 1 else OB0)}, v[{WS(slot)}:{WS(slot)+7}], v{vIX}")
        pos[cb] = len(o) - 1
        if 1 <= m <= 72 - NWS:
            A(f"ds_read_b128 {q(WS(m-1))}, v{vAW} offset:{L_WO + (m-1)*1024}")
        if t < 3 and 1 <= cb <= 6:
            bl = sbuild(t + 1)
            A("\n".join({1: bl[0:2], 2: bl[2:4], 3: bl[4:5], 4: bl[5:6], 5: bl[6:7], 6: bl[7:8]}[cb]))
        if cfg.MI and m >= 31 and states_since(pos[done]) >= 8:
            A("\n".join(merge(done)))
            done += 1
    rest = list(range(done, 9))
    if not cfg.MI:
        rest = [0, 2, 4, 6, 1, 3, 5, 7, 8]
    for cb in rest:
        need = 8 - states_since(pos[cb])
        if cfg.MI and cb & 1:
            need = max(need, 1)
        if need > 0:
            A(f"s_nop {need - 1}")
        A("\n".join(merge(cb)))
    A("s_mov_b32 exec_hi, 0xffff\nv_mov_b32 v51, s60\ns_waitcnt lgkmcnt(0)")
    ts(4)
    C("barrier C; granule n = {y[2n], y[2n+1], y[384+n], tag}")
    A("s_barrier")
    for w in range(4):
        A(f"ds_read_b64 v[{12+4*w}:{13+4*w}], v{vAR} offset:{YP*w}\nds_read_b32 v{14+4*w}, v{vAR2} offset:{YP*w}")
    A(f"""s_waitcnt lgkmcnt(4)
    v_pk_add_f32 v[12:13], v[12:13], v[16:17]
    v_add_f32 v14, v14, v18
    s_waitcnt lgkmcnt(0)
    v_pk_add_f32 v[20:21], v[20:21], v[24:25]
    v_add_f32 v22, v22, v26
    v_pk_add_f32 v[48:49], v[12:13], v[20:21]
    v_add_f32 v50, v14, v22
    buffer_store_dwordx4 v[48:51], v{vST}, s[40:43], 0 offen sc1""")
    ts(5)
    ts_store()
    A("L_end:\ns_endpgm")
    if cfg.AUXF:
        o = o[:i_stream] + o[i_aux:i_aux2] + o[i_stream:i_aux] + o[i_aux2:]
    return "\n".join(o)

HEADER = open("standalone__gqa_block_cached__sampling.s.ref").read().split("; Override launch")[0]

def full(cfg):
    return f"""{HEADER}; @launch grid=(256,1,1) block=(512,1,1) lds={LDS_BYTES}
{DOC}.amdgcn_target "amdgcn-amd-amdhsa--gfx950"
.text
.globl {NAME}_kernel
.p2align 8
.type {NAME}_kernel,@function
{gen(cfg)}
.section .rodata,"a"
.p2align 6
.amdhsa_kernel {NAME}_kernel
  .amdhsa_next_free_vgpr 256
  .amdhsa_next_free_sgpr 96
  .amdhsa_accum_offset 256
  .amdhsa_group_segment_fixed_size 0
  .amdhsa_kernarg_size 64
  .amdhsa_user_sgpr_count 2
  .amdhsa_user_sgpr_kernarg_segment_ptr 1
  .amdhsa_system_sgpr_workgroup_id_x 1
.end_amdhsa_kernel
"""

if __name__ == "__main__":
    cfg = Cfg()
    for kv in sys.argv[2:]:
        k, v = kv.split("=")
        setattr(cfg, k, int(v) if isinstance(getattr(cfg, k), int) else v)
    open(sys.argv[1], "w").write(full(cfg))
```

```python
import sys, json

def kernel(name, W, T, mode, pat, flags, wavemap, nwg=256, rot=0, wcf=None, fine=None, wcodd=None, work=0):
    per_wg = (1 << 28) // nwg
    ntiles_total = per_wg // 4096 // W
    o = []
    A = o.append
    A(f".globl {name}\n.p2align 8\n.type {name},@function\n{name}:")
    A(f"  s_cmp_ge_u32 s2, {nwg}\n  s_cbranch_scc1 {name}_done")
    A("  s_memrealtime s[20:21]")
    A("  s_load_dwordx4 s[4:7], s[0:1], 8")
    A("  s_load_dwordx2 s[24:25], s[0:1], 56")
    A("  v_lshrrev_b32 v1, 6, v0\n  s_nop 0\n  v_readfirstlane_b32 s26, v1")
    A("  v_and_b32 v2, 63, v0")
    if pat == 'row':
        A("  v_lshlrev_b32 v3, 4, v2")
        offs = [0, 1024, 2048, 3072]
    elif pat == 'kpat':
        A("  v_and_b32 v3, 15, v2\n  v_lshlrev_b32 v3, 8, v3\n  v_lshrrev_b32 v4, 4, v2\n  v_lshl_add_u32 v3, v4, 4, v3")
        offs = [0, 64, 128, 192]
    elif pat == 'vpat':
        A("  v_and_b32 v3, 15, v2\n  v_lshlrev_b32 v3, 4, v3\n  v_lshrrev_b32 v4, 4, v2\n  v_lshl_add_u32 v3, v4, 10, v3")
        offs = [0, 256, 512, 768]
    elif pat == 'qpat':
        A("  v_and_b32 v3, 3, v2\n  v_lshlrev_b32 v3, 4, v3\n  v_lshrrev_b32 v4, 4, v2\n  v_lshl_add_u32 v3, v4, 6, v3")
        A("  v_bfe_u32 v4, v2, 2, 2\n  v_lshl_add_u32 v3, v4, 8, v3")
        offs = [0, 1024, 2048, 3072]
    elif pat == 'ppat':
        A("  v_and_b32 v3, 3, v2\n  v_lshlrev_b32 v3, 8, v3\n  v_lshrrev_b32 v4, 4, v2\n  v_lshl_add_u32 v3, v4, 4, v3")
        A("  v_bfe_u32 v4, v2, 2, 2\n  v_lshl_add_u32 v3, v4, 6, v3")
        offs = [0, 1024, 2048, 3072]
    A("  s_waitcnt lgkmcnt(0)")
    A(f"  s_mul_i32 s27, s2, {per_wg}")
    A(f"  s_mul_hi_u32 s28, s2, {per_wg}")
    A("  s_add_u32 s8, s4, s27\n  s_addc_u32 s9, s5, s28\n  s_and_b32 s9, s9, 0xffff")
    A(f"  s_mov_b32 s10, {per_wg}\n  s_mov_b32 s11, 0x20000")
    A("  s_add_u32 s12, s6, s27\n  s_addc_u32 s13, s7, s28\n  s_and_b32 s13, s13, 0xffff")
    A(f"  s_mov_b32 s14, {per_wg}\n  s_mov_b32 s15, 0x20000")
    if wavemap == 'i1':
        step = 1024 * W
        A("  s_lshl_b32 s16, s26, 10")
    elif wavemap == 'il':
        step = 4096 * W
        A("  s_lshl_b32 s16, s26, 12")
    else:
        step = 4096
        A(f"  s_mul_i32 s16, s26, {per_wg // W}")
    A("  s_mov_b32 s29, s16")
    if rot:
        A(f"  s_mul_i32 s30, s2, {rot}")
        A(f"  s_add_u32 s16, s16, s30")
        A(f"  s_and_b32 s16, s16, {per_wg-1}")
    if mode == 'lds':
        A(f"  s_mul_i32 s17, s26, {T*4096}")
    A("  v_mov_b32 v5, 0")
    fl = (" " + flags) if flags else ""
    def issue(slot, srd):
        r = []
        if mode == 'lds':
            if pat == 'row':
                r.append(f"  s_add_u32 m0, s17, {slot*4096}")
                r.append("  s_nop 0")
                for j in range(4):
                    if fine is not None: r.append(f"  s_waitcnt vmcnt({fine})")
                    r.append(f"  buffer_load_dwordx4 v3, {srd}, s16 offen offset:{offs[j]}{fl} lds")
            else:
                raise Exception
        else:
            for j in range(4):
                b = 8 + slot * 16 + j * 4
                if fine is not None: r.append(f"  s_waitcnt vmcnt({fine if (wcodd is None or j%2==0) else wcodd})")
                if wavemap == 'i1':
                    r.append(f"  buffer_load_dwordx4 v[{b}:{b+3}], v3, {srd}, s16 offen{fl}")
                    if j < 3: r.append(f"  s_add_u32 s16, s16, {step}")
                else:
                    r.append(f"  buffer_load_dwordx4 v[{b}:{b+3}], v3, {srd}, s16 offen offset:{offs[j]}{fl}")
                r.extend(["  s_nop 15"]*work)
        r.append(f"  s_add_u32 s16, s16, {step}")
        if rot:
            r.append(f"  s_and_b32 s16, s16, {per_wg-1}")
        return r
    def consume(slot):
        r = []
        if mode == 'vgpr':
            for j in range(4):
                b = 8 + slot * 16 + j * 4
                r.append(f"  v_xor_b32 v5, v5, v{b}")
        else:
            pass
        return r
    assert ntiles_total % T == 0 and ntiles_total >= T
    wc = min(63, 4 * (T - 1))
    if wcf is not None: wc = wcf
    for s in range(T):
        if wcf is not None: A(f"  s_waitcnt vmcnt({wc})")
        o.extend(issue(s, "s[8:11]"))
    nit = ntiles_total // T
    if nit > 1:
        A(f"  s_mov_b32 s18, {nit-1}")
        A(f"{name}_k:")
        for s in range(T):
            A(f"  s_waitcnt vmcnt({wc})")
            o.extend(consume(s))
            o.extend(issue(s, "s[8:11]"))
        A(f"  s_sub_u32 s18, s18, 1\n  s_cmp_lg_u32 s18, 0\n  s_cbranch_scc1 {name}_k")
    if not rot:
        A("  s_mov_b32 s16, s29")
    A(f"  s_mov_b32 s18, {nit}")
    A(f"{name}_v:")
    for s in range(T):
        A(f"  s_waitcnt vmcnt({wc})")
        o.extend(consume(s))
        o.extend(issue(s, "s[12:15]"))
    A(f"  s_sub_u32 s18, s18, 1\n  s_cmp_lg_u32 s18, 0\n  s_cbranch_scc1 {name}_v")
    A("  s_waitcnt vmcnt(0)")
    for s in range(T):
        o.extend(consume(s))
    A("  s_memrealtime s[22:23]")
    A("  s_getreg_b32 s30, hwreg(HW_REG_XCC_ID)")
    A("  s_getreg_b32 s31, hwreg(HW_REG_HW_ID)")
    A("  s_waitcnt lgkmcnt(0)")
    A(f"  s_mul_i32 s27, s2, {W}\n  s_add_u32 s27, s27, s26\n  s_lshl_b32 s27, s27, 5")
    A("  v_mov_b32 v8, s20\n  v_mov_b32 v9, s21\n  v_mov_b32 v10, s22\n  v_mov_b32 v11, s23")
    A("  v_mov_b32 v12, s30\n  v_mov_b32 v13, s31\n  v_mov_b32 v14, v5\n  v_mov_b32 v15, 0")
    A("  v_mov_b32 v6, s27")
    A("  v_cmp_eq_u32 vcc, 0, v2\n  s_and_saveexec_b64 s[32:33], vcc")
    A("  global_store_dwordx4 v6, v[8:11], s[24:25]")
    A("  global_store_dwordx4 v6, v[12:15], s[24:25] offset:16")
    A(f"{name}_done:\n  s_endpgm")
    nv = 8 + T * 16 if mode == 'vgpr' else 24
    nv = max(nv, 24)
    lds = T * 4096 * W if mode == 'lds' else 0
    return "\n".join(o), nv, lds

def desc(name, nv, force_nv=None):
    nv = force_nv or nv
    acc = min(256, (nv + 3) // 4 * 4)
    return f""".amdhsa_kernel {name}
  .amdhsa_next_free_vgpr {nv}
  .amdhsa_next_free_sgpr 64
  .amdhsa_accum_offset {acc}
  .amdhsa_group_segment_fixed_size 0
  .amdhsa_kernarg_size 64
  .amdhsa_user_sgpr_count 2
  .amdhsa_user_sgpr_kernarg_segment_ptr 1
  .amdhsa_system_sgpr_workgroup_id_x 1
.end_amdhsa_kernel"""

def meta(name, nv, W):
    return f"""  - .name: {name}
    .symbol: {name}.kd
    .kernarg_segment_size: 64
    .kernarg_segment_align: 8
    .group_segment_fixed_size: 0
    .private_segment_fixed_size: 0
    .wavefront_size: 64
    .sgpr_count: 64
    .vgpr_count: {nv}
    .max_flat_workgroup_size: {W*64}
    .args:
      - {{.name: kernargs, .size: 64, .offset: 0, .value_kind: by_value}}"""

def build(variants, out):
    body, descs, metas, info = [], [], [], []
    for v in variants:
        name = v['name']
        txt, nv, lds = kernel(name, v['W'], v['T'], v['mode'], v['pat'], v.get('flags', ''), v.get('wavemap', 'il'), v.get('nwg', 256), v.get('rot', 0), v.get('wc'), v.get('fine'), v.get('wcodd'), v.get('work', 0))
        lds = max(lds, v.get('minlds', 0))
        body.append(txt)
        descs.append(".p2align 6\n" + desc(name, nv))
        metas.append(meta(name, nv, v['W']))
        info.append(dict(name=name, grid=v.get('nwg', 256), block=v['W'] * 64, lds=lds, W=v['W']))
    s = '.amdgcn_target "amdgcn-amd-amdhsa--gfx950"\n.text\n' + "\n".join(body) + '\n.section .rodata,"a"\n' + "\n".join(descs)
    s += "\n.amdgpu_metadata\n---\namdhsa.version: [1, 2]\namdhsa.kernels:\n" + "\n".join(metas) + "\n...\n.end_amdgpu_metadata\n"
    open(out + ".s", "w").write(s)
    json.dump(info, open(out + ".json", "w"))

if __name__ == "__main__":
    V = []
    L = 96 * 1024
    for flags in ['', 'nt']:
        f = flags.replace(' ', '') or 'def'
        V.append(dict(name=f"v_row_w4t8_{f}", W=4, T=8, mode='vgpr', pat='row', flags=flags, minlds=L))
        V.append(dict(name=f"v_row_w8t4_{f}", W=8, T=4, mode='vgpr', pat='row', flags=flags, minlds=L))
        V.append(dict(name=f"v_row_w8t8_{f}", W=8, T=8, mode='vgpr', pat='row', flags=flags, minlds=L))
        V.append(dict(name=f"v_kpat_w8t8_{f}", W=8, T=8, mode='vgpr', pat='kpat', flags=flags, minlds=L))
        V.append(dict(name=f"v_vpat_w8t8_{f}", W=8, T=8, mode='vgpr', pat='vpat', flags=flags, minlds=L))
        V.append(dict(name=f"v_row_w16t4_{f}", W=16, T=4, mode='vgpr', pat='row', flags=flags, minlds=L))
        V.append(dict(name=f"l_row_w4t8_{f}", W=4, T=8, mode='lds', pat='row', flags=flags, minlds=L))
        V.append(dict(name=f"l_row_w8t4_{f}", W=8, T=4, mode='lds', pat='row', flags=flags, minlds=L))
        V.append(dict(name=f"v_row_w8t8ct_{f}", W=8, T=8, mode='vgpr', pat='row', flags=flags, wavemap='ct', minlds=L))
    build(V, "stream")
```

```python
import json
from gen_stream import desc, meta
def kernel(name, d, de):
    o = []; A = o.append
    A(f".globl {name}\n.p2align 8\n.type {name},@function\n{name}:")
    A(f"  s_cmp_ge_u32 s2, 256\n  s_cbranch_scc1 {name}_done")
    A("  s_load_dwordx4 s[4:7], s[0:1], 8")
    A("  s_load_dwordx4 s[40:43], s[0:1], 48")
    A("  v_lshrrev_b32 v1, 6, v0\n  v_and_b32 v2, 63, v0\n  v_readfirstlane_b32 s26, v1")
    A("  v_and_b32 v3, 15, v2\n  v_lshlrev_b32 v3, 4, v3")
    A("  s_waitcnt lgkmcnt(0)")
    A("  s_load_dwordx16 s[44:59], s[40:41], 0\n  s_lshl_b32 s28, s26, 2\n  s_add_u32 s28, s28, 16\n  s_load_dword s29, s[40:41], s28\n  s_lshl_b32 s28, s2, 2\n  s_add_u32 s28, s28, 1024\n  s_load_dword s34, s[40:41], s28")
    A("  s_waitcnt lgkmcnt(0)")
    A("  s_mul_i32 s27, s2, s54")
    A("  s_mov_b32 s8, s4\n  s_and_b32 s9, s5, 0xffff\n  s_mov_b32 s10, 0x10000000\n  s_mov_b32 s11, 0x20000")
    A("  s_mov_b32 s12, s6\n  s_and_b32 s13, s7, 0xffff")
    A("  v_bfe_u32 v4, v2, 4, 1\n  v_mul_lo_u32 v4, v4, s56\n  v_xor_b32 v3, v3, v4\n  v_bfe_u32 v4, v2, 5, 1\n  v_mul_lo_u32 v4, v4, s57\n  v_xor_b32 v3, v3, v4")
    A("  s_xor_b32 s29, s29, s34\n  s_add_u32 s29, s29, s27\n  v_xor_b32 v3, s29, v3\n  v_xor_b32 v4, s45, v3\n  v_xor_b32 v5, s46, v3\n  v_xor_b32 v6, s47, v3")
    A("  s_mov_b32 s16, 0\n  s_mov_b32 s18, 0\n  s_mov_b32 s30, 4")
    for si, (until, dd) in enumerate(((58, d), (64, de))):
        A(f"{name}_l{si}:")
        for j in range(8):
            A(f"  v_xor_b32 v7, s16, v{3 + (j & 3)}\n  s_waitcnt vmcnt({dd-1})")
            b = 8 + 4 * j
            A(f"  buffer_load_dwordx4 v[{b}:{b+3}], v7, s[8:11], 0 offen nt")
            if j & 3 == 0:
                A("  s_add_u32 s31, s30, 256\n  s_load_dword s17, s[40:41], s31\n  s_add_u32 s30, s30, 4\n  s_and_b32 s30, s30, 255")
            if j & 3 == 3:
                A("  s_waitcnt lgkmcnt(0)\n  s_mov_b32 s16, s17")
        A("  s_add_u32 s18, s18, 1")
        if si == 0:
            A(f"  s_cmp_lg_u32 s18, 6\n  s_cbranch_scc1 {name}_t0\n  s_memrealtime s[20:21]\n{name}_t0:\n  s_cmp_lg_u32 s18, 46\n  s_cbranch_scc1 {name}_t1\n  s_memrealtime s[22:23]\n{name}_t1:")
        A(f"  s_cmp_lg_u32 s18, 32\n  s_cbranch_scc1 {name}_nv{si}")
        A("  s_mov_b32 s8, s12\n  s_mov_b32 s9, s13")
        A(f"{name}_nv{si}:")
        A(f"  s_cmp_lt_u32 s18, {until}\n  s_cbranch_scc1 {name}_l{si}")
    A("  s_waitcnt vmcnt(0)")
    A("  s_waitcnt lgkmcnt(0)")
    A(f"  s_mul_i32 s27, s2, 4\n  s_add_u32 s27, s27, s26\n  s_lshl_b32 s27, s27, 5")
    A("  v_mov_b32 v8, s20\n  v_mov_b32 v9, s21\n  v_mov_b32 v10, s22\n  v_mov_b32 v11, s23")
    A("  v_mov_b32 v6, s27")
    A("  v_cmp_eq_u32 vcc, 0, v2\n  s_and_saveexec_b64 s[32:33], vcc")
    A("  global_store_dwordx4 v6, v[8:11], s[42:43]")
    A(f"{name}_done:\n  s_endpgm")
    return "\n".join(o)
V = [("pat5", 5, 7), ("pat6", 6, 7)]
s = '.amdgcn_target "amdgcn-amd-amdhsa--gfx950"\n.text\n' + "\n".join(kernel(*v) for v in V) + '\n.section .rodata,"a"\n' + "\n".join(".p2align 6\n" + desc(v[0], 48) for v in V)
s += "\n.amdgpu_metadata\n---\namdhsa.version: [1, 2]\namdhsa.kernels:\n" + "\n".join(meta(v[0], 48, 4) for v in V) + "\n...\n.end_amdgpu_metadata\n"
open("pat5.s", "w").write(s)
```

```python
import sys

NAME = "standalone__gqa_block_cached__sampling"

class Cfg:
    P = 56
    LAG = 7
    NP = 5
    NK = 5566
    LEV = "0:4,9:5,27:6"
    NE = 7
    VEND = 1
    CK0 = 29
    CKIT = 2
    GX = 3
    GR = 7
    WB_STEP = 5
    WO_DEPTH = 2
    QPOLLS = 200
    QBAR = 28
    WGX = ''
    WO_MIX = 0
    WPOS = 3
    KDEL = 1
    PERM = '10,13,11,12,9^16,9,17^19,8^15,17,14^17^19,14^18,8'
    RAMP = ''
    AUXF = 1
    MI = 1
    TS = 0
    ABL = ''
    AMP = 0

L_WO = 0
L_SC = 98304
YP = 2560
L_Y = L_SC + 32768
L_O = L_Y + 4 * YP
L_Q = L_O + 4096
L_ML = L_Q + 512
L_FC = L_ML + 64
LDS_BYTES = L_FC + 32
YSLOT = 3072
WS_P = 0xD0000
WS_G = 0xE0000
WS_E = 0xF0000
WS_Q = 0x100000
WS_F = 0x1000000
K_TAG = 0x9e3779b9
C_SCALE = 0x3DB504F3
C_LOG2E = 0x3FB8AA3B

DOC = """;
;       workgroups.
"""

def ror(k):
    k = (4 * k) % 16
    return "quad_perm:[0,1,2,3]" if k == 0 else f"row_ror:{k}"

def q(b):
    return f"v[{b}:{b+3}]"

def gen(cfg):
    o = []
    def A(s):
        for line in s.split("\n"):
            line = line.strip()
            if line:
                o.append(line if line.endswith(":") else "    " + line)
    def C(s):
        o.append("    ; ---- " + s)
    P, LAG = cfg.P, cfg.LAG
    LEV = [(int(x.split(":")[0]), int(x.split(":")[1])) for x in cfg.LEV.split(",")]
    LEV.append((None, int(max(str(LEV[-1][1]))) + 1))
    MID = max(i for i, (t_, _) in enumerate(LEV[:-1]) if t_ <= 16)
    NV = LEV[MID][1]
    assert max(int(max(str(cfg.NK))), cfg.NE, LEV[-1][1]) <= LAG <= 7 and cfg.NP <= 8
    VEC = [sum(1 << int(b_) for b_ in x.split("^")) for x in cfg.PERM.split(",")]
    RB, WB = [v_.bit_length() - 1 for v_ in VEC[0:2]], [v_.bit_length() - 1 for v_ in VEC[2:4]]
    IV, GV = VEC[4:7], VEC[7:]
    def xsum(j, vs):
        r = 0
        for i, v_ in enumerate(vs):
            if (j >> i) & 1:
                r ^= v_
        return r
    assert all(bin(v_).count("1") == 1 for v_ in VEC[:4]) and not any(v_ & sum(VEC[:4]) for v_ in VEC[4:])
    assert sorted(xsum(j, VEC) for j in range(4096)) == [j << 8 for j in range(4096)]
    ioff = lambda j: xsum(j, IV)
    goff = lambda g: xsum(g, GV)
    WGX = [(int(x.split(":")[0]), xsum(int(x.split(":")[1][::-1], 2), VEC[4:])) for x in cfg.WGX.split(",") if x]
    gall = 0
    for v_ in GV + [u_ for _, u_ in WGX]:
        gall |= v_
    LOW = 0xfff & ~gall
    HI = sorted({ioff(j) & ~LOW for j in range(8)})
    in_aux = [False]
    def ts(idx, force=False):
        if force or cfg.TS == 1 or (cfg.TS == 3 and in_aux[0]) or (cfg.TS == 2 and idx == 7 and not in_aux[0]):
            A(f"s_memrealtime s[{64+2*idx}:{65+2*idx}]\ns_waitcnt lgkmcnt(0)")
    def ts_store():
        if cfg.TS in (1, 3) or (cfg.TS == 2 and not in_aux[0]):
            A("""s_mov_b64 exec, 1
            s_lshl_b32 s60, s2, 3
            s_add_u32 s60, s60, s3
            s_lshl_b32 s60, s60, 6
            s_add_u32 s60, s60, 0x400000
            v_mov_b32 v1, s60""")
            for i in ((0, 7) if cfg.TS == 2 else range(12)):
                A(f"v_mov_b32 v2, s{64+2*i}\nglobal_store_dword v1, v2, s[18:19] offset:{4*i}\ns_nop 1")
            A("s_getreg_b32 s60, hwreg(HW_REG_XCC_ID)\nv_mov_b32 v2, s60\nglobal_store_dword v1, v2, s[18:19] offset:48")
    def srd(d, lo, off, size):
        if off:
            A(f"s_add_u32 s{d}, s{lo}, {off}\ns_addc_u32 s{d+1}, s{lo+1}, 0\ns_and_b32 s{d+1}, s{d+1}, 0xffff")
        else:
            A(f"s_mov_b32 s{d}, s{lo}\ns_and_b32 s{d+1}, s{lo+1}, 0xffff")
        if size is not None:
            A(f"s_mov_b32 s{d+2}, {size}\ns_mov_b32 s{d+3}, 0x20000")

    A(f"{NAME}_kernel:")
    A("s_cmp_ge_u32 s2, 256\ns_cbranch_scc1 L_end")
    A("s_load_dwordx16 s[4:19], s[0:1], 0")
    if cfg.TS:
        for i in range(12):
            A(f"s_mov_b64 s[{64+2*i}:{65+2*i}], 0")
        A("s_memrealtime s[64:65]")
    if cfg.AMP:
        A("s_memrealtime s[92:93]")
    A("""v_lshrrev_b32 v2, 6, v0
    v_and_b32 v1, 63, v0
    v_readfirstlane_b32 s3, v2
    s_and_b32 s48, s2, 15
    s_lshr_b32 s49, s2, 4
    s_cmp_ge_u32 s3, 4""")
    A("s_cbranch_scc0 L_stream" if cfg.AUXF else "s_cbranch_scc1 L_aux")
    i_stream = len(o)
    A("L_stream:")

    SLOT = lambda n: 32 + 4 * n
    vOK, vOV, vSCA, vM, vL, vSA, vSB, vT, vTA, vTB, vSELA, vSELB, vPA, vPB = range(2, 16)
    vQ, vD0, vD1 = 16, 20, 24
    vNM, vTR, vX0, vX1 = 28, 29, 30, 31
    C("stream waves: s3 = wave, s48 = hkv, s49 = b.  K tile: lane (i, g) takes key i>>2, 16-B chunk 4g + (i&3)")
    A(f"""s_setprio 3
    v_and_b32 v{vOK}, 3, v1
    v_lshlrev_b32 v{vOK}, 4, v{vOK}
    v_lshrrev_b32 v{vT}, 4, v1
    v_lshl_add_u32 v{vOK}, v{vT}, 6, v{vOK}
    v_bfe_u32 v{vT}, v1, 2, 1
    v_lshl_add_u32 v{vOK}, v{vT}, {RB[0]}, v{vOK}
    v_bfe_u32 v{vT}, v1, 3, 1
    v_lshl_add_u32 v{vOK}, v{vT}, {RB[1]}, v{vOK}
    s_and_b32 s50, s3, 1
    s_lshl_b32 s50, s50, {WB[0]}
    s_lshr_b32 s51, s3, 1
    s_lshl_b32 s51, s51, {WB[1]}
    s_or_b32 s50, s50, s51
    v_add_u32 v{vOK}, s50, v{vOK}
    s_lshl_b32 s51, s2, 20
    s_mov_b32 s22, 0x100000
    s_mov_b32 s23, 0x20000
    s_mov_b32 s53, 0""")
    for b_, u_ in WGX:
        A(f"s_bitcmp1_b32 s2, {b_}\ns_cselect_b32 s63, {hex(u_)}, 0\ns_xor_b32 s53, s53, s63")
    if WGX:
        A("s_mov_b32 s61, s53")
    A("s_waitcnt lgkmcnt(0)")
    srd(20, 6, "s51", None)

    def issue(n, slot, depth, static=False):
        if depth:
            d_ = str(depth)
            A(f"s_waitcnt vmcnt({int(d_[n % len(d_)]) - 1})")
        isv = n >= 256
        io = ioff(n & 7)
        if static:
            full_ = goff((n >> 3) & 31) ^ io
            low = LOW if WGX else 0xfff
            if cur_so[0] != full_ & ~low:
                cur_so[0] = full_ & ~low
                A(f"s_xor_b32 s53, s61, {hex(cur_so[0])}" if WGX else f"s_mov_b32 s53, {hex(cur_so[0])}")
            so, imm = "s53", full_ & low
        else:
            so, imm = f"s{28 + HI.index(io & ~LOW)}", io & LOW
        A(f"buffer_load_dwordx4 {q(SLOT(slot))}, v{vOV if isv else vOK}, {'s[24:27]' if isv else 's[20:23]'}, {so} offen offset:{imm} nt")
        if (n & 7) == 7 and not static:
            A("s_add_u32 s62, s62, 1")
            spread()
    cur_so = [0]
    def spread():
        for i, v_ in enumerate(GV):
            A(f"s_bitcmp1_b32 s62, {i}\ns_cselect_b32 s{63 if i or WGX else 28}, {hex(v_)}, 0")
            if i or WGX:
                A(f"s_xor_b32 s28, s{28 if i else 61}, s63")
        for i, h in enumerate(HI[1:]):
            A(f"s_xor_b32 s{29 + i}, s28, {hex(h)}")

    C(f"the first {P} K tiles wait in registers until q is there (the weight loads go first)")
    for n in range(P):
        if n < len(cfg.RAMP):
            issue(n, n, int(cfg.RAMP[n]), True)
        else:
            issue(n, n, cfg.NP if n >= cfg.NP else (1 if n == cfg.KDEL and n else 0), True)
        if cfg.QBAR and n == cfg.QBAR:
            A("s_barrier")
        if cfg.TS == 3 and n % 5 == 1 and n <= 51:
            ts(n // 5 + 1, True)
        if n == cfg.NP:
            ts(8)
        if n == cfg.NP + 20:
            ts(9)
        if n == cfg.NP - 1:
            srd(24, 8, "s51", "0x100000")
            A(f"""s_lshl_b32 s55, s49, 2
            s_add_u32 s55, s55, {WS_E}
            s_load_dword s59, s[18:19], s55
            v_and_b32 v{vOV}, 15, v1
            v_lshlrev_b32 v{vOV}, 4, v{vOV}
            v_bfe_u32 v{vT}, v1, 4, 1
            v_lshl_add_u32 v{vOV}, v{vT}, {RB[0]}, v{vOV}
            v_bfe_u32 v{vT}, v1, 5, 1
            v_lshl_add_u32 v{vOV}, v{vT}, {RB[1]}, v{vOV}
            v_add_u32 v{vOV}, s50, v{vOV}
            s_lshl_b32 s52, s3, 13
            s_add_u32 s52, s52, {L_SC}
            v_lshlrev_b32 v{vSCA}, 2, v1
            v_add_u32 v{vSCA}, s52, v{vSCA}
            v_mov_b32 v{vM}, 0xff800000
            s_mov_b32 s56, {hex(C_SCALE)}
            s_mov_b32 s57, {hex(C_LOG2E)}
            v_and_b32 v{vT}, 2, v1
            v_cmp_eq_u32 vcc, 0, v{vT}
            v_mov_b32 v{vTA}, 0x01000c0c
            v_mov_b32 v{vTB}, 0x0c0c0100
            v_cndmask_b32 v{vSELA}, v{vTA}, v{vTB}, vcc
            v_mov_b32 v{vTA}, 0x03020c0c
            v_mov_b32 v{vTB}, 0x0c0c0302
            v_cndmask_b32 v{vSELB}, v{vTA}, v{vTB}, vcc
            v_and_b32 v{vX0}, 1, v1
            v_lshlrev_b32 v{vX0}, 8, v{vX0}
            v_lshrrev_b32 v{vT}, 2, v1
            v_lshl_add_u32 v{vX0}, v{vT}, 4, v{vX0}
            v_add_u32 v{vX0}, {L_Q}, v{vX0}""")
    ts(1)
    C("barrier Q; q operand: column j = (chunk class j>>2, copy, head j&1)")
    A(f"s_barrier\nds_read_b128 {q(vQ)}, v{vX0}\ns_waitcnt lgkmcnt(0)")
    ts(2)

    def chain_ops(c, D, tmp):
        t = c & 3
        S = vSA if (c & 4) == 0 else vSB
        rs = [r for r in range(4) if r != t]
        return [
            f"v_add_f32_dpp v{tmp}, v{D+rs[0]}, v{D+t} {ror(t - rs[0])} row_mask:0xf bank_mask:0xf",
            f"v_add_f32_dpp v{tmp}, v{D+rs[1]}, v{tmp} {ror(t - rs[1])} row_mask:0xf bank_mask:0xf",
            f"v_add_f32_dpp v{S}, v{D+rs[2]}, v{tmp} {ror(t - rs[2])} row_mask:0xf bank_mask:{hex(1 << t)}",
        ]

    def finalize():
        A(f"""v_cvt_pk_bf16_f32 v{vT}, v{vSA}, v{vSB}
        v_lshlrev_b32 v{vTA}, 16, v{vT}
        v_and_b32 v{vTB}, 0xffff0000, v{vT}
        v_mul_f32 v{vTA}, s56, v{vTA}
        v_mul_f32 v{vTB}, s56, v{vTB}
        v_max3_f32 v{vM}, v{vM}, v{vTA}, v{vTB}
        v_cvt_pk_bf16_f32 v{vT}, v{vTA}, v{vTB}
        ds_write_b32 v{vSCA}, v{vT}
        v_add_u32 v{vSCA}, 0x100, v{vSCA}""")

    C("catch up: consume the buffered tiles (product n lands in the registers of tile n-1), keep loading")
    Dof = lambda n: vD0 if n == 0 else (vD1 if n == P - 1 else SLOT(n - 1))
    tmps = [vPA, vPB, vX1]
    ring_at = {(P - 8) * (k + 1) // LAG: k for k in range(LAG)}
    for s in range(P + 3):
        if s in ring_at:
            k = ring_at[s]
            assert s >= k + 6
            issue(P + k, k, cfg.NK, True)
        if P - 8 <= s < P:
            A(f"s_waitcnt vmcnt({P - 1 - s + LAG})")
        A(f"v_mfma_f32_16x16x32_bf16 {q(Dof(s))}, {q(SLOT(s))}, {q(vQ)}, 0" if s < P else "s_nop 0")
        for (lag, opi) in ((4, 2), (3, 1), (2, 0)):
            c = s - lag
            A(chain_ops(c, Dof(c), tmps[c % 3])[opi] if 0 <= c < P - 1 else "s_nop 0")
        c = s - 4
        if c >= 0 and (c & 7) == 7 and c < P - 1:
            finalize()
    ts(3)

    def kstep(c, nissue, static=False):
        issue(nissue, nissue % 8, cfg.NK if nissue < 256 else NV, static)
        A(f"v_mfma_f32_16x16x32_bf16 {q(vD1 if c & 1 else vD0)}, {q(SLOT(c % 8))}, {q(vQ)}, 0")
        pc = (c - 1) % 8
        A("\ns_nop 1\n".join(chain_ops(pc, vD1 if pc & 1 else vD0, vX1)))
        if pc == 7:
            finalize()

    C("K loop")
    A(f"s_mov_b32 s58, {(256 - P) // 8 - 1}\ns_mov_b32 s62, {(P + LAG) >> 3}")
    spread()
    A("L_kloop:")
    for c in range(8):
        kstep(c, P + c + LAG)
    A("s_sub_u32 s58, s58, 1\ns_cmp_lg_u32 s58, 0\ns_cbranch_scc1 L_kloop")
    cur_so[0] = None
    for c in range(248, 256):
        kstep(c, c + LAG, True)
    A("s_nop 1")
    A("\ns_nop 1\n".join(chain_ops(7, vD1, vX1)))
    finalize()
    ts(4)

    def xreduce(v, op, tmp):
        A(f"""s_nop 1
        {op}_dpp v{v}, v{v}, v{v} row_ror:4 row_mask:0xf bank_mask:0xf
        s_nop 1
        {op}_dpp v{v}, v{v}, v{v} row_ror:8 row_mask:0xf bank_mask:0xf
        v_mov_b32 v{tmp}, v{v}
        s_nop 1
        v_permlane16_swap_b32 v{v}, v{tmp}
        {op} v{v}, v{v}, v{tmp}
        v_mov_b32 v{tmp}, v{v}
        s_nop 1
        v_permlane32_swap_b32 v{v}, v{tmp}
        {op} v{v}, v{v}, v{tmp}""")
    def expblock():
        A(f"""s_waitcnt lgkmcnt(0)
        v_lshlrev_b32 v{vTA}, 16, v{vTR}
        v_and_b32 v{vTB}, 0xffff0000, v{vTR}
        v_fma_f32 v{vTA}, v{vTA}, s57, v{vNM}
        v_fma_f32 v{vTB}, v{vTB}, s57, v{vNM}
        v_exp_f32 v{vTA}, v{vTA}
        v_exp_f32 v{vTB}, v{vTB}
        v_add_f32 v{vL}, v{vL}, v{vTA}
        v_add_f32 v{vL}, v{vL}, v{vTB}
        v_cvt_pk_bf16_f32 v{vT}, v{vTA}, v{vTB}""")
    C("maximum of this wave's scores per head, first probabilities")
    vO, vFA, vFM = vQ, vSA, vSB
    A(f"v_subrev_u32 v{vSCA}, 0x2000, v{vSCA}\nds_read_b32 v{vTR}, v{vSCA}")
    xreduce(vM, "v_max_f32", vT)
    A(f"""v_cvt_pk_bf16_f32 v{vM}, v{vM}, v{vM}
    v_lshlrev_b32 v{vM}, 16, v{vM}
    v_mul_f32 v{vM}, s57, v{vM}
    v_sub_f32 v{vNM}, 0, v{vM}
    v_mov_b32 v{vL}, 0""")
    for r in range(16, 28):
        A(f"v_mov_b32 v{r}, 0")
    expblock()
    A(f"""v_perm_b32 v{vPA}, v{vT}, v{vT}, v{vSELA}
    v_perm_b32 v{vPB}, v{vT}, v{vT}, v{vSELB}
    s_mov_b32 s58, 31
    s_mov_b32 s62, {LAG >> 3}
    v_mov_b32 v{vX0}, {L_FC}
    s_lshl_b32 s55, s3, 2
    v_add_u32 v{vFA}, s55, v{vX0}""")
    spread()

    def vstep(c, missue, depth, waitn=None):
        pb = vD1 if c & 1 else vD0
        src = vPA if (c & 4) == 0 else vPB
        for r in range(4):
            A(f"v_mov_b32_dpp v{pb+r}, v{src} {ror(r - (c & 3))} row_mask:0xf bank_mask:{hex(1 << r)}")
        if missue is not None:
            issue(256 + missue, missue % 8, depth)
        else:
            A(f"s_waitcnt vmcnt({waitn})\ns_nop 0")
        A(f"v_mfma_f32_16x16x32_bf16 {q(vO)}, {q(SLOT(c % 8))}, {q(pb)}, {q(vO)}")
    vSIB = SLOT(9)
    def vbody(depth, fc):
        for c in range(8):
            vstep(c, c + LAG, depth)
            if c == 0:
                A(f"v_add_u32 v{vSCA}, 0x100, v{vSCA}\nds_read_b32 v{vTR}, v{vSCA}")
            if c == 2:
                expblock()
            if c == 4:
                A(f"v_perm_b32 v{vPA}, v{vT}, v{vT}, v{vSELA}")
            if c == 6 and fc:
                A(f"ds_read_b32 v{vFM}, v{vX0}")
            if c == cfg.WB_STEP and fc:
                A(f"ds_read_b128 {q(vSIB)}, v{vX0} offset:16")
            if c == 7:
                A(f"v_perm_b32 v{vPB}, v{vT}, v{vT}, v{vSELB}")
    order = [MID] + [i for i in range(len(LEV)) if i != MID]
    for n_, i in enumerate(order):
        C(f"V loop body with {LEV[i][1]} loads in flight")
        A(f"L_v{i}:")
        vbody(LEV[i][1], True)
        if n_ != len(order) - 1:
            A("s_branch L_vbot")
    C("publish progress; level from wave 7, one deeper for a wave behind its siblings")
    A(f"""L_vbot:
    s_sub_u32 s58, s58, 1
    v_mov_b32 v{vX1}, s58
    s_waitcnt lgkmcnt(0)
    v_readfirstlane_b32 s55, v{vFM}
    ds_write_b32 v{vFA}, v{vX1} offset:16
    v_min3_u32 v{vSIB}, v{vSIB}, v{vSIB+1}, v{vSIB+2}
    v_min_u32 v{vSIB}, v{vSIB}, v{vSIB+3}
    s_cmp_eq_u32 s58, {cfg.VEND}
    v_readfirstlane_b32 s50, v{vSIB}
    s_cbranch_scc1 L_vlast
    s_cmp_le_u32 s50, s58
    s_addc_u32 s55, s55, 0""")
    for i in order[:-1]:
        A(f"s_cmp_eq_u32 s55, {i}\ns_cbranch_scc1 L_v{i}")
    A(f"s_branch L_v{order[-1]}")
    C("last iterations")
    A("L_vlast:")
    vbody(cfg.NE, False)
    A("s_sub_u32 s58, s58, 1\ns_cmp_lg_u32 s58, 0\ns_cbranch_scc1 L_vlast")
    c = 248
    while c + LAG < 256:
        vstep(c, c + LAG, cfg.NE)
        c += 1
    ts(5)
    C("all loads are issued: exchange (max, sum) between the waves (barrier A), scale = exp2(m_w - m) / l")
    xreduce(vL, "v_add_f32", vT)
    m0 = SLOT(9)
    A(f"""v_and_b32 v{vX0}, 1, v1
    v_lshlrev_b32 v{vX0}, 5, v{vX0}
    v_add_u32 v{vX0}, {L_ML}, v{vX0}
    s_lshl_b32 s55, s3, 3
    v_add_u32 v{vX1}, s55, v{vX0}
    v_mov_b32 v{vTA}, v{vM}
    v_mov_b32 v{vTB}, v{vL}
    ds_write_b64 v{vX1}, v[{vTA}:{vTB}]
    s_waitcnt lgkmcnt(0)
    s_barrier
    ds_read_b128 {q(m0)}, v{vX0}
    ds_read_b128 {q(m0+4)}, v{vX0} offset:16
    s_lshl_b32 s55, s3, 10
    s_add_u32 s55, s55, {L_O}
    v_lshlrev_b32 v{vX1}, 4, v1
    v_add_u32 v{vX1}, s55, v{vX1}
    s_waitcnt lgkmcnt(0)
    v_max3_f32 v{vT}, v{m0}, v{m0+2}, v{m0+4}
    v_max_f32 v{vT}, v{vT}, v{m0+6}
    v_sub_f32 v{m0}, v{m0}, v{vT}
    v_sub_f32 v{m0+2}, v{m0+2}, v{vT}
    v_sub_f32 v{m0+4}, v{m0+4}, v{vT}
    v_sub_f32 v{m0+6}, v{m0+6}, v{vT}
    v_sub_f32 v{vTA}, v{vM}, v{vT}
    v_exp_f32 v{m0}, v{m0}
    v_exp_f32 v{m0+2}, v{m0+2}
    v_exp_f32 v{m0+4}, v{m0+4}
    v_exp_f32 v{m0+6}, v{m0+6}
    v_exp_f32 v{vTA}, v{vTA}
    v_mul_f32 v{vTB}, v{m0}, v{m0+1}
    v_fmac_f32 v{vTB}, v{m0+2}, v{m0+3}
    v_fmac_f32 v{vTB}, v{m0+4}, v{m0+5}
    v_fmac_f32 v{vTB}, v{m0+6}, v{m0+7}
    v_rcp_f32 v{vTB}, v{vTB}
    s_nop 0
    v_mul_f32 v{vTA}, v{vTA}, v{vTB}
    v_mov_b32 v{vTB}, v{vTA}""")
    while c < 256:
        vstep(c, None, None, 255 - c)
        c += 1
    A(f"""s_nop 7
    v_pk_mul_f32 v[{vO}:{vO+1}], v[{vO}:{vO+1}], v[{vTA}:{vTB}]
    v_pk_mul_f32 v[{vO+2}:{vO+3}], v[{vO+2}:{vO+3}], v[{vTA}:{vTB}]
    ds_write_b128 v{vX1}, {q(vO)}
    s_waitcnt lgkmcnt(0)""")
    ts(6)
    C("barrier B; waves 0-2 of the workgroups with hkv - b = 0, 4, 8, 12 (mod 16) sum a quarter of the batch's row")
    A(f"""s_barrier
    s_setprio 0
    s_sub_u32 s51, s48, s49
    s_and_b32 s50, s51, 3
    s_cbranch_scc1 L_sdone
    s_cmp_eq_u32 s3, 3
    s_cbranch_scc1 L_sdone
    s_bfe_u32 s51, s51, 0x20002
    s_mul_i32 s52, s51, 3
    s_add_u32 s52, s52, s3
    s_lshl_b32 s53, s52, 4
    v_and_b32 v0, 15, v1
    v_add_u32 v0, s53, v0
    v_lshrrev_b32 v9, 4, v1
    v_mul_u32_u24 v9, {YSLOT}, v9
    v_lshl_add_u32 v10, v0, 4, v9
    v_lshlrev_b32 v3, 2, v0
    v_lshlrev_b32 v6, 1, v0
    s_add_u32 s59, s59, {hex(K_TAG)}
    s_mul_i32 s50, s49, {16*YSLOT}""")
    srd(40, 18, "s50", 16 * YSLOT)
    A("s_mul_i32 s50, s49, 1152")
    srd(44, 14, "s50", 1152)
    A(f"""s_lshl_b32 s50, s49, 2
    s_add_u32 s50, s50, {WS_E}
    v_mov_b32 v7, s50
    v_mov_b32 v8, s59
    s_mov_b32 s53, {4*YSLOT}
    s_mov_b32 s54, {8*YSLOT}
    s_mov_b32 s55, {12*YSLOT}
    s_mov_b32 s58, 0x800000
    s_barrier
    L_poll:
    buffer_load_dwordx4 v[32:35], v10, s[40:43], 0 offen sc1
    buffer_load_dwordx4 v[36:39], v10, s[40:43], s53 offen sc1
    buffer_load_dwordx4 v[40:43], v10, s[40:43], s54 offen sc1
    buffer_load_dwordx4 v[44:47], v10, s[40:43], s55 offen sc1
    s_sub_u32 s58, s58, 1
    s_waitcnt vmcnt(2)
    v_xor_b32 v35, s59, v35
    v_xor_b32 v39, s59, v39
    v_pk_add_f32 v[32:33], v[32:33], v[36:37]
    v_add_f32 v34, v34, v38
    s_waitcnt vmcnt(0)
    v_xor_b32 v43, s59, v43
    v_xor_b32 v47, s59, v47
    v_or3_b32 v35, v35, v39, v43
    v_or_b32 v35, v35, v47
    v_cmp_ne_u32 vcc, 0, v35
    v_pk_add_f32 v[40:41], v[40:41], v[44:45]
    v_add_f32 v42, v42, v46
    v_pk_add_f32 v[32:33], v[32:33], v[40:41]
    v_add_f32 v34, v34, v42
    s_cbranch_scc1 L_pollsum
    s_cbranch_vccnz L_poll
    L_pollsum:""")
    for sw in ("v_permlane16_swap_b32", "v_permlane32_swap_b32"):
        A(f"""v_mov_b32 v36, v32
        v_mov_b32 v37, v33
        v_mov_b32 v38, v34
        {sw} v32, v36
        {sw} v33, v37
        {sw} v34, v38
        v_pk_add_f32 v[32:33], v[32:33], v[36:37]
        v_add_f32 v34, v34, v38""")
    A(f"""s_mov_b64 exec, 0xffff
    v_cvt_pk_bf16_f32 v4, v32, v33
    v_cvt_pk_bf16_f32 v5, v34, v34
    buffer_store_dword v4, v3, s[44:47], 0 offen
    buffer_store_short v5, v6, s[44:47], 0 offen offset:768""")
    ts(7)
    C("every workgroup of the batch is done with the epoch word: leave the tag there")
    A("""s_cmp_lg_u32 s52, 0
    s_cbranch_scc1 L_sdone
    s_mov_b64 exec, 1
    global_store_dword v7, v8, s[18:19] sc1
    L_sdone:""")
    if cfg.AMP:
        A(f"""s_memrealtime s[94:95]
        s_waitcnt lgkmcnt(0)
        s_sub_u32 s94, s94, s92
        s_max_u32 s94, s94, 7000
        s_min_u32 s94, s94, 12000
        s_sub_u32 s50, s94, 7000
        s_mul_i32 s50, s50, {cfg.AMP}
        s_add_u32 s50, s50, s94
        s_cmp_eq_u32 s58, 0
        s_cbranch_scc1 L_noamp
        L_amp:
        s_sleep 2
        s_memrealtime s[94:95]
        s_waitcnt lgkmcnt(0)
        s_sub_u32 s94, s94, s92
        s_cmp_lt_u32 s94, s50
        s_cbranch_scc1 L_amp
        L_noamp:""")
    ts_store()
    A("s_endpgm")

    in_aux[0] = True
    i_aux = len(o)
    vOW, vA, vB, vC = 2, 3, 8, 9
    XR, WR, WP, QA = 48, 72, 148, 224
    vXO, vWO, vPO, vTG = 10, 11, 12, 15
    A(f"""L_aux:
    s_sub_u32 s61, s3, 4
    s_mul_i32 s62, s48, {256*1152}
    s_mov_b32 s34, {256*1152}
    s_mov_b32 s35, 0x20000
    s_lshl_b32 s63, s49, 2
    s_add_u32 s63, s63, {WS_E}
    s_cmp_eq_u32 s61, {9 if 'q' in cfg.ABL else 0}
    s_cbranch_scc1 L_qwave
    s_waitcnt lgkmcnt(0)
    s_load_dword s60, s[18:19], s63""")
    srd(32, 12, "s62", None)
    if cfg.WPOS == 3:
        C("wave 5: pull this workgroup's 1/16 of the wo slice into L2 in one burst; the slow copy to registers then hits L2")
        A(f"s_cmp_lg_u32 s61, {9 if 'w' in cfg.ABL else 1}\ns_cbranch_scc1 L_nowarm\ns_mul_i32 s55, s49, 18432\nv_lshlrev_b32 v{vA}, 4, v1")
        for i in range(18):
            A(f"buffer_load_dwordx4 v[40:43], v{vA}, s[32:35], s55 offen offset:{1024*(i % 4)}")
            if i % 4 == 3:
                A("s_add_u32 s55, s55, 0x1000")
        A("s_waitcnt vmcnt(0)\nL_nowarm:")
    if cfg.QBAR:
        A("s_barrier")
    A("s_branch L_qdone")
    C("wave 4: part p = b of q: columns 64 (p>>2).., rows 144 (p&3).. of this kv head's slice of wq, all batches")
    A(f"""L_qwave:
    s_setprio 2
    v_and_b32 v{vA}, 15, v1
    v_lshrrev_b32 v{vB}, 4, v1
    v_mul_u32_u24 v{vXO}, 1152, v{vA}
    v_mad_u32_u24 v{vXO}, v{vB}, 36, v{vXO}
    v_mad_u32_u24 v{vXO}, v{vB}, 36, v{vXO}
    v_mul_u32_u24 v{vWO}, {36*8192}, v{vB}
    v_lshl_add_u32 v{vWO}, v{vA}, 3, v{vWO}
    v_lshlrev_b32 v{vPO}, 14, v{vB}
    v_lshl_add_u32 v{vPO}, v{vA}, 4, v{vPO}
    v_add_u32 v{vTG}, {hex(K_TAG)}, v{vA}
    s_lshl_b32 s51, s48, 9
    s_mov_b32 s38, {16*1152}
    s_mov_b32 s39, 0x20000
    s_sub_u32 s30, {576*8192}, s51
    s_mov_b32 s31, 0x20000
    s_lshl_b32 s52, s48, 16
    s_add_u32 s52, s52, {WS_Q}
    s_mov_b32 s46, 0x10000
    s_mov_b32 s47, 0x20000
    s_mov_b32 s53, s49
    s_mov_b32 s54, 0
    s_mov_b32 s56, 0x05040100
    s_mov_b32 s57, 0x07060302
    s_waitcnt lgkmcnt(0)""")
    srd(28, 10, "s51", None)
    srd(36, 4, None, None)
    srd(44, 18, "s52", None)
    srd(32, 12, "s62", None)
    A(f"""s_load_dword s60, s[18:19], s63
    L_produce:
    s_lshr_b32 s58, s53, 2
    s_and_b32 s59, s53, 3
    s_mul_i32 s50, s59, {144*8192}
    s_lshl_b32 s55, s58, 7
    s_add_u32 s50, s50, s55
    s_mul_i32 s55, s59, 288""")
    for n in range(36):
        A(f"buffer_load_dwordx2 v[{WR+2*n}:{WR+2*n+1}], v{vWO}, s[28:31], s50 offen")
        if n < 35:
            A("s_add_u32 s50, s50, 0x2000")
        if n == 7:
            for i in range(4):
                A(f"buffer_load_dwordx4 {q(XR+4*i)}, v{vXO}, s[36:39], s55 offen offset:{16*i}")
            A(f"buffer_load_dwordx2 v[{XR+16}:{XR+17}], v{vXO}, s[36:39], s55 offen offset:64")
    ts(6)
    A(f"""v_and_b32 v13, 0x30, v1
    v_add_u32 v13, {WS_E}, v13
    global_load_dwordx4 v[16:19], v13, s[18:19]
    s_lshl_b32 s50, s59, 10
    s_lshl_b32 s55, s58, 8
    s_add_u32 s50, s50, s55""")
    ex = 0
    if cfg.WPOS == 0:
        ex = 18
        A(f"s_mul_i32 s55, s49, 18432\nv_lshlrev_b32 v{vA}, 4, v1")
        for i in range(18):
            A(f"buffer_load_dwordx4 v[40:43], v{vA}, s[32:35], s55 offen offset:{1024*(i % 4)}")
            if i % 4 == 3:
                A("s_add_u32 s55, s55, 0x1000")
    for st in range(5):
        rows = 8 if st < 4 else 4
        last = 8 * st + rows - 1
        A(f"s_waitcnt vmcnt({ex + (36 - last if st < 4 else 0)})")
        for c in range(4):
            for m in range(rows // 2):
                r0 = 8 * st + 2 * m
                A(f"v_perm_b32 v{WP + 18*c + 4*st + m}, v{WR + 2*(r0+1) + (c >> 1)}, v{WR + 2*r0 + (c >> 1)}, {'s57' if c & 1 else 's56'}")
        A("s_nop 1")
        for c in range(4):
            w = WP + 18 * c + 4 * st
            cin = "0" if st == 0 else q(QA + 4 * c)
            if st < 4:
                A(f"v_mfma_f32_16x16x32_bf16 {q(QA+4*c)}, {q(XR+4*st)}, {q(w)}, {cin}")
            else:
                A(f"v_mfma_f32_16x16x16_bf16 {q(QA+4*c)}, v[{XR+16}:{XR+17}], v[{w}:{w+1}], {cin}")
    if 's' in cfg.ABL:
        A("s_waitcnt lgkmcnt(0)\ns_branch L_qdone")
    C("the low 4 bits of every partial sum carry the tag")
    A(f"""s_waitcnt lgkmcnt(0)
    v_add_u32 v36, s60, v{vTG}
    v_lshrrev_b32 v37, 4, v36
    v_lshrrev_b32 v38, 8, v36
    v_lshrrev_b32 v39, 12, v36
    s_nop 3""")
    for r in range(4):
        for c in range(4):
            A(f"v_bfi_b32 v{QA+16+4*r+c}, 15, v{36+c}, v{QA+4*c+r}")
        A(f"buffer_store_dwordx4 {q(QA+16+4*r)}, v{vPO}, s[44:47], s50 offen")
        if r < 3:
            A("s_add_u32 s50, s50, 0x1000")
    ts(7)
    A(f"""s_cmp_eq_u32 s54, 0
    s_cbranch_scc1 L_first
    s_waitcnt vmcnt(0)
    s_add_u32 s53, s53, 1
    s_cmp_lt_u32 s53, 16
    s_cbranch_scc1 L_produce
    s_branch L_consume""")
    C("expected tags of the 16 parts; gather them")
    A(f"L_first:\nv_lshlrev_b32 v{vA}, 4, v1")
    if cfg.WPOS == 1:
        A("s_mul_i32 s50, s49, 18432")
    for i in range(18 if cfg.WPOS == 1 else 0):
        A(f"buffer_load_dwordx4 {q(WP+4*i)}, v{vA}, s[32:35], s50 offen offset:{1024*(i % 4)}")
        if i % 4 == 3:
            A("s_add_u32 s50, s50, 0x1000")
    for rb in range(4):
        A(f"v_add_u32 v{20+4*rb}, v{vTG}, v{16+rb}")
        for c in range(1, 4):
            A(f"v_lshrrev_b32 v{20+4*rb+c}, {4*c}, v{20+4*rb}")
    A(f"""{"s_barrier" if cfg.QBAR else "s_waitcnt vmcnt(0)"}
    L_consume:
    s_lshl_b32 s50, s49, 12
    s_mov_b32 s58, {cfg.QPOLLS}
    L_qpoll:""")
    for rb in range(4):
        A(f"buffer_load_dwordx4 {q(XR+4*rb)}, v{vA}, s[44:47], s50 offen offset:{1024*rb} sc1")
    A("s_waitcnt vmcnt(0)")
    for i in range(16):
        A(f"v_xor_b32 v{WR+i}, v{20+i}, v{XR+i}")
    A(f"v_or3_b32 v{WR}, v{WR}, v{WR+1}, v{WR+2}")
    for i in range(3, 15, 2):
        A(f"v_or3_b32 v{WR}, v{WR}, v{WR+i}, v{WR+i+1}")
    A(f"""v_or_b32 v{WR}, v{WR}, v{WR+15}
    v_and_b32 v{WR}, 15, v{WR}
    v_cmp_ne_u32 vcc, 0, v{WR}
    s_nop 4
    s_cbranch_vccz L_qready
    s_cmp_lg_u32 s54, 0
    s_cbranch_scc1 L_qready
    s_sub_u32 s58, s58, 1
    s_cbranch_scc0 L_qpoll""")
    C("parts are missing: compute all 16 into a private area")
    A(f"""s_mov_b32 s54, 1
    s_mov_b32 s53, 0
    s_lshl_b32 s52, s2, 16
    s_add_u32 s52, s52, {WS_F}""")
    srd(44, 18, "s52", None)
    A("s_branch L_produce\nL_qready:")
    ts(9)
    for i in range(16):
        A(f"v_bfi_b32 v{XR+i}, 15, 8, v{XR+i}")
    A(f"""v_lshlrev_b32 v{vB}, 3, v1
    v_add_u32 v{vB}, {L_Q}, v{vB}
    v_pk_add_f32 v[{XR}:{XR+1}], v[{XR}:{XR+1}], v[{XR+4}:{XR+5}]
    v_pk_add_f32 v[{XR+2}:{XR+3}], v[{XR+2}:{XR+3}], v[{XR+6}:{XR+7}]
    v_pk_add_f32 v[{XR+8}:{XR+9}], v[{XR+8}:{XR+9}], v[{XR+12}:{XR+13}]
    v_pk_add_f32 v[{XR+10}:{XR+11}], v[{XR+10}:{XR+11}], v[{XR+14}:{XR+15}]
    v_pk_add_f32 v[{XR}:{XR+1}], v[{XR}:{XR+1}], v[{XR+8}:{XR+9}]
    v_pk_add_f32 v[{XR+2}:{XR+3}], v[{XR+2}:{XR+3}], v[{XR+10}:{XR+11}]
    v_cvt_pk_bf16_f32 v{XR}, v{XR}, v{XR+1}
    v_cvt_pk_bf16_f32 v{XR+1}, v{XR+2}, v{XR+3}
    ds_write_b64 v{vB}, v[{XR}:{XR+1}]
    s_setprio 0
    s_branch L_qdone""")
    i_aux2 = len(o)
    A(f"""L_qdone:
    s_load_dword s63, s[18:19], {WS_E}
    v_mov_b32 v{vA}, {L_FC}
    v_mov_b32 v{vB}, {MID}
    v_mov_b32 v{vC}, 99
    ds_write2_b32 v{vA}, v{vB}, v{vC} offset0:0 offset1:4
    ds_write2_b32 v{vA}, v{vC}, v{vC} offset0:5 offset1:6
    ds_write_b32 v{vA}, v{vC} offset:28
    s_waitcnt lgkmcnt(0)""")
    ts(1)
    WS = lambda n: 64 + 4 * n
    NWS, YACC, OB0, OB1 = 48, 12, 4, 8
    vOP0, vOP1, vAO, vAW, vAY, vAR, vIX, vAR2, vST = 56, 57, 58, 59, 60, 61, 62, 63, 3
    C("barrier Q; wo tiles (8 rows x 64 columns): lane (j, g) takes row 128 (g>>1) + 8 (g&1) + 16 (j>>3) + 32 wave + k")
    A(f"""s_barrier
    v_bfe_u32 v8, v1, 5, 1
    v_lshlrev_b32 v8, 7, v8
    v_bfe_u32 v9, v1, 4, 1
    v_lshl_add_u32 v8, v9, 3, v8
    v_bfe_u32 v9, v1, 3, 1
    v_lshl_add_u32 v8, v9, 4, v8
    s_lshl_b32 s50, s61, 5
    v_add_u32 v8, s50, v8
    v_mul_u32_u24 v{vOW}, 1152, v8
    v_and_b32 v9, 7, v1
    v_lshl_add_u32 v{vOW}, v9, 4, v{vOW}
    s_mul_i32 s52, s61, {24*1024}""")
    if cfg.WO_MIX:
        A("s_cmp_eq_u32 s61, 3\ns_cselect_b64 vcc, -1, 0")
    for k in range(72):
        t, cb = divmod(k >> 1, 9)
        if k >= cfg.WO_DEPTH:
            A(f"s_waitcnt vmcnt({cfg.WO_DEPTH - 1})")
        if 0 < k < cfg.WO_MIX:
            A(f"s_cbranch_vccnz L_wo{k}\ns_waitcnt vmcnt(0)\nL_wo{k}:")
        A(f"s_movk_i32 s50, {(2*t + (k & 1)) * 1152 + cb * 128}")
        if k < NWS:
            A(f"buffer_load_dwordx4 {q(WS(k))}, v{vOW}, s[32:35], s50 offen nt")
        else:
            A(f"s_add_u32 m0, s52, {L_WO + (k - NWS) * 1024}\ns_nop 0\nbuffer_load_dwordx4 v{vOW}, s[32:35], s50 offen nt lds")
    A(f"s_add_u32 s60, s60, {hex(K_TAG)}\ns_mul_i32 s50, s2, {YSLOT}")
    srd(40, 18, "s50", YSLOT)
    A(f"""v_bfe_u32 v8, v1, 2, 2
    v_lshlrev_b32 v{vAO}, 6, v8
    v_lshrrev_b32 v8, 4, v1
    v_lshl_add_u32 v{vAO}, v8, 4, v{vAO}
    v_and_b32 v9, 1, v1
    v_lshl_add_u32 v{vAO}, v9, 3, v{vAO}
    s_lshl_b32 s50, s61, 8
    s_add_u32 s50, s50, {L_O}
    v_add_u32 v{vAO}, s50, v{vAO}
    v_lshlrev_b32 v{vAW}, 4, v1
    v_add_u32 v{vAW}, s52, v{vAW}
    v_and_b32 v9, 15, v1
    v_lshlrev_b32 v{vAY}, 5, v9
    v_lshl_add_u32 v{vAY}, v8, 3, v{vAY}
    s_mul_i32 s50, s61, {YP}
    s_add_u32 s50, s50, {L_Y}
    v_add_u32 v{vAY}, s50, v{vAY}
    s_mul_i32 s50, s61, 48
    v_add_u32 v9, s50, v1
    v_lshlrev_b32 v{vST}, 4, v9
    v_lshlrev_b32 v{vAR}, 3, v9
    v_add_u32 v{vAR}, {L_Y}, v{vAR}
    v_lshlrev_b32 v{vAR2}, 2, v9
    v_add_u32 v{vAR2}, {L_Y + 1536}, v{vAR2}
    v_bfe_u32 v{vIX}, v1, 1, 2
    v_xor_b32 v9, 1, v{vIX}
    v_lshl_add_u32 v{vIX}, v9, 2, v{vIX}
    v_mul_u32_u24 v{vIX}, 0x1111, v{vIX}
    s_waitcnt vmcnt(0)""")
    ts(2)
    C("wave 7: at every second V iteration, rank this workgroup among those with the same wg & 7 ...")
    gx, off = cfg.GX, 9 * cfg.GX
    A(f"""s_cmp_lg_u32 s61, 3
    s_cbranch_scc1 L_noctl
    s_add_u32 s63, s63, {hex(K_TAG)}
    s_and_b32 s24, s2, 7
    s_lshr_b32 s25, s2, 3
    s_mul_i32 s26, s24, 4352
    s_add_u32 s26, s26, {WS_P}
    v_min_u32 v48, 32, v1
    v_lshlrev_b32 v48, 2, v48
    v_add_u32 v48, s26, v48
    s_lshl_b32 s50, s25, 2
    s_add_u32 s50, s50, s26
    v_mov_b32 v49, s50
    v_mov_b32 v50, {L_FC}
    s_add_u32 s50, s26, 128
    v_mov_b32 v54, s50
    s_mul_i32 s50, s24, 4224
    s_add_u32 s50, s50, {WS_G}
    v_mov_b32 v55, s50
    s_mov_b32 s27, {cfg.CK0}
    s_mov_b32 s28, 1
    L_ctl:
    s_sleep 1
    ds_read_b128 v[4:7], v50 offset:16
    s_waitcnt lgkmcnt(0)
    v_max3_u32 v51, v4, v5, v6
    v_max_u32 v51, v51, v7
    s_sub_u32 s30, s63, s27
    v_readfirstlane_b32 s50, v51
    s_cmp_gt_u32 s50, s27
    s_cbranch_scc1 L_ctl
    v_mov_b32 v52, s30
    s_mov_b64 exec, 1
    global_store_dword v49, v52, s[18:19]
    s_mov_b64 exec, -1
    global_load_dword v53, v48, s[18:19] sc1
    s_waitcnt vmcnt(0)
    v_readlane_b32 s36, v53, 32
    v_subrev_u32 v53, s30, v53
    v_cmp_gt_u32 vcc, 32, v53
    s_sub_u32 s36, s36, s63
    s_cmp_lt_u32 s36, 17
    s_cselect_b32 s36, s36, 9
    s_mul_i32 s36, s36, {gx}
    s_bcnt1_i32_b32 s31, vcc_lo
    s_lshl_b32 s37, s31, 1
    s_add_u32 s37, s37, s36
    s_mov_b32 s38, 0""")
    for i in range(1, len(LEV) - 1):
        A(f"s_cmp_ge_u32 s37, {2*LEV[i][0] + off}\ns_cselect_b32 s38, {i}, s38")
    A("v_mov_b32 v51, s38\nds_write_b32 v50, v51")
    C("... and at every fourth, one or two of them rank their group among the eight groups")
    A(f"""s_xor_b32 s28, s28, 1
    s_cbranch_scc1 L_ctlnext
    s_sub_u32 s50, s31, {cfg.GR}
    s_cmp_ge_u32 s50, 2
    s_cbranch_scc1 L_ctlnext
    s_mov_b64 exec, 1
    global_store_dword v55, v52, s[18:19] sc1""")
    gr = [20, 21, 22, 23, 44, 45, 46, 47]
    for i in range(8):
        A(f"s_load_dword s{gr[i]}, s[18:19], {WS_G + 4224*i} glc")
    A("s_lshl_b32 s50, 1, s24\ns_waitcnt lgkmcnt(0)")
    for i in range(8):
        A(f"s_sub_u32 s{gr[i]}, s{gr[i]}, s30\ns_cmp_lt_u32 s{gr[i]}, 32\ns_cselect_b32 s{gr[i]}, {1 << i}, 0\ns_or_b32 s50, s50, s{gr[i]}")
    A(f"""s_bcnt1_i32_b32 s50, s50
    s_lshl_b32 s50, s50, 1
    s_add_u32 s50, s50, s63
    v_mov_b32 v53, s50
    global_store_dword v54, v53, s[18:19]
    s_mov_b64 exec, -1
    L_ctlnext:
    s_sub_u32 s27, s27, {cfg.CKIT}
    s_cmp_gt_i32 s27, {cfg.VEND}
    s_cbranch_scc1 L_ctl
    s_waitcnt vmcnt(0) lgkmcnt(0)
    L_noctl:""")
    for r in range(OB0, YACC + 36):
        A(f"v_mov_b32 v{r}, 0")
    C("barriers A and B; o = bf16(sum of the four scaled partials); y = o @ wo rows of this wave")
    A("s_setprio 3\ns_barrier\ns_barrier")
    ts(3)
    for w in range(4):
        A(f"ds_read_b64 v[{48+2*w}:{49+2*w}], v{vAO} offset:{1024*w}")
    A(f"""s_waitcnt lgkmcnt(2)
    v_pk_add_f32 v[48:49], v[48:49], v[50:51]
    s_waitcnt lgkmcnt(0)
    v_pk_add_f32 v[52:53], v[52:53], v[54:55]
    v_pk_add_f32 v[48:49], v[48:49], v[52:53]
    v_cvt_pk_bf16_f32 v{vOP0}, v48, 0
    v_cvt_pk_bf16_f32 v{vOP1}, v49, 0
    s_nop 0""")
    def sbuild(t):
        ob = OB1 if t & 1 else OB0
        return [f"v_mov_b32_dpp v{ob+a_}, v{vOP1 if a_ >> 1 else vOP0} {ror(2*(a_ & 1) + odd - t)} row_mask:0xf bank_mask:{hex(1 << (2*(a_ & 1) + odd))}"
                for odd in range(2) for a_ in range(4)]
    A("\n".join(sbuild(0)) + "\ns_nop 1")
    Y = lambda p: WS(30) + 2 * p
    def merge(cb):
        d, p = YACC + 4 * cb, cb >> 1
        if cb & 1:
            r = [f"v_add_f32_dpp v{Y(p)}, v{d}, v{d+1} row_ror:8 row_mask:0xf bank_mask:0xc",
                 f"v_add_f32_dpp v{Y(p)+1}, v{d+2}, v{d+3} row_ror:8 row_mask:0xf bank_mask:0xc"]
        else:
            r = [f"v_add_f32_dpp v{Y(p)}, v{d+1}, v{d} row_ror:8 row_mask:0xf bank_mask:0x3",
                 f"v_add_f32_dpp v{Y(p)+1}, v{d+3}, v{d+2} row_ror:8 row_mask:0xf bank_mask:0x3"]
        if cb & 1 or cb == 8:
            r.append(f"ds_write_b64 v{vAY}, v[{Y(p)}:{Y(p)+1}] offset:{512*p}")
        return r
    pos = {}
    done = 0
    def states_since(i):
        n = 0
        for l in o[i + 1:]:
            l = l.strip()
            n += int(l.split()[1]) + 1 if l.startswith("s_nop") else 1
        return n
    for m in range(36):
        t, cb = divmod(m, 9)
        slot = 2 * m if 2 * m < NWS else 2 * m - NWS
        if NWS <= 2 * m < 2 * 31:
            A(f"s_waitcnt lgkmcnt({min(14, min(72 - NWS, m - 1) - (2 * m - NWS + 2))})")
        if m == 31:
            A("s_waitcnt lgkmcnt(0)")
        A(f"v_smfmac_f32_16x16x64_bf16 {q(YACC+4*cb)}, {q(OB1 if t & 1 else OB0)}, v[{WS(slot)}:{WS(slot)+7}], v{vIX}")
        pos[cb] = len(o) - 1
        if 1 <= m <= 72 - NWS:
            A(f"ds_read_b128 {q(WS(m-1))}, v{vAW} offset:{L_WO + (m-1)*1024}")
        if t < 3 and 1 <= cb <= 6:
            bl = sbuild(t + 1)
            A("\n".join({1: bl[0:2], 2: bl[2:4], 3: bl[4:5], 4: bl[5:6], 5: bl[6:7], 6: bl[7:8]}[cb]))
        if cfg.MI and m >= 31 and states_since(pos[done]) >= 8:
            A("\n".join(merge(done)))
            done += 1
    rest = list(range(done, 9))
    if not cfg.MI:
        rest = [0, 2, 4, 6, 1, 3, 5, 7, 8]
    for cb in rest:
        need = 8 - states_since(pos[cb])
        if cfg.MI and cb & 1:
            need = max(need, 1)
        if need > 0:
            A(f"s_nop {need - 1}")
        A("\n".join(merge(cb)))
    A("s_mov_b32 exec_hi, 0xffff\nv_mov_b32 v51, s60\ns_waitcnt lgkmcnt(0)")
    ts(4)
    C("barrier C; granule n = {y[2n], y[2n+1], y[384+n], tag}")
    A("s_barrier")
    for w in range(4):
        A(f"ds_read_b64 v[{12+4*w}:{13+4*w}], v{vAR} offset:{YP*w}\nds_read_b32 v{14+4*w}, v{vAR2} offset:{YP*w}")
    A(f"""s_waitcnt lgkmcnt(4)
    v_pk_add_f32 v[12:13], v[12:13], v[16:17]
    v_add_f32 v14, v14, v18
    s_waitcnt lgkmcnt(0)
    v_pk_add_f32 v[20:21], v[20:21], v[24:25]
    v_add_f32 v22, v22, v26
    v_pk_add_f32 v[48:49], v[12:13], v[20:21]
    v_add_f32 v50, v14, v22
    buffer_store_dwordx4 v[48:51], v{vST}, s[40:43], 0 offen sc1""")
    ts(5)
    ts_store()
    A("L_end:\ns_endpgm")
    if cfg.AUXF:
        o = o[:i_stream] + o[i_aux:i_aux2] + o[i_stream:i_aux] + o[i_aux2:]
    return "\n".join(o)

HEADER = open("standalone__gqa_block_cached__sampling.s.ref").read().split("; Override launch")[0]

def full(cfg):
    return f"""{HEADER}; @launch grid=(256,1,1) block=(512,1,1) lds={LDS_BYTES}
{DOC}.amdgcn_target "amdgcn-amd-amdhsa--gfx950"
.text
.globl {NAME}_kernel
.p2align 8
.type {NAME}_kernel,@function
{gen(cfg)}
.section .rodata,"a"
.p2align 6
.amdhsa_kernel {NAME}_kernel
  .amdhsa_next_free_vgpr 256
  .amdhsa_next_free_sgpr 96
  .amdhsa_accum_offset 256
  .amdhsa_group_segment_fixed_size 0
  .amdhsa_kernarg_size 64
  .amdhsa_user_sgpr_count 2
  .amdhsa_user_sgpr_kernarg_segment_ptr 1
  .amdhsa_system_sgpr_workgroup_id_x 1
.end_amdhsa_kernel
"""

if __name__ == "__main__":
    cfg = Cfg()
    for kv in sys.argv[2:]:
        k, v = kv.split("=")
        setattr(cfg, k, int(v) if isinstance(getattr(cfg, k), int) else v)
    open(sys.argv[1], "w").write(full(cfg))
```

```python
import json
from gen_stream import desc, meta
def kernel(name, st, ld, mode='v', nset=1, delay=None, half=0, slp=0):
    o = []; A = o.append
    A(f".globl {name}\n.p2align 8\n.type {name},@function\n{name}:")
    A(f"  s_cmp_ge_u32 s2, 128\n  s_cbranch_scc1 {name}_done")
    A("  s_memrealtime s[20:21]\n  s_load_dwordx2 s[42:43], s[0:1], 56\n  s_waitcnt lgkmcnt(0)")
    A("  s_and_b32 s30, s2, 63\n  s_lshr_b32 s31, s30, 3\n  s_sub_u32 s32, s30, s31\n  s_and_b32 s32, s32, 7\n  s_and_b32 s33, s30, 0x38\n  s_or_b32 s32, s32, s33")
    A("  s_cmp_lt_u32 s2, 64\n  s_cselect_b32 s30, s30, s32")
    A("  s_mul_i32 s34, s30, 3072\n  s_add_u32 s34, s34, 0x1000000\n  v_lshlrev_b32 v1, 4, v0")
    if half: A(f"  v_lshrrev_b32 v2, 2, v0\n  v_mul_u32_u24 v2, {half}, v2\n  v_add_u32 v1, v1, v2")
    A("  v_add_u32 v1, s34, v1")
    A("  s_mov_b32 exec_hi, 0xffff\n  s_mov_b32 s35, 0x12345678\n  s_and_b32 s36, s20, 0xfffff000\n  s_add_u32 s36, s36, 0x2000")
    A(f"  s_cmp_lt_u32 s2, 64\n  s_cbranch_scc0 {name}_c")
    A("  v_mov_b32 v4, s35\n  v_mov_b32 v5, s35\n  v_mov_b32 v6, s35\n  v_mov_b32 v7, s35")
    A(f"{name}_w:\n  s_memrealtime s[22:23]\n  s_waitcnt lgkmcnt(0)\n  s_cmp_lt_u32 s22, s36\n  s_cbranch_scc1 {name}_w")
    A(f"  global_store_dwordx4 v1, v[4:7], s[42:43] {st}\n  s_waitcnt vmcnt(0)\n  s_memrealtime s[24:25]\n  s_branch {name}_o")
    A(f"{name}_c:")
    A("  s_mov_b32 s37, 100000")
    if delay is not None:
        A(f"  s_add_u32 s36, s36, {delay}\n{name}_w2:\n  s_memrealtime s[22:23]\n  s_waitcnt lgkmcnt(0)\n  s_cmp_lt_u32 s22, s36\n  s_cbranch_scc1 {name}_w2")
    if mode == 'v':
        for k in range(nset): A(f"  global_load_dwordx4 v[{8+4*k}:{11+4*k}], v1, s[42:43] {ld}\n  s_nop 15\n s_nop 15")
        A(f"{name}_p:")
        for k in range(nset):
            A(f"  s_waitcnt vmcnt({nset-1})\n  v_cmp_ne_u32 vcc, s35, v{11+4*k}\n  s_nop 4\n  s_cbranch_vccz {name}_g\n  s_sleep {slp}\n  global_load_dwordx4 v[{8+4*k}:{11+4*k}], v1, s[42:43] {ld}")
        A(f"  s_sub_u32 s37, s37, 1\n  s_cbranch_scc0 {name}_p")
    else:
        A(f"{name}_p:\n  s_load_dword s38, s[42:43], s34 glc\n  s_waitcnt lgkmcnt(0)\n  s_cmp_eq_u32 s38, s35\n  s_cbranch_scc1 {name}_g\n  s_sub_u32 s37, s37, 1\n  s_cbranch_scc0 {name}_p")
    A(f"{name}_g:\n  s_memrealtime s[22:23]\n  s_mov_b32 s24, s37")
    A(f"{name}_o:\n  s_waitcnt vmcnt(0) lgkmcnt(0)\n  s_getreg_b32 s39, hwreg(HW_REG_XCC_ID)\n  s_lshl_b32 s27, s2, 4\n  v_mov_b32 v8, s22\n  v_mov_b32 v9, s24\n  v_mov_b32 v10, s30\n  v_mov_b32 v11, s39\n  v_mov_b32 v2, s27\n  s_mov_b64 exec, 1\n  s_waitcnt vmcnt(0)\n  global_store_dwordx4 v2, v[8:11], s[42:43]")
    A(f"{name}_done:\n  s_endpgm")
    return "\n".join(o)
V = [("h_full", 'sc1', 'sc1')]
for ns, sl in ((4, 2), (5, 2), (6, 1), (6, 2), (8, 1), (10, 1), (3, 3), (4, 3)):
    V.append((f"h_n{ns}s{sl}", 'sc1', 'sc1', 'v', ns, None, 0, sl))
s = '.amdgcn_target "amdgcn-amd-amdhsa--gfx950"\n.text\n' + "\n".join(kernel(*v) for v in V) + '\n.section .rodata,"a"\n' + "\n".join(".p2align 6\n" + desc(v[0], 64) for v in V)
s += "\n.amdgpu_metadata\n---\namdhsa.version: [1, 2]\namdhsa.kernels:\n" + "\n".join(meta(v[0], 64, 1) for v in V) + "\n...\n.end_amdgpu_metadata\n"
open("ho.s", "w").write(s)
json.dump([v[0] for v in V], open("ho.json", "w"))
```
